```python
import torch

def _softmax(x, axis=-1):
    return torch.softmax(x, dim=axis)

def _gelu(x):
    return torch.nn.functional.gelu(x, approximate='tanh')

def _silu(x):
    return torch.nn.functional.silu(x)

def _sigmoid(x):
    return torch.sigmoid(x)

def _layernorm(x, axis=-1, eps=1e-05):
    m = x.mean(dim=axis, keepdim=True)
    v = x.var(dim=axis, keepdim=True, unbiased=False)
    return (x - m) / torch.sqrt(v + eps)

def _scatter_add(tgt, idx, src, axis=0):
    return tgt.clone().index_add_(axis, idx, src)

def _segment_sum(src, seg, n):
    out = torch.zeros((n,) + src.shape[1:], dtype=src.dtype)
    return out.index_add_(0, seg, src)

def _pad(x, pw):
    flat = tuple((v for pair in reversed(pw) for v in pair))
    return torch.nn.functional.pad(x, flat)
kernel_name = 'parallel_sum__memory_aug_recurrent_mem_tr__dense_activation_gelu__prompt'

def setup_inputs():

    _w = lambda a: (lambda t: t.to(torch.bfloat16) if t.is_floating_point() else t)(torch.as_tensor(a))

    def _A_setup():
        B, S, Dm = (1, 2048, 576)
        H, Dh = (32, 128)
        M, seg = (8, 32)
        seg = min(seg, S)
        S = S // seg * seg
        return {'x': _w((lambda *s: torch.randn(*s, dtype=torch.bfloat16) * 0.05)(B, S, Dm)), 'mem0': _w((lambda *s: torch.randn(*s, dtype=torch.bfloat16) * 0.2)(B, M, Dm)), 'Wq': _w((lambda *s: torch.randn(*s, dtype=torch.bfloat16) * 1.6)(Dm, H, Dh) * Dm ** (-0.5)), 'Wk': _w((lambda *s: torch.randn(*s, dtype=torch.bfloat16) * 1.6)(Dm, H, Dh) * Dm ** (-0.5)), 'Wv': _w((lambda *s: torch.randn(*s, dtype=torch.bfloat16) * 0.2)(Dm, H, Dh) * Dm ** (-0.5)), 'Wo': _w((lambda *s: torch.randn(*s, dtype=torch.bfloat16) * 0.2)(H, Dh, Dm) * (H * Dh) ** (-0.5)), 'seg_len': seg}
    _A_in = _A_setup()

    def _B_setup():
        B, S, D, F = (1, 2048, 576, 4608)
        return {'x': _w((lambda *s: torch.randn(*s, dtype=torch.bfloat16) * 0.05)(B, S, D)), 'w1': _w((lambda *s: torch.randn(*s, dtype=torch.bfloat16) * 0.8)(D, F) * D ** (-0.5)), 'b1': _w((lambda *s: torch.randn(*s, dtype=torch.bfloat16) * 12.8)(F) * 0.01), 'w2': _w((lambda *s: torch.randn(*s, dtype=torch.bfloat16) * 0.2)(F, D) * F ** (-0.5)), 'b2': _w((lambda *s: torch.randn(*s, dtype=torch.bfloat16) * 3.2)(D) * 0.01)}
    _B_in = _B_setup()
    return {'A_x': _A_in['x'], 'A_mem0': _A_in['mem0'], 'A_Wq': _A_in['Wq'], 'A_Wk': _A_in['Wk'], 'A_Wv': _A_in['Wv'], 'A_Wo': _A_in['Wo'], 'A_seg_len': _A_in['seg_len'], 'B_x': _B_in['x'], 'B_w1': _B_in['w1'], 'B_b1': _B_in['b1'], 'B_w2': _B_in['w2'], 'B_b2': _B_in['b2']}

def reference(A_x, A_mem0, A_Wq, A_Wk, A_Wv, A_Wo, A_seg_len, B_x, B_w1, B_b1, B_w2, B_b2):

    def _A_ref(x, mem0, Wq, Wk, Wv, Wo, seg_len):
        B, S, Dm = x.shape
        H, Dh = (Wq.shape[1], Wq.shape[2])
        M = mem0.shape[1]
        scale = Dh ** (-0.5)
        n_seg = S // seg_len
        L = M + seg_len
        idx = torch.arange(L)
        mask = (idx[:, None] < M) | (idx[:, None] >= idx[None, :])
        mem = mem0
        outs = []
        for s in range(n_seg):
            xs = x[:, s * seg_len:(s + 1) * seg_len, :].clone()
            h = torch.concatenate([mem, xs], axis=1)
            q = torch.einsum('btd,dhe->bhte', h, Wq)
            k = torch.einsum('btd,dhe->bhte', h, Wk)
            v = torch.einsum('btd,dhe->bhte', h, Wv)
            scores = torch.einsum('bhqe,bhke->bhqk', q, k) * scale
            scores = torch.where(mask[None, None], scores, -1000000000.0)
            p = _softmax(scores, axis=-1)
            o = torch.einsum('bhqk,bhke->bhqe', p, v)
            o = torch.einsum('bhte,hed->btd', o, Wo)
            mem = o[:, :M, :].clone()
            outs.append(o[:, M:, :])
        return torch.concatenate(outs, axis=1)

    def _B_ref(x, w1, b1, w2, b2):
        h = torch.einsum('bsd,df->bsf', x, w1) + b1
        h = _gelu(h)
        return torch.einsum('bsf,fd->bsd', h, w2) + b2
    x = A_x
    xn = _layernorm(x, axis=-1)
    return x + _A_ref(xn, A_mem0, A_Wq, A_Wk, A_Wv, A_Wo, A_seg_len) + _B_ref(xn, B_w1, B_b1, B_w2, B_b2)
```

```python
import re

REG_RE = re.compile(r'^(v|a|s)(\d+)$')
RANGE_RE = re.compile(r'^(v|a|s)\[(\d+):(\d+)\]$')


def regs_of(tok):
    tok = tok.strip()
    neg = tok.lstrip('-|').rstrip('|')
    m = REG_RE.match(neg)
    if m:
        return {(m.group(1), int(m.group(2)))}
    m = RANGE_RE.match(neg)
    if m:
        return {(m.group(1), i) for i in range(int(m.group(2)), int(m.group(3)) + 1)}
    if neg == 'vcc':
        return {('s', 106), ('s', 107)}
    if neg == 'vcc_lo':
        return {('s', 106)}
    if neg == 'vcc_hi':
        return {('s', 107)}
    if neg == 'exec':
        return {('s', 126), ('s', 127)}
    if neg == 'exec_lo':
        return {('s', 126)}
    if neg == 'exec_hi':
        return {('s', 127)}
    if neg == 'm0':
        return {('s', 124)}
    if neg == 'scc':
        return {('s', 253)}
    return set()


def v(i, n=1):
    return f'v{i}' if n == 1 else f'v[{i}:{i + n - 1}]'


def a(i, n=1):
    return f'a{i}' if n == 1 else f'a[{i}:{i + n - 1}]'


def s(i, n=1):
    return f's{i}' if n == 1 else f's[{i}:{i + n - 1}]'


def r(i, n=1):
    if i < 256:
        assert i + n <= 256, (i, n)
        return v(i, n)
    return a(i - 256, n)


TRANS = ('v_exp_f32', 'v_log_f32', 'v_rcp_f32', 'v_rsq_f32', 'v_sqrt_f32', 'v_sin_f32', 'v_cos_f32',
         'v_rcp_iflag_f32')
EXEC = {('s', 126), ('s', 127)}
VCC = {('s', 106), ('s', 107)}


class Instr:
    def __init__(self, text, tag=None):
        self.text = text.strip()
        self.tag = tag
        t = self.text.split(';')[0].strip()
        parts = t.split(None, 1)
        self.op = parts[0]
        rest = parts[1] if len(parts) > 1 else ''
        ops, cur, depth = [], '', 0
        for ch in rest:
            if ch in '[(':
                depth += 1
            if ch in '])':
                depth -= 1
            if ch == ',' and depth == 0:
                ops.append(cur.strip())
                cur = ''
            else:
                cur += ch
        if cur.strip():
            ops.append(cur.strip())
        self.mods = ''
        if ops:
            last = ops[-1].split(None, 1)
            if len(last) > 1:
                ops[-1] = last[0]
                self.mods = last[1]
        self.ops = ops
        self.classify()

    def classify(self):
        op, ops = self.op, self.ops
        R = [regs_of(o) for o in ops]
        self.dst, self.src = set(), set()
        self.kind = 'other'
        self.passes = 0
        self.srcC = set()
        self.srcAB = set()
        self.store_data = set()
        self.is_dpp = ('row_' in self.mods or 'quad_perm' in self.mods or 'wave_' in self.mods
                       or op.endswith('_dpp') or 'row_bcast' in self.mods)
        self.vm = False
        self.lgkm = 0
        self.smem = False
        self.wide_store = False
        if op.startswith('v_mfma') or op.startswith('v_smfmac'):
            self.kind = 'mfma'
            self.passes = 8 if '32x32' in op else 4
            self.dst = R[0]
            if op.startswith('v_smfmac'):
                self.srcC = R[0]
                self.srcAB = R[1] | R[2] | R[3]
            else:
                self.srcC = R[3]
                self.srcAB = R[1] | R[2]
            self.src = self.srcC | self.srcAB
            self.dtok = ops[0]
            self.ctok = ops[0] if op.startswith('v_smfmac') else ops[3]
        elif op.startswith('v_'):
            self.kind = 'valu'
            base = op.replace('_e32', '').replace('_e64', '').replace('_dpp', '').replace('_sdwa', '')
            self.base = base
            if base.startswith('v_cmpx'):
                self.dst = set(EXEC) | R[0]
                self.src = set().union(*R[1:]) if len(R) > 1 else set()
            elif base.startswith('v_cmp'):
                self.dst = R[0]
                self.src = set().union(*R[1:])
            elif base in ('v_permlane32_swap_b32', 'v_permlane16_swap_b32', 'v_swap_b32'):
                self.dst = R[0] | R[1]
                self.src = R[0] | R[1]
            elif base in ('v_add_co_u32', 'v_sub_co_u32', 'v_addc_co_u32', 'v_subb_co_u32', 'v_subrev_co_u32',
                          'v_mad_u64_u32', 'v_div_scale_f32'):
                self.dst = R[0] | R[1]
                self.src = set().union(*R[2:])
            elif base == 'v_nop':
                pass
            else:
                self.dst = R[0]
                self.src = set().union(*R[1:]) if len(R) > 1 else set()
                if base in ('v_fmac_f32', 'v_mac_f32', 'v_pk_fmac_f16', 'v_dot2c_f32_bf16', 'v_writelane_b32',
                            'v_fmac_f64') or self.is_dpp or 'op_sel' in self.mods and False:
                    self.src |= R[0]
                if base == 'v_cndmask_b32' and len(ops) == 3:
                    self.src |= VCC
                if base in ('v_cvt_pk_bf16_f32',):
                    pass
            self.src_all = self.src
            self.trans = base in TRANS
        elif op.startswith('ds_'):
            self.kind = 'ds'
            self.lgkm = 1
            if op.startswith('ds_read') or op.startswith('ds_bpermute') or op.startswith('ds_permute') \
                    or op.startswith('ds_swizzle') or '_rtn' in op:
                self.dst = R[0]
                self.src = set().union(*R[1:])
            else:
                self.src = set().union(*R)
        elif op.startswith('buffer_') or op.startswith('global_'):
            self.kind = 'vmem'
            self.vm = True
            mods = self.mods.split()
            is_lds = 'lds' in mods or op.startswith('global_load_lds')
            if 'load' in op:
                if is_lds:
                    self.src = set().union(*R) | {('s', 124)}
                    self.lds_dma = True
                else:
                    self.dst = R[0]
                    self.src = set().union(*R[1:])
            elif 'store' in op:
                self.src = set().union(*R)
                di = 0 if op.startswith('buffer_') else 1
                self.store_data = R[di]
                self.wide_store = ('x3' in op or 'x4' in op)
            elif 'atomic' in op:
                if 'sc0' in mods:
                    self.dst = R[0]
                    self.src = set().union(*R) if op.startswith('buffer_') else set().union(*R[1:])
                else:
                    self.src = set().union(*R)
            elif op in ('buffer_wbl2', 'buffer_inv'):
                pass
            else:
                raise ValueError(self.text)
        elif op.startswith('s_load') or op.startswith('s_buffer_load') or op in ('s_memtime', 's_memrealtime'):
            self.kind = 'smem'
            self.smem = True
            self.lgkm = 1 if op.endswith('dword') else 2
            self.dst = R[0]
            self.src = set().union(*R[1:]) if len(R) > 1 else set()
        elif op == 's_waitcnt':
            self.kind = 'wait'
            m = re.search(r'vmcnt\((\d+)\)', t_all(self))
            self.w_vm = int(m.group(1)) if m else None
            m = re.search(r'lgkmcnt\((\d+)\)', t_all(self))
            self.w_lgkm = int(m.group(1)) if m else None
        elif op == 's_nop':
            self.kind = 'nop'
            self.n = int(ops[0]) + 1
        elif op.startswith('s_cbranch') or op == 's_branch':
            self.kind = 'branch'
            self.target = ops[0]
            if 'vcc' in op:
                self.src = set(VCC)
            elif 'exec' in op:
                self.src = set(EXEC)
        elif op in ('s_barrier', 's_endpgm', 's_sleep', 's_setprio', 's_sethalt'):
            self.kind = 'sctl'
        elif op.startswith('s_'):
            self.kind = 'salu'
            if op.startswith('s_cmp') or op.startswith('s_bitcmp'):
                self.src = set().union(*R)
            elif op == 's_setreg_b32' or op == 's_setreg_imm32_b32':
                self.src = set().union(*R)
            else:
                self.dst = R[0] if R else set()
                self.src = set().union(*R[1:]) if len(R) > 1 else set()
                if 'saveexec' in op:
                    self.dst |= EXEC
                    self.src |= EXEC
                if op in ('s_addk_i32', 's_mulk_i32', 's_bitset0_b32', 's_bitset1_b32', 's_cmov_b32', 's_cmov_b64'):
                    self.src |= R[0]
        else:
            raise ValueError('unknown op ' + self.text)


def t_all(i):
    return i.text.split(';')[0]


class Label:
    def __init__(self, name):
        self.name = name


class Raw:
    def __init__(self, text):
        self.text = text


def vg(regs):
    return {x for x in regs if x[0] in 'va'}


def sg(regs):
    return {x for x in regs if x[0] == 's'}


def needed_nops(hist, ins):
    need = 0
    dist = 0
    for p in reversed(hist):
        if dist > 24:
            break
        req = 0
        if p.kind == 'valu':
            pv, ps = vg(p.dst), sg(p.dst)
            if ins.kind == 'mfma' and (pv & ins.src):
                req = max(req, 2)
            if ins.kind == 'mfma' and (ps & EXEC):
                req = max(req, 4)
            if ins.kind == 'valu':
                if ins.is_dpp and (pv & vg(ins.src)):
                    req = max(req, 2)
                if ins.is_dpp and (ps & EXEC):
                    req = max(req, 5)
                if ins.base in ('v_permlane32_swap_b32', 'v_permlane16_swap_b32') and (pv & ins.src):
                    req = max(req, 2)
                if ins.base in ('v_permlane32_swap_b32', 'v_permlane16_swap_b32') and (ps & EXEC):
                    req = max(req, 4)
                if ins.base in ('v_readlane_b32', 'v_readfirstlane_b32') and (pv & ins.src):
                    req = max(req, 1)
                if ins.base in ('v_readlane_b32', 'v_readfirstlane_b32', 'v_writelane_b32'):
                    if ps & EXEC:
                        req = max(req, 4)
                    if ins.base != 'v_readfirstlane_b32' and len(ins.ops) > 2 and (ps & regs_of(ins.ops[2])):
                        req = max(req, 4)
                if ps & sg(ins.src):
                    req = max(req, 2)
                if p.trans and not ins.trans and (pv & ins.src):
                    req = max(req, 1)
                if p.trans and ins.trans and (pv & ins.src):
                    req = max(req, 1)
                if ('op_sel' in p.mods or p.op.endswith('_sdwa') or 'dst_sel' in p.mods) and (pv & (ins.src | ins.dst)):
                    req = max(req, 1)
            if ins.kind == 'vmem' and (ps & sg(ins.src)):
                req = max(req, 5)
            if ins.kind in ('vmem', 'ds') and p.trans and (pv & ins.src):
                req = max(req, 1)
            if ins.kind == 'branch' and (ps & ins.src):
                req = max(req, 1)
            if ins.kind == 'salu' and (ps & ins.src):
                req = max(req, 1)
        elif p.kind == 'mfma':
            P = p.passes
            d = p.dst
            if ins.kind == 'mfma':
                if d & ins.srcAB:
                    req = max(req, 8 if P == 4 else 12)
                if d & ins.srcC:
                    same = (ins.ctok == p.dtok and ins.passes == p.passes and ins.op == p.op)
                    req = max(req, 0 if same else (6 if P == 4 else 10))
                elif d & ins.dst:
                    req = max(req, 6 if P == 4 else 10)
            elif ins.kind in ('valu', 'ds', 'vmem'):
                if d & (ins.src | ins.dst):
                    req = max(req, 8 if P == 4 else 12)
                if ins.kind == 'valu' and (p.srcC & ins.dst):
                    req = max(req, 3 if P == 4 else 7)
        elif p.kind == 'vmem':
            if p.wide_store and ins.kind == 'valu' and (p.store_data & ins.dst):
                req = max(req, 2)
            elif p.wide_store and (p.store_data & ins.dst):
                req = max(req, 1)
        elif p.kind == 'ds':
            if p.op.startswith('ds_write') and ('b128' in p.op or 'b96' in p.op) and ins.kind == 'valu' \
                    and (p.src & ins.dst):
                req = max(req, 2)
        elif p.kind == 'salu':
            if ('s', 124) in p.dst and (ins.kind == 'vmem' and getattr(ins, 'lds_dma', False)):
                req = max(req, 1)
            if p.op.startswith('s_setreg') and ins.op.startswith('s_getreg'):
                req = max(req, 2)
        need = max(need, req - dist)
        dist += p.n if p.kind == 'nop' else 1
    return need


class WaitState:
    def __init__(self):
        self.vm = []
        self.lg = []

    def copy(self):
        w = WaitState()
        w.vm = list(self.vm)
        w.lg = list(self.lg)
        return w

    def need(self, ins):
        touch = ins.src | ins.dst
        nv = None
        for i, d in enumerate(self.vm):
            if d & touch:
                n = len(self.vm) - 1 - i
                nv = n if nv is None else min(nv, n)
        nl = None
        has_smem = any(x[2] for x in self.lg)
        for i, (d, c, sm) in enumerate(self.lg):
            if d & touch:
                if has_smem:
                    n = 0
                else:
                    n = sum(x[1] for x in self.lg[i + 1:])
                nl = n if nl is None else min(nl, n)
        return nv, nl

    def apply_wait(self, nv, nl):
        if nv is not None:
            while len(self.vm) > nv:
                self.vm.pop(0)
        if nl is not None:
            if any(x[2] for x in self.lg):
                if nl == 0:
                    self.lg = []
            else:
                while sum(x[1] for x in self.lg) > nl:
                    self.lg.pop(0)

    def issue(self, ins):
        if ins.kind == 'wait':
            self.apply_wait(ins.w_vm, ins.w_lgkm)
        if ins.vm:
            self.vm.append(set(ins.dst))
        if ins.lgkm:
            self.lg.append((set(ins.dst), ins.lgkm, ins.smem))


class Asm:
    def __init__(self):
        self.items = []
        self.uid = 0

    def __call__(self, text, tag=None):
        for line in text.split('\n'):
            line = line.strip()
            if not line or line.startswith(';'):
                if line:
                    self.items.append(Raw('\t' + line))
                continue
            if line.endswith(':'):
                self.items.append(Label(line[:-1]))
                continue
            self.items.append(Instr(line, tag))

    def label(self, name):
        self.items.append(Label(name))

    def raw(self, text):
        self.items.append(Raw(text))

    def new_label(self, base):
        self.uid += 1
        return f'{base}_{self.uid}'

    def _blocks(self):
        idx = {it.name: i for i, it in enumerate(self.items) if isinstance(it, Label)}
        return idx

    def insert_waits(self):
        items = self.items
        idx = self._blocks()
        need_vm = {}
        need_lg = {}

        def sig(w):
            return (tuple(frozenset(d) for d in w.vm), tuple((frozenset(d), c, sm) for d, c, sm in w.lg))

        changed = True
        rounds = 0
        while changed:
            changed = False
            rounds += 1
            assert rounds < 50
            seen = set()
            work = [(e, WaitState()) for e in self.entries()]
            steps = 0
            while work:
                pc, w = work.pop()
                while pc < len(items):
                    it = items[pc]
                    if isinstance(it, Label):
                        k = (pc, sig(w))
                        if k in seen:
                            break
                        seen.add(k)
                        pc += 1
                        continue
                    if isinstance(it, Raw):
                        pc += 1
                        continue
                    steps += 1
                    assert steps < 20_000_000, 'wait analysis exploded'
                    nv, nl = w.need(it)
                    if it.op == 's_barrier' and it.tag == 'nowait':
                        pass
                    cv, cl = need_vm.get(pc), need_lg.get(pc)
                    if nv is not None and (cv is None or nv < cv):
                        need_vm[pc] = cv = nv
                        changed = True
                    if nl is not None and (cl is None or nl < cl):
                        need_lg[pc] = cl = nl
                        changed = True
                    w.apply_wait(cv, cl)
                    w.issue(it)
                    while w.vm and not w.vm[0]:
                        w.vm.pop(0)
                    while w.lg and not w.lg[0][0] and not w.lg[0][2]:
                        w.lg.pop(0)
                    if it.kind == 'branch':
                        tgt = idx[it.target]
                        if it.op == 's_branch':
                            pc = tgt
                            continue
                        work.append((tgt, w.copy()))
                    if it.op == 's_endpgm':
                        break
                    pc += 1
        out = []
        for pc, it in enumerate(items):
            if pc in need_vm or pc in need_lg:
                parts = []
                if pc in need_vm:
                    assert need_vm[pc] <= 63
                    parts.append(f'vmcnt({need_vm[pc]})')
                if pc in need_lg:
                    parts.append(f'lgkmcnt({min(need_lg[pc], 15)})')
                out.append(Instr('s_waitcnt ' + ' '.join(parts) + ' ; auto'))
            out.append(it)
        self.items = out

    def entries(self):
        e = [0]
        for i, it in enumerate(self.items):
            if isinstance(it, Label) and it.name.endswith('_kernel'):
                e.append(i)
        return e

    def insert_nops(self):
        for _round in range(30):
            items = self.items
            idx = self._blocks()
            need = {}
            seen = set()
            work = [(e, ()) for e in self.entries()]
            H = 26
            while work:
                pc, hist = work.pop()
                hist = list(hist)
                while pc < len(items):
                    it = items[pc]
                    if isinstance(it, Label):
                        k = (pc, tuple((x.text if x.kind == 'nop' else id(x)) for x in hist[-H:]))
                        if k in seen:
                            break
                        seen.add(k)
                        pc += 1
                        continue
                    if isinstance(it, Raw):
                        pc += 1
                        continue
                    n = needed_nops(hist, it)
                    if n > 0:
                        need[pc] = max(need.get(pc, 0), n)
                        hist.append(Instr(f's_nop {min(n,16) - 1}'))
                    hist.append(it)
                    if len(hist) > 4 * H:
                        hist = hist[-H:]
                    if it.kind == 'branch':
                        tgt = idx[it.target]
                        if it.op == 's_branch':
                            pc = tgt
                            continue
                        work.append((tgt, tuple(hist[-H:])))
                    if it.op == 's_endpgm':
                        break
                    pc += 1
            if not need:
                return
            out = []
            for pc, it in enumerate(items):
                if pc in need:
                    n = need[pc]
                    while n > 0:
                        k = min(n, 16)
                        out.append(Instr(f's_nop {k - 1} ; hz'))
                        n -= k
                out.append(it)
            self.items = out
        raise RuntimeError('nop insertion did not converge')

    def finalize(self):
        self.insert_waits()
        self.insert_nops()

    def text(self):
        o = []
        for it in self.items:
            if isinstance(it, Label):
                o.append(it.name + ':')
            elif isinstance(it, Raw):
                o.append(it.text)
            else:
                o.append('\t' + it.text)
        return '\n'.join(o) + '\n'

    def count(self):
        return sum(1 for it in self.items if isinstance(it, Instr))
```

```python
from asmlib import Asm, v, a, s, r
from layout import *
import struct, math


def f2u(x):
    return struct.unpack('<I', struct.pack('<f', x))[0]


SC_L2E = f2u(128 ** -0.5 * math.log2(math.e))
NEG_RAW = f2u(-1e9 * math.sqrt(128.0))

SRD_WS = 8
S_MASK = 56
S_A1, S_A2, S_A3, S_A4, S_A5 = 16, 17, 18, 19, 20
S_SC = 21

V_LANE = 0
V_QA = 1
V_KMA = 2
V_VTA = 3
V_VMA = 4
V_LW = 5
V_LR = 6
V_OA = 10
V_T = 11
QF = 16
KF = 48
KMF = 80
VTF = 112
VMF = 144
SS = 160
SM = 176
OA = 192


def emit_attn_setup(A, s_wave, lds_base=0):
    t0, t1, t2 = V_T, V_T + 1, V_T + 2
    A(f'''
    v_and_b32 v{t0}, 31, v{V_LANE}
    v_lshrrev_b32 v{t1}, 5, v{V_LANE}
    v_lshlrev_b32 v{t2}, 4, v{t1}
    v_lshl_add_u32 v{V_QA}, v{t0}, 13, v{t2}
    v_lshl_add_u32 v{V_VTA}, v{t0}, 12, v{t2}
    v_lshl_add_u32 v{V_VMA}, v{t0}, 5, v{t2}
    v_and_b32 v{V_KMA}, 7, v{t0}
    v_lshl_add_u32 v{V_KMA}, v{V_KMA}, 8, v{t2}
    s_lshl_b32 s{S_A1}, s{s_wave}, 13
    s_add_u32 s{S_A1}, s{S_A1}, {lds_base}
    v_and_b32 v{t2}, 15, v{t0}
    v_xor_b32 v{t2}, v{t2}, v{t1}
    v_lshlrev_b32 v{t2}, 4, v{t2}
    v_lshl_add_u32 v{t2}, v{t0}, 8, v{t2}
    v_add_u32 v{V_LW}, s{S_A1}, v{t2}
    v_lshlrev_b32 v{t1}, 2, v{t1}
    v_sub_u32 v{t2}, v{t0}, v{t1}
    ''')
    for i in range(16):
        A(f'v_cmp_le_i32 s[{S_MASK+2*i}:{S_MASK+2*i+1}], {8*(i>>2)+(i&3)}, v{t2}')
    A(f'''
    v_lshrrev_b32 v{t0}, 4, v{V_LANE}
    v_and_b32 v{t1}, 15, v{V_LANE}
    v_xor_b32 v{t2}, v{t0}, v{t1}
    v_lshlrev_b32 v{t2}, 4, v{t2}
    v_lshl_add_u32 v{t2}, v{t0}, 8, v{t2}
    v_add_u32 v{V_LR}, s{S_A1}, v{t2}
    v_xor_b32 v{V_LR+1}, 64, v{V_LR}
    v_xor_b32 v{V_LR+2}, 128, v{V_LR}
    v_xor_b32 v{V_LR+3}, 192, v{V_LR}
    v_lshlrev_b32 v{t1}, 4, v{t1}
    v_lshl_add_u32 v{V_OA}, v{t0}, 13, v{t1}
    s_mov_b32 s{S_SC}, {SC_L2E:#x}
    ''')


def emit_attn_task(A, s_seg, s_head, sc1_in=False, sc1_out=False, poll=None):
    WS = f's[{SRD_WS}:{SRD_WS+3}]'
    si = ' sc1' if sc1_in else ''
    so = ' sc1' if sc1_out else ''
    t0, t1, t2, t3 = V_T, V_T + 1, V_T + 2, V_T + 3
    A(f'''
    s_lshl_b32 s{S_A1}, s{s_seg}, 18
    s_lshl_b32 s{S_A2}, s{s_head}, 8
    s_add_u32 s{S_A1}, s{S_A1}, s{S_A2}
    s_add_u32 s{S_A2}, s{S_A1}, {WS_K}
    s_add_u32 s{S_A5}, s{S_A1}, {WS_O}
    s_add_u32 s{S_A1}, s{S_A1}, {WS_Q}
    s_lshl_b32 s{S_A3}, s{s_head}, 19
    s_lshl_b32 s{S_A4}, s{s_seg}, 6
    s_add_u32 s{S_A3}, s{S_A3}, s{S_A4}
    s_add_u32 s{S_A3}, s{S_A3}, {WS_VT}
    ''')
    for ks in range(8):
        A(f'buffer_load_dwordx4 {v(KF+4*ks,4)}, v{V_QA}, {WS}, s{S_A2} offen offset:{32*ks}{si}')
        A(f'buffer_load_dwordx4 {v(QF+4*ks,4)}, v{V_QA}, {WS}, s{S_A1} offen offset:{32*ks}{si}')
    for eb in range(4):
        for kb in range(2):
            A(f'buffer_load_dwordx4 {v(VTF+8*eb+4*kb,4)}, v{V_VTA}, {WS}, s{S_A3} offen offset:{32*kb}{si}')
        if eb < 3:
            A(f's_add_u32 s{S_A3}, s{S_A3}, {32*4096}')
    for ks in range(8):
        cin = '0' if ks == 0 else v(SS, 16)
        A(f'v_mfma_f32_32x32x16_bf16 {v(SS,16)}, {v(KF+4*ks,4)}, {v(QF+4*ks,4)}, {cin}')
    if poll:
        poll()
    A(f'''
    s_lshl_b32 s{S_A1}, s{s_seg}, 16
    s_lshl_b32 s{S_A2}, s{s_head}, 11
    s_add_u32 s{S_A1}, s{S_A1}, s{S_A2}
    s_lshl_b32 s{S_A2}, s{S_A1}, 1
    s_add_u32 s{S_A1}, s{S_A1}, {WS_KM}
    s_add_u32 s{S_A2}, s{S_A2}, {WS_VM}
    ''')
    for ks in range(8):
        A(f'buffer_load_dwordx4 {v(KMF+4*ks,4)}, v{V_KMA}, {WS}, s{S_A1} offen offset:{32*ks}{si}')
    for eb in range(4):
        A(f'buffer_load_dwordx4 {v(VMF+4*eb,4)}, v{V_VMA}, {WS}, s{S_A2} offen offset:{1024*eb}{si}')
    A(f'v_mov_b32 v{t0}, {NEG_RAW:#x}')
    for i in range(16):
        A(f'v_cndmask_b32 v{SS+i}, v{t0}, v{SS+i}, s[{S_MASK+2*i}:{S_MASK+2*i+1}]')
    m = t1
    A(f'v_max3_f32 v{m}, v{SS}, v{SS+1}, v{SS+2}')
    for i in range(3, 15, 2):
        A(f'v_max3_f32 v{m}, v{m}, v{SS+i}, v{SS+i+1}')
    A(f'v_max_f32 v{m}, v{m}, v{SS+15}')
    for ks in range(8):
        cin = '0' if ks == 0 else v(SM, 16)
        A(f'v_mfma_f32_32x32x16_bf16 {v(SM,16)}, {v(KMF+4*ks,4)}, {v(QF+4*ks,4)}, {cin}')
    A(f'''
    v_max3_f32 v{m}, v{m}, v{SM}, v{SM+1}
    v_max3_f32 v{m}, v{m}, v{SM+2}, v{SM+3}
    v_mov_b32 v{t2}, v{m}
    v_permlane32_swap_b32 v{m}, v{t2}
    v_max_f32 v{m}, v{m}, v{t2}
    v_mul_f32 v{m}, s{S_SC}, v{m}
    ''')
    vals = [SM + i for i in range(4)] + [SS + i for i in range(16)]
    for x in vals:
        A(f'v_fma_f32 v{x}, v{x}, s{S_SC}, -v{m}')
    for x in vals:
        A(f'v_exp_f32 v{x}, v{x}')
    l = t1
    A(f'v_add_f32 v{l}, v{vals[0]}, v{vals[1]}')
    A(f'v_add_f32 v{t2}, v{vals[2]}, v{vals[3]}')
    for i in range(4, 20, 2):
        A(f'v_add_f32 v{l}, v{l}, v{vals[i]}')
        A(f'v_add_f32 v{t2}, v{t2}, v{vals[i+1]}')
    A(f'''
    v_add_f32 v{l}, v{l}, v{t2}
    v_mov_b32 v{t2}, v{l}
    v_permlane32_swap_b32 v{l}, v{t2}
    v_add_f32 v{l}, v{l}, v{t2}
    v_rcp_f32 v{l}, v{l}
    ''')
    PM = KF
    PS = KF + 4
    A(f'''
    v_cvt_pk_bf16_f32 v{PM}, v{SM}, v{SM+1}
    v_cvt_pk_bf16_f32 v{PM+1}, v{SM+2}, v{SM+3}
    v_mov_b32 v{PM+2}, v{PM}
    v_mov_b32 v{PM+3}, v{PM+1}
    v_permlane32_swap_b32 v{PM}, v{PM+2}
    v_permlane32_swap_b32 v{PM+1}, v{PM+3}
    ''')
    for kb in range(2):
        R = PS + 4 * kb
        b = SS + 8 * kb
        A(f'''
        v_cvt_pk_bf16_f32 v{R}, v{b}, v{b+1}
        v_cvt_pk_bf16_f32 v{R+1}, v{b+2}, v{b+3}
        v_cvt_pk_bf16_f32 v{R+2}, v{b+4}, v{b+5}
        v_cvt_pk_bf16_f32 v{R+3}, v{b+6}, v{b+7}
        v_permlane32_swap_b32 v{R}, v{R+2}
        v_permlane32_swap_b32 v{R+1}, v{R+3}
        ''')
    for eb in range(4):
        acc = v(OA + 16 * eb, 16)
        A(f'v_mfma_f32_32x32x16_bf16 {acc}, {v(VTF+8*eb,4)}, {v(PS,4)}, 0')
        A(f'v_mfma_f32_32x32x16_bf16 {acc}, {v(VTF+8*eb+4,4)}, {v(PS+4,4)}, {acc}')
        A(f'v_mfma_f32_32x32x16_bf16 {acc}, {v(VMF+4*eb,4)}, {v(PM,4)}, {acc}')
    for eb in range(4):
        b0 = OA + 16 * eb
        for i in range(16):
            A(f'v_mul_f32 v{b0+i}, v{b0+i}, v{l}')
        for u in range(2):
            b = b0 + 8 * u
            A(f'''
            v_cvt_pk_bf16_f32 v{b}, v{b}, v{b+1}
            v_cvt_pk_bf16_f32 v{b+1}, v{b+2}, v{b+3}
            v_cvt_pk_bf16_f32 v{b+2}, v{b+4}, v{b+5}
            v_cvt_pk_bf16_f32 v{b+3}, v{b+6}, v{b+7}
            v_permlane32_swap_b32 v{b}, v{b+2}
            v_permlane32_swap_b32 v{b+1}, v{b+3}
            v_xor_b32 v{t2}, {(4*eb+2*u)*16}, v{V_LW}
            ds_write_b128 v{t2}, {v(b,4)}
            ''')
    A('s_waitcnt lgkmcnt(0)')
    for j in range(8):
        A(f'ds_read_b128 {v(QF+4*j,4)}, v{V_LR+(j&3)} offset:{1024*j}')
    for j in range(8):
        A(f'buffer_store_dwordx4 {v(QF+4*j,4)}, v{V_OA}, {WS}, s{S_A5} offen{so}')
        if j < 7:
            A(f's_add_u32 s{S_A5}, s{S_A5}, {4*8192}')
```

```python
from asmlib import Asm, v, a, s, r
from layout import *

L_M = 0
L_S = 9216
L_SM = 13312
L_O = 14336
L_W = 16384
HALF = 73728
LDS_BYTES = 163840

SCALE_LOG2E = 0x3E0293EE
import struct, math
def f2u(x):
    return struct.unpack('<I', struct.pack('<f', x))[0]
SCALE_LOG2E = f2u(128 ** -0.5 * math.log2(math.e))

QK = [('qk', t, kb) for kb in range(18) for t in range(2)]
VV = [('v', t, blk) for blk in range(9) for t in range(2)]
WO = [('of', 0, blk) for blk in range(2)] + [('o', p, kb) for p in range(4) for kb in range(4)]


class ChainCfg:
    def __init__(self):
        self.lds_ops = [('v', 1, blk) for blk in range(9)] + \
                       [('of', 0, 1)] + [('o', p, kb) for p in range(4) for kb in (2, 3)]
        self.stamps = False
        self.norearm = False
        self.nsteps = 64


S_H, S_W, S_STEP, S_BUD, S_T0 = 3, 4, 5, 6, 7
SRD_WS, SRD_X = 8, 12
S_P0, S_P1 = 16, 18
S_MCUR, S_MNXT, S_MTHD = 20, 21, 22
S_PART, S_KOFF, S_VOFF, S_KMOFF, S_VMOFF = 23, 24, 25, 26, 27
S_T1, S_T2, S_T3, S_T4 = 28, 29, 30, 31
S_MLO, S_MHI, S_MSM = 32, 34, 36
S_SC = 38
S_TILE = 39
S_ISRED = 40
S_FAST = 41
S_DBG = 44
S_TS = 48
S_STAMP = 50
S_T5, S_T6 = 52, 53

V_TID = 0
V_IDX = 1
V_MA0, V_MA1, V_MAF = 2, 3, 4
V_SW, V_SMW, V_L16, V_SMR = 5, 6, 7, 8
V_OW, V_OR, V_ORF = 9, 10, 11
V_WL = 12
V_KA, V_VA = 13, 14
V_PUBD, V_PUBF = 15, 16
V_RL, V_RP = 17, 18
V_KM, V_VM = 19, 20
V_P16, V_P4 = 21, 22
V_SP0 = 23
KS = 24
VS = 32
T = 40
NWORK = 80


def slot_reg(i):
    return NWORK + 8 * i


def emit_chain(A: Asm, cfg: ChainCfg, name='chain_kernel'):
    L = lambda x: f'{name}_{x}'
    lds_ops = list(cfg.lds_ops)
    assert len(lds_ops) == 18
    A.label(name)
    A(f'''
    s_and_b32 s{S_T0}, s2, 7
    s_cmp_lg_u32 s{S_T0}, 0
    s_cbranch_scc1 {L('exit')}
    s_lshr_b32 s{S_H}, s2, 3
    s_cmp_ge_u32 s{S_H}, 32
    s_cbranch_scc1 {L('exit')}
    s_load_dwordx2 s[{SRD_WS}:{SRD_WS+1}], s[0:1], {KA_WS}
    s_load_dwordx2 s[{S_DBG}:{S_DBG+1}], s[0:1], {KA_DBG}
    v_lshrrev_b32 v1, 6, v0
    v_readfirstlane_b32 s{S_W}, v1
    v_and_b32 v{V_TID}, 63, v0
    s_mov_b32 s{SRD_WS+2}, {WS_SIZE}
    s_mov_b32 s{SRD_WS+3}, 0x20000
    s_mov_b32 s{S_DBG+2}, 256
    s_mov_b32 s{S_DBG+3}, 0x20000
    s_mov_b32 s{SRD_X+3}, 0x20000
    s_mov_b32 s{S_BUD}, 400000
    s_mov_b32 s{S_MLO}, 0x00ff00ff
    s_mov_b32 s{S_MLO+1}, 0x00ff00ff
    s_mov_b32 s{S_MHI}, 0xff00ff00
    s_mov_b32 s{S_MHI+1}, 0xff00ff00
    s_mov_b32 s{S_MSM}, 0
    s_mov_b32 s{S_MSM+1}, 0x00ff00ff
    s_mov_b32 s{S_SC}, {SCALE_LOG2E:#x}
    ''')
    A(f'''
    s_getreg_b32 s{S_T0}, hwreg(HW_REG_XCC_ID, 0, 4)
    s_lshl_b32 s{S_T0}, 1, s{S_T0}
    s_waitcnt lgkmcnt(0)
    s_cmp_lg_u32 s{S_W}, 0
    s_cbranch_scc1 {L('noatom')}
    s_mov_b64 exec, 1
    v_mov_b32 v2, s{S_T0}
    v_mov_b32 v3, 0
    buffer_atomic_or v2, v3, s[{S_DBG}:{S_DBG+3}], 0 offen sc1
    s_mov_b64 exec, -1
    ''')
    A.label(L('noatom'))
    A(f'''
    s_mul_i32 s{S_T1}, s{S_W}, 2304
    v_lshlrev_b32 v1, 4, v{V_TID}
    v_add_u32 v1, s{S_T1}, v1
    v_lshlrev_b32 v2, 2, v{V_TID}
    v_add_u32 v2, s{S_T1}, v2
    v_mov_b32 v4, -1
    v_mov_b32 v5, -1
    v_mov_b32 v6, -1
    v_mov_b32 v7, -1
    s_mul_i32 s{S_T1}, s{S_H}, 9216
    s_add_u32 s{S_T1}, s{S_T1}, {WS_PART}
    s_add_u32 s{S_T2}, s{S_T1}, {PART_SLOT}
    ''')
    WSB = f's[{SRD_WS}:{SRD_WS+3}]'
    for sr in (S_T1, S_T2):
        A(f'''
        buffer_store_dwordx4 v[4:7], v1, {WSB}, s{sr} offen sc1
        buffer_store_dwordx4 v[4:7], v1, {WSB}, s{sr} offen offset:1024 sc1
        buffer_store_dword v4, v2, {WSB}, s{sr} offen offset:2048 sc1
        ''')
    A(f'''
    s_cmp_ge_u32 s{S_H}, 3
    s_cbranch_scc1 {L('noarm')}
    s_lshl_b32 s{S_T1}, s{S_H}, 14
    s_add_u32 s{S_T1}, s{S_T1}, {WS_MEM}
    buffer_store_dwordx4 v[4:7], v1, {WSB}, s{S_T1} offen sc1
    buffer_store_dwordx4 v[4:7], v1, {WSB}, s{S_T1} offen offset:1024 sc1
    buffer_store_dword v4, v2, {WSB}, s{S_T1} offen offset:2048 sc1
    ''')
    A.label(L('noarm'))

    lane = V_TID
    G, C = T + 0, T + 1
    X0, X1, X2, X3 = T + 2, T + 3, T + 4, T + 5
    A(f'''
    v_lshrrev_b32 v{G}, 4, v{lane}
    v_and_b32 v{C}, 15, v{lane}
    ''')

    free_final = list(range(54))
    work_slots = [8 + 8 * i for i in range(9)]
    loc = {}
    early = [op for op in lds_ops if op[0] in ('qk', 'v')]
    n_early = len(early)
    res_early = [op for op in QK + VV if op not in lds_ops]
    for op in res_early:
        loc[op] = slot_reg(free_final.pop(0))
    wo_final = free_final[:]
    assert len(wo_final) == n_early
    park_free = list(work_slots) + [slot_reg(i) for i in wo_final]
    for op in early:
        loc[op] = park_free.pop(0)
    assert len(park_free) == 9
    PA, PB, PC, PD, PE, PF, PG = 1, 2, 3, 4, 5, 6, 7

    def stage_qkv(ka_off, lds_base, row0, nrows, fmode, mat):
        A(f'''
        s_load_dwordx2 s[{SRD_X}:{SRD_X+1}], s[0:1], {ka_off}
        s_mov_b32 s{SRD_X+2}, {576*8192}
        v_lshrrev_b32 v{PA}, 4, v{lane}
        v_lshlrev_b32 v{PA}, 13, v{PA}
        v_and_b32 v{PB}, 15, v{lane}
        s_lshl_b32 s{S_T1}, s{S_H}, 8
        s_waitcnt lgkmcnt(0)
        ''')
        fs = sorted(set(fmode(k, mat) for k in range(nrows // 4)))
        regs = {}
        for i, f in enumerate(fs):
            reg = [PC, PD, PE, PF][i]
            regs[f] = reg
            A(f'''
            v_xor_b32 v{reg}, {f}, v{PB}
            v_lshlrev_b32 v{reg}, 4, v{reg}
            v_add_u32 v{reg}, v{reg}, v{PA}
            ''')
        ninst = nrows // 4
        assert ninst % 4 == 0 or True
        nm = ninst // 4
        assert ninst % 4 == 0
        for j in range((nm + 3) // 4):
            guard = (4 * j + 3 >= nm)
            if guard:
                lab = A.new_label(L('stg'))
                A(f'''
                s_add_u32 s{S_T2}, s{S_W}, {4*j}
                s_cmp_ge_u32 s{S_T2}, {nm}
                s_cbranch_scc1 {lab}
                ''')
            A(f'''
            s_add_u32 s{S_T2}, s{S_W}, {4*j}
            s_lshl_b32 s{S_T3}, s{S_T2}, 17
            s_add_u32 s{S_T3}, s{S_T3}, s{S_T1}
            s_add_u32 s{S_T3}, s{S_T3}, {row0*8192}
            s_lshl_b32 s{S_T4}, s{S_T2}, 12
            s_add_u32 s{S_T4}, s{S_T4}, {lds_base}
            ''')
            for i in range(4):
                f = fmode(i, mat)
                A(f'''
                s_mov_b32 m0, s{S_T4}
                buffer_load_dwordx4 v{regs[f]}, s[{SRD_X}:{SRD_X+3}], s{S_T3} offen lds
                ''')
                if i < 3:
                    A(f'''
                    s_add_u32 s{S_T3}, s{S_T3}, {4*8192}
                    s_add_u32 s{S_T4}, s{S_T4}, 1024
                    ''')
            if guard:
                A.label(lab)

    def sync_stage():
        A('s_waitcnt vmcnt(0)')
        A('s_barrier')

    def done_reads():
        A('s_waitcnt lgkmcnt(0)')
        A('s_barrier')

    def tr_fields():
        pass

    fq = lambda k, mat: 8 * (k & 1) + 4 * mat
    for h2 in range(2):
        stage_qkv(KA_WQ, L_W, 288 * h2, 288, fq, 0)
        stage_qkv(KA_WK, L_W + HALF, 288 * h2, 288, fq, 1)
        sync_stage()
        if h2 == 0:
            A(f'''
            s_cmp_lg_u32 s{S_W}, 0
            s_cbranch_scc1 {L('nocnt')}
            s_mov_b64 exec, 1
            v_mov_b32 v2, 1
            v_mov_b32 v3, 0
            buffer_atomic_add v2, v3, s[{S_DBG}:{S_DBG+3}], 0 offen offset:4 sc1
            s_mov_b64 exec, -1
            ''')
            A.label(L('nocnt'))
        A(f'''
        v_lshrrev_b32 v{PA}, 4, v{lane}
        v_and_b32 v{PB}, 1, v{PA}
        v_lshrrev_b32 v{PA}, 1, v{PA}
        v_lshlrev_b32 v{PA}, 3, v{PA}
        v_lshl_add_u32 v{PA}, v{PB}, 2, v{PA}
        v_lshrrev_b32 v{PC}, 2, v{lane}
        v_and_b32 v{PD}, 1, v{PC}
        v_add_u32 v{PA}, v{PA}, v{PD}
        v_lshlrev_b32 v{PA}, 8, v{PA}
        v_bfe_u32 v{PC}, v{lane}, 3, 1
        v_mul_u32_u24 v{PD}, {HALF}, v{PC}
        v_add_u32 v{PA}, v{PA}, v{PD}
        v_lshlrev_b32 v{PB}, 3, v{PB}
        v_lshl_add_u32 v{PB}, v{PC}, 2, v{PB}
        v_and_b32 v{PC}, 3, v{lane}
        s_lshl_b32 s{S_T1}, s{S_W}, 2
        v_add_u32 v{PC}, s{S_T1}, v{PC}
        v_xor_b32 v{PC}, v{PC}, v{PB}
        v_lshl_add_u32 v{PA}, v{PC}, 4, v{PA}
        v_add_u32 v{PA}, {L_W}, v{PA}
        ''')
        for kbl in range(9):
            kb = 9 * h2 + kbl
            if kbl == 5:
                A(f'v_add_u32 v{PA}, {5*8192}, v{PA}')
            ob = (kbl - 5 if kbl >= 5 else kbl) * 8192
            for t in range(2):
                dst = loc[('qk', t, kb)]
                for k in range(4):
                    off = ob + (16 * (k >> 1) + 2 * (k & 1)) * 256 + 8 * t
                    A(f'ds_read_b64_tr_b16 {r(dst + 2*k, 2)}, v{PA} offset:{off}')
        done_reads()

    fv = lambda k, mat: 4 * (k & 3)
    stage_qkv(KA_WV, L_W, 0, 576, fv, 0)
    sync_stage()
    A(f'''
    v_lshrrev_b32 v{PA}, 4, v{lane}
    v_and_b32 v{PB}, 1, v{PA}
    v_lshrrev_b32 v{PA}, 1, v{PA}
    v_lshlrev_b32 v{PA}, 4, v{PA}
    v_lshl_add_u32 v{PA}, v{PB}, 2, v{PA}
    v_bfe_u32 v{PD}, v{lane}, 2, 1
    v_add_u32 v{PA}, v{PA}, v{PD}
    v_bfe_u32 v{PC}, v{lane}, 3, 1
    v_lshl_add_u32 v{PA}, v{PC}, 3, v{PA}
    v_lshlrev_b32 v{PA}, 8, v{PA}
    v_lshl_add_u32 v{PB}, v{PC}, 1, v{PB}
    v_lshlrev_b32 v{PB}, 2, v{PB}
    v_and_b32 v{PC}, 3, v{lane}
    s_lshl_b32 s{S_T1}, s{S_W}, 2
    v_add_u32 v{PC}, s{S_T1}, v{PC}
    v_xor_b32 v{PC}, v{PC}, v{PB}
    v_lshl_add_u32 v{PA}, v{PC}, 4, v{PA}
    v_add_u32 v{PA}, {L_W}, v{PA}
    ''')
    for blk in range(9):
        if blk in (3, 6):
            A(f'v_add_u32 v{PA}, {3*16384}, v{PA}')
        ob = (blk % 3) * 16384
        for t in range(2):
            dst = loc[('v', t, blk)]
            for k in range(4):
                off = ob + (32 * (k >> 1) + 2 * (k & 1)) * 256 + 8 * t
                A(f'ds_read_b64_tr_b16 {r(dst + 2*k, 2)}, v{PA} offset:{off}')
    done_reads()

    A(f'''
    s_load_dwordx2 s[{SRD_X}:{SRD_X+1}], s[0:1], {KA_WO}
    s_mov_b32 s{SRD_X+2}, {32*147456}
    s_mul_i32 s{S_T1}, s{S_H}, 147456
    s_waitcnt lgkmcnt(0)
    ''')
    for j in range(36):
        A(f'''
        s_add_u32 s{S_T2}, s{S_W}, {4*j}
        s_lshl_b32 s{S_T3}, s{S_T2}, 6
        v_add_u32 v{PA}, s{S_T3}, v{lane}
        v_mul_u32_u24 v{PB}, 58255, v{PA}
        v_lshrrev_b32 v{PB}, 22, v{PB}
        v_and_b32 v{PC}, 4, v{PB}
        v_and_b32 v{PB}, 8, v{PB}
        v_lshrrev_b32 v{PB}, 2, v{PB}
        v_or_b32 v{PB}, v{PB}, v{PC}
        v_xor_b32 v{PA}, v{PA}, v{PB}
        v_lshlrev_b32 v{PA}, 4, v{PA}
        s_lshl_b32 s{S_T4}, s{S_T2}, 10
        s_add_u32 s{S_T4}, s{S_T4}, {L_W}
        s_mov_b32 m0, s{S_T4}
        buffer_load_dwordx4 v{PA}, s[{SRD_X}:{SRD_X+3}], s{S_T1} offen lds
        ''')
    sync_stage()
    def wo_addr_dup(p):
        A(f'''
        v_lshrrev_b32 v{PA}, 4, v{lane}
        v_and_b32 v{PB}, 1, v{PA}
        v_lshrrev_b32 v{PA}, 1, v{PA}
        v_lshlrev_b32 v{PC}, 1, v{PA}
        v_lshl_add_u32 v{PC}, v{PB}, 2, v{PC}
        v_lshlrev_b32 v{PA}, 3, v{PA}
        v_lshl_add_u32 v{PA}, v{PB}, 2, v{PA}
        v_bfe_u32 v{PD}, v{lane}, 2, 1
        v_add_u32 v{PA}, v{PA}, v{PD}
        v_mul_u32_u24 v{PA}, 1152, v{PA}
        s_mul_i32 s{S_T1}, s{S_W}, 18
        s_add_u32 s{S_T1}, s{S_T1}, {2 + 4*p}
        v_bfe_u32 v{PD}, v{lane}, 3, 1
        v_lshlrev_b32 v{PD}, 1, v{PD}
        v_bfe_u32 v{PB}, v{lane}, 1, 1
        v_add3_u32 v{PD}, v{PD}, v{PB}, s{S_T1}
        v_xor_b32 v{PD}, v{PD}, v{PC}
        v_lshl_add_u32 v{PA}, v{PD}, 4, v{PA}
        v_and_b32 v{PB}, 1, v{lane}
        v_lshl_add_u32 v{PA}, v{PB}, 3, v{PA}
        v_add_u32 v{PA}, {L_W}, v{PA}
        ''')
    def wo_addr_fold():
        A(f'''
        v_lshrrev_b32 v{PA}, 4, v{lane}
        v_and_b32 v{PB}, 1, v{PA}
        v_lshrrev_b32 v{PA}, 1, v{PA}
        v_lshlrev_b32 v{PA}, 4, v{PA}
        v_lshl_add_u32 v{PA}, v{PB}, 2, v{PA}
        v_bfe_u32 v{PD}, v{lane}, 2, 1
        v_add_u32 v{PA}, v{PA}, v{PD}
        v_bfe_u32 v{PD}, v{lane}, 3, 1
        v_lshl_add_u32 v{PA}, v{PD}, 3, v{PA}
        v_mul_u32_u24 v{PA}, 1152, v{PA}
        v_lshlrev_b32 v{PC}, 1, v{PD}
        v_lshl_add_u32 v{PC}, v{PB}, 2, v{PC}
        s_mul_i32 s{S_T1}, s{S_W}, 18
        v_bfe_u32 v{PB}, v{lane}, 1, 1
        v_add_u32 v{PD}, s{S_T1}, v{PB}
        v_xor_b32 v{PD}, v{PD}, v{PC}
        v_lshl_add_u32 v{PA}, v{PD}, 4, v{PA}
        v_and_b32 v{PB}, 1, v{lane}
        v_lshl_add_u32 v{PA}, v{PB}, 3, v{PA}
        v_add_u32 v{PA}, {L_W}, v{PA}
        ''')

    def wo_read(op):
        dst = loc[op]
        if op[0] == 'o':
            _, p, kb = op
            for k in range(4):
                e = 32 * kb + 16 * (k >> 1) + 2 * (k & 1)
                off = e * 1152
                reg = PA
                if off > 65535:
                    A(f'v_add_u32 v{PE}, {64*1152}, v{PA}')
                    off -= 64 * 1152
                    reg = PE
                A(f'ds_read_b64_tr_b16 {r(dst + 2*k, 2)}, v{reg} offset:{off}')
        else:
            _, _, blk = op
            for k in range(4):
                e = 64 * blk + 32 * (k >> 1) + 2 * (k & 1)
                off = e * 1152
                reg = PA
                if off > 65535:
                    A(f'v_add_u32 v{PE}, {64*1152}, v{PA}')
                    off -= 64 * 1152
                    reg = PE
                A(f'ds_read_b64_tr_b16 {r(dst + 2*k, 2)}, v{reg} offset:{off}')

    D1 = [('of', 0, 1)] + [('o', p, kb) for p in range(4) for kb in (2, 3)]
    D0 = [('of', 0, 0)] + [('o', p, kb) for p in range(4) for kb in (0, 1)]
    wo_final_regs = [slot_reg(i) for i in wo_final]
    free = list(park_free)
    def take(op):
        if op in lds_ops:
            cand = [x for x in free if x not in wo_final_regs] or free
        else:
            cand = [x for x in free if x in wo_final_regs]
        x = cand[0]
        free.remove(x)
        loc[op] = x
    for op in sorted(D1, key=lambda o: o in lds_ops):
        take(op)
    def read_group(ops):
        cur = None
        for op in ops:
            key = ('o', op[1]) if op[0] == 'o' else ('of',)
            if key != cur:
                if op[0] == 'o':
                    wo_addr_dup(op[1])
                else:
                    wo_addr_fold()
                cur = key
            wo_read(op)
    read_group(D1)
    done_reads()
    parked = [op for op in lds_ops if op in loc]
    parked.sort(key=lambda o: (loc[o] not in wo_final_regs))
    first = parked[:9]
    ldsloc = {}
    A(f'''
    s_mul_i32 s{S_T1}, s{S_W}, 18432
    s_add_u32 s{S_T1}, s{S_T1}, {L_W}
    v_lshlrev_b32 v{PG}, 4, v{lane}
    v_add_u32 v{PG}, s{S_T1}, v{PG}
    v_add_u32 v{PF}, {HALF}, v{PG}
    ''')
    def flush(ops, half):
        for i, op in enumerate(ops):
            ldsloc[op] = (half, i * 2048)
            reg = PF if half else PG
            src = loc[op]
            for q in range(2):
                A(f'ds_write_b128 v{reg}, {r(src + 4*q, 4)} offset:{i*2048 + q*1024}')
            free.append(src)
    flush(first, 1)
    for op in sorted(D0, key=lambda o: o in lds_ops):
        take(op)
    A('s_waitcnt lgkmcnt(0)')
    read_group(D0)
    done_reads()
    rest = [op for op in lds_ops if op not in ldsloc]
    assert len(rest) == 9
    A(f'''
    s_mul_i32 s{S_T1}, s{S_W}, 18432
    s_add_u32 s{S_T1}, s{S_T1}, {L_W}
    v_lshlrev_b32 v{PG}, 4, v{lane}
    v_add_u32 v{PG}, s{S_T1}, v{PG}
    ''')
    flush(rest, 0)
    A('s_waitcnt lgkmcnt(0)')
    for op in QK + VV + WO:
        if op not in lds_ops:
            assert loc[op] >= NWORK, op

    g_, c_, x0, x1, x2 = T, T + 1, T + 2, T + 3, T + 4
    A(f'''
    v_mov_b32 v{V_WL}, v{PG}
    v_lshrrev_b32 v{g_}, 4, v{lane}
    v_and_b32 v{c_}, 15, v{lane}
    v_lshlrev_b32 v{V_L16}, 4, v{lane}
    v_mov_b32 v{x0}, 0x44444444
    v_mov_b32 v{x1}, 0xeeeeeeee
    v_cmp_gt_u32 vcc, 8, v{c_}
    v_cndmask_b32 v{V_IDX}, v{x1}, v{x0}, vcc
    ; r = c&7
    v_and_b32 v{x0}, 7, v{c_}
    v_mul_u32_u24 v{x1}, 1152, v{x0}
    v_and_b32 v{x0}, 6, v{x0}
    v_xor_b32 v{x2}, v{g_}, v{x0}
    v_lshl_add_u32 v{V_MA0}, v{x2}, 4, v{x1}
    v_xor_b32 v{V_MA1}, 64, v{V_MA0}
    v_lshrrev_b32 v{x2}, 3, v{c_}
    v_lshl_add_u32 v{x2}, v{g_}, 1, v{x2}
    v_xor_b32 v{x2}, v{x2}, v{x0}
    v_lshl_add_u32 v{V_MAF}, v{x2}, 4, v{x1}
    s_lshl_b32 s{S_T1}, s{S_W}, 10
    s_add_u32 s{S_T1}, s{S_T1}, {L_S}
    v_add_u32 v{V_SW}, s{S_T1}, v{V_L16}
    v_and_b32 v{x2}, 1, v{g_}
    v_lshlrev_b32 v{x2}, 5, v{x2}
    v_add_u32 v{x2}, v{x2}, v{c_}
    v_lshlrev_b32 v{x2}, 4, v{x2}
    s_lshl_b32 s{S_T1}, s{S_W}, 2
    s_add_u32 s{S_T1}, s{S_T1}, {L_SM}
    v_add_u32 v{V_SMW}, s{S_T1}, v{x2}
    v_and_b32 v{x2}, 1, v{g_}
    v_lshlrev_b32 v{x2}, 2, v{x2}
    v_lshrrev_b32 v{x1}, 1, v{g_}
    v_lshl_add_u32 v{x2}, v{x1}, 1, v{x2}
    v_lshrrev_b32 v{x1}, 3, v{c_}
    v_add_u32 v{x2}, v{x2}, v{x1}
    v_and_b32 v{x1}, 7, v{c_}
    v_lshl_add_u32 v{x2}, v{x2}, 3, v{x1}
    v_lshlrev_b32 v{x2}, 4, v{x2}
    v_add_u32 v{V_SMR}, {L_SM}, v{x2}
    ; OW = L_O + n*256 + ((4w+g) ^ 2n)*16   (n<8)
    v_and_b32 v{x1}, 7, v{c_}
    s_lshl_b32 s{S_T1}, s{S_W}, 2
    v_add_u32 v{x2}, s{S_T1}, v{g_}
    v_lshlrev_b32 v{x0}, 1, v{x1}
    v_xor_b32 v{x2}, v{x2}, v{x0}
    v_lshlrev_b32 v{x2}, 4, v{x2}
    v_lshl_add_u32 v{x2}, v{x1}, 8, v{x2}
    v_add_u32 v{V_OW}, {L_O}, v{x2}
    v_xor_b32 v{x2}, v{g_}, v{x0}
    v_lshlrev_b32 v{x2}, 4, v{x2}
    v_lshl_add_u32 v{x2}, v{x1}, 8, v{x2}
    v_add_u32 v{V_OR}, {L_O}, v{x2}
    v_lshrrev_b32 v{x2}, 3, v{c_}
    v_lshl_add_u32 v{x2}, v{g_}, 1, v{x2}
    v_xor_b32 v{x2}, v{x2}, v{x0}
    v_lshlrev_b32 v{x2}, 4, v{x2}
    v_lshl_add_u32 v{x2}, v{x1}, 8, v{x2}
    v_add_u32 v{V_ORF}, {L_O}, v{x2}
    v_lshrrev_b32 v{x0}, 2, v{c_}
    v_lshlrev_b32 v{x0}, 3, v{x0}
    v_and_b32 v{x1}, 3, v{c_}
    v_add_u32 v{x0}, v{x0}, v{x1}
    v_lshlrev_b32 v{x1}, 4, v{g_}
    v_lshl_add_u32 v{V_KA}, v{x0}, 13, v{x1}
    v_lshl_add_u32 v{V_VA}, v{x0}, 12, v{x1}
    v_lshlrev_b32 v{x1}, 3, v{g_}
    v_lshl_add_u32 v{V_VM}, v{x0}, 5, v{x1}
    v_and_b32 v{x0}, 7, v{c_}
    v_lshlrev_b32 v{x1}, 4, v{g_}
    v_lshl_add_u32 v{V_KM}, v{x0}, 8, v{x1}
    v_and_b32 v{x0}, 1, v{g_}
    v_lshlrev_b32 v{x0}, 3, v{x0}
    v_lshl_add_u32 v{x0}, v{c_}, 4, v{x0}
    v_lshrrev_b32 v{x1}, 1, v{g_}
    v_lshl_add_u32 v{V_PUBF}, v{x1}, 2, v{x0}
    v_lshl_add_u32 v{V_PUBD}, v{x1}, 8, v{x0}
    v_add_u32 v{V_PUBD}, 256, v{V_PUBD}
    s_mul_i32 s{S_T1}, s{S_W}, 2304
    v_add_u32 v{V_P16}, s{S_T1}, v{V_L16}
    v_lshlrev_b32 v{x0}, 2, v{lane}
    v_add_u32 v{x0}, s{S_T1}, v{x0}
    v_add_u32 v{V_P4}, 2048, v{x0}
    ''')
    A(f'''
    s_lshl_b32 s{S_TILE}, s{S_H}, 1
    s_add_u32 s{S_TILE}, s{S_TILE}, s{S_W}
    s_mov_b32 s{S_ISRED}, 1
    s_cmp_lt_u32 s{S_W}, 2
    s_cbranch_scc1 {L('role_done')}
    s_add_u32 s{S_TILE}, s{S_H}, 64
    s_cmp_eq_u32 s{S_W}, 2
    s_cselect_b32 s{S_ISRED}, 1, 0
    s_cmp_lt_u32 s{S_H}, 8
    s_cselect_b32 s{S_ISRED}, s{S_ISRED}, 0
    s_cmp_eq_u32 s{S_ISRED}, 0
    s_cselect_b32 s{S_TILE}, 0, s{S_TILE}
    ''')
    A.label(L('role_done'))
    A(f'''
    v_lshrrev_b32 v{x0}, 3, v{c_}
    v_lshl_add_u32 v{x0}, v{x0}, 4, v{g_}
    v_mul_u32_u24 v{x0}, 9216, v{x0}
    v_and_b32 v{x1}, 7, v{c_}
    v_lshl_add_u32 v{x0}, v{x1}, 4, v{x0}
    s_lshl_b32 s{S_T1}, s{S_TILE}, 7
    v_add_u32 v{V_RL}, s{S_T1}, v{x0}
    v_and_b32 v{x0}, 6, v{c_}
    v_xor_b32 v{x0}, s{S_TILE}, v{x0}
    v_mul_u32_u24 v{x1}, 1152, v{x1}
    v_lshl_add_u32 v{x0}, v{x0}, 4, v{x1}
    v_and_b32 v{x1}, 1, v{g_}
    v_lshl_add_u32 v{x0}, v{x1}, 3, v{x0}
    v_lshrrev_b32 v{x1}, 1, v{g_}
    v_lshl_add_u32 v{V_RP}, v{x1}, 2, v{x0}
    ''')
    A(f'''
    s_mov_b32 s{S_STEP}, 0
    s_mov_b32 s{S_MCUR}, {WS_MEM}
    s_mov_b32 s{S_MNXT}, {WS_MEM + MEM_SLOT}
    s_mov_b32 s{S_MTHD}, {WS_MEM + 2*MEM_SLOT}
    s_mul_i32 s{S_PART}, s{S_H}, 9216
    s_mul_i32 s{S_T1}, s{S_W}, 2304
    s_add_u32 s{S_PART}, s{S_PART}, s{S_T1}
    s_add_u32 s{S_PART}, s{S_PART}, {WS_PART}
    s_mov_b32 s{S_T5}, {WS_PART}
    s_lshl_b32 s{S_KOFF}, s{S_H}, 8
    s_lshl_b32 s{S_T1}, s{S_W}, 6
    s_add_u32 s{S_KOFF}, s{S_KOFF}, s{S_T1}
    s_add_u32 s{S_KOFF}, s{S_KOFF}, {WS_K}
    s_lshl_b32 s{S_VOFF}, s{S_H}, 19
    s_lshl_b32 s{S_T1}, s{S_W}, 17
    s_add_u32 s{S_VOFF}, s{S_VOFF}, s{S_T1}
    s_add_u32 s{S_VOFF}, s{S_VOFF}, {WS_VT}
    s_lshl_b32 s{S_KMOFF}, s{S_H}, 11
    s_lshl_b32 s{S_T1}, s{S_W}, 6
    s_add_u32 s{S_KMOFF}, s{S_KMOFF}, s{S_T1}
    s_add_u32 s{S_KMOFF}, s{S_KMOFF}, {WS_KM}
    s_lshl_b32 s{S_VMOFF}, s{S_H}, 12
    s_lshl_b32 s{S_T1}, s{S_W}, 10
    s_add_u32 s{S_VMOFF}, s{S_VMOFF}, s{S_T1}
    s_add_u32 s{S_VMOFF}, s{S_VMOFF}, {WS_VM}
    ''')
    def kv_prefetch():
        A(f'''
        s_add_u32 s{S_T1}, s{S_KOFF}, {4*8192}
        buffer_load_dwordx4 {v(KS,4)}, v{V_KA}, s[{SRD_WS}:{SRD_WS+3}], s{S_KOFF} offen
        buffer_load_dwordx4 {v(KS+4,4)}, v{V_KA}, s[{SRD_WS}:{SRD_WS+3}], s{S_T1} offen
        s_add_u32 s{S_KOFF}, s{S_KOFF}, {32*8192}
        ''')
    def v_prefetch():
        A(f'''
        s_add_u32 s{S_T1}, s{S_VOFF}, {4*4096}
        buffer_load_dwordx4 {v(VS,4)}, v{V_VA}, s[{SRD_WS}:{SRD_WS+3}], s{S_VOFF} offen
        buffer_load_dwordx4 {v(VS+4,4)}, v{V_VA}, s[{SRD_WS}:{SRD_WS+3}], s{S_T1} offen
        s_add_u32 s{S_VOFF}, s{S_VOFF}, 64
        ''')
    kv_prefetch()
    v_prefetch()

    PD0 = T + 4
    A(f'''
    s_load_dwordx2 s[{SRD_X}:{SRD_X+1}], s[0:1], {KA_MEM0}
    s_mov_b32 s{SRD_X+2}, 9216
    s_lshl_b32 s{S_T1}, s{S_W}, 5
    s_mul_i32 s{S_T2}, s{S_W}, 2304
    v_xor_b32 v{T}, s{S_T1}, v{V_L16}
    v_add_u32 v{T}, s{S_T2}, v{T}
    v_lshlrev_b32 v{T+1}, 2, v{lane}
    v_xor_b32 v{T+1}, s{S_T1}, v{T+1}
    v_add_u32 v{T+1}, s{S_T2}, v{T+1}
    s_waitcnt lgkmcnt(0)
    buffer_load_dwordx4 {v(PD0,4)}, v{T}, s[{SRD_X}:{SRD_X+3}], 0 offen
    buffer_load_dwordx4 {v(PD0+4,4)}, v{T}, s[{SRD_X}:{SRD_X+3}], 0 offen offset:1024
    buffer_load_dword {v(PD0+8)}, v{T+1}, s[{SRD_X}:{SRD_X+3}], 0 offen offset:2048
    ''')
    lab = L('xcc_poll')
    A.label(lab)
    A(f'''
    v_mov_b32 v{T+2}, 0
    buffer_load_dwordx2 {v(T+14,2)}, v{T+2}, s[{S_DBG}:{S_DBG+3}], 0 offen sc1
    s_waitcnt vmcnt(0)
    v_readfirstlane_b32 s{S_T1}, v{T+15}
    v_readfirstlane_b32 s{S_T2}, v{T+14}
    s_sub_u32 s{S_BUD}, s{S_BUD}, 1
    s_cmp_eq_u32 s{S_BUD}, 0
    s_cbranch_scc1 {L('exit')}
    s_cmp_lt_u32 s{S_T1}, 32
    s_cbranch_scc1 {lab}
    s_bcnt1_i32_b32 s{S_T2}, s{S_T2}
    s_cmp_eq_u32 s{S_T2}, 1
    s_cselect_b32 s{S_FAST}, 1, 0
    ''')
    A(f'''
    ds_write_b128 v{V_P16}, {v(PD0,4)} offset:{L_M}
    ds_write_b128 v{V_P16}, {v(PD0+4,4)} offset:{L_M+1024}
    ds_write_b32 v{V_P4}, {v(PD0+8)} offset:{L_M}
    s_waitcnt lgkmcnt(0)
    s_barrier
    s_cmp_eq_u32 s{S_FAST}, 0
    s_cbranch_scc1 {L('slow_loop')}
    ''')
    env = dict(loc=loc, ldsloc=ldsloc, lds_ops=lds_ops, kv_prefetch=kv_prefetch, v_prefetch=v_prefetch)
    for variant in ('fast', 'slow'):
        emit_loop(A, cfg, name, variant, env)
    A.label(L('exit'))
    A('s_endpgm')
    return env


def emit_loop(A, cfg, name, variant, env):
    L = lambda x: f'{name}_{variant}_{x}'
    SC = '' if variant == 'fast' else ' sc1'
    loc, ldsloc, lds_ops = env['loc'], env['ldsloc'], env['lds_ops']
    WS = f's[{SRD_WS}:{SRD_WS+3}]'
    stamp_i = [0]

    def stamp():
        if not cfg.stamps or variant != 'fast':
            return
        i = stamp_i[0]
        stamp_i[0] += 1
        A(f's_memtime s[{56+2*i}:{57+2*i}]')

    A.label(f'{name}_{variant}_loop')
    stamp()
    QK0, QK1, V0, V1 = T, T + 4, T + 8, T + 12
    FB = [T + 16, T + 20, T + 24]
    BT = [T + 28, 0]
    BT = [T + 28]
    SP = T + 36
    idx = v(V_IDX)

    for q in (QK0, QK1, V0, V1):
        for i in range(4):
            A(f'v_mov_b32 v{q+i}, 0')

    def wl_addr(half):
        return V_WL if half == 0 else None

    A(f'v_add_u32 v{SP}, {HALF}, v{V_WL}')

    def opnd(op, bt):
        if op not in lds_ops:
            return r(loc[op], 8)
        half, off = ldsloc[op]
        base = V_WL if half == 0 else SP
        A(f'ds_read_b128 {v(bt,4)}, v{base} offset:{off}')
        A(f'ds_read_b128 {v(bt+4,4)}, v{base} offset:{off+1024}')
        return v(bt, 8)

    def rdF(kb):
        A(f'ds_read_b128 {v(FB[kb%3],4)}, v{V_MA0 if kb%2==0 else V_MA1} offset:{L_M + (kb>>1)*128}')
    rdF(0); rdF(1)
    for kb in range(18):
        if kb + 2 < 18:
            rdF(kb + 2)
        for t, acc in ((0, QK0), (1, QK1)):
            b = opnd(('qk', t, kb), BT[0])
            A(f'v_smfmac_f32_16x16x64_bf16 {v(acc,4)}, {v(FB[kb%3],4)}, {b}, {idx}')
    stamp()
    def rdFF(blk):
        A(f'ds_read_b128 {v(FB[blk%3],4)}, v{V_MAF} offset:{L_M + blk*128}')
    rdFF(0); rdFF(1)
    for blk in range(9):
        if blk + 2 < 9:
            rdFF(blk + 2)
        for t, acc in ((0, V0), (1, V1)):
            b = opnd(('v', t, blk), BT[0])
            A(f'v_smfmac_f32_16x16x64_bf16 {v(acc,4)}, {v(FB[blk%3],4)}, {b}, {idx}')
    stamp()
    A0, A1, SEL = FB[0], FB[0] + 2, FB[1]
    X = FB[2]
    bt = BT[0]
    A(f'''
    v_lshrrev_b32 v{bt}, 2, v{V_TID}
    v_and_b32 v{bt}, 12, v{bt}
    v_and_b32 v{bt+1}, 15, v{V_TID}
    v_sub_u32 v{bt}, v{bt+1}, v{bt}
    v_mov_b32 v{bt+1}, 0x3f80
    v_mov_b32 v{bt+2}, 0x3f800000
    v_cmp_eq_u32 vcc, 0, v{bt}
    v_cndmask_b32 v{SEL}, 0, v{bt+1}, vcc
    v_cmp_eq_u32 vcc, 1, v{bt}
    v_cndmask_b32 v{SEL}, v{SEL}, v{bt+2}, vcc
    v_cmp_eq_u32 vcc, 2, v{bt}
    v_cndmask_b32 v{SEL+1}, 0, v{bt+1}, vcc
    v_cmp_eq_u32 vcc, 3, v{bt}
    v_cndmask_b32 v{SEL+1}, v{SEL+1}, v{bt+2}, vcc
    v_cvt_pk_bf16_f32 v{A0}, v{QK0}, v{QK0+1}
    v_cvt_pk_bf16_f32 v{A0+1}, v{QK0+2}, v{QK0+3}
    v_cvt_pk_bf16_f32 v{A1}, v{QK1}, v{QK1+1}
    v_cvt_pk_bf16_f32 v{A1+1}, v{QK1+2}, v{QK1+3}
    v_mfma_f32_16x16x16_bf16 {v(QK0,4)}, {v(A0,2)}, {v(SEL,2)}, 0
    v_mfma_f32_16x16x16_bf16 {v(QK1,4)}, {v(A1,2)}, {v(SEL,2)}, 0
    v_cvt_pk_bf16_f32 v{X}, v{QK0}, v{QK0+1}
    v_cvt_pk_bf16_f32 v{X+1}, v{QK0+2}, v{QK0+3}
    v_cvt_pk_bf16_f32 v{X+2}, v{QK1}, v{QK1+1}
    v_cvt_pk_bf16_f32 v{X+3}, v{QK1+2}, v{QK1+3}
    ''')
    SMM, S0, S1 = QK0, QK1, FB[0]
    A(f'''
    v_mfma_f32_16x16x32_bf16 {v(SMM,4)}, {v(X,4)}, {v(X,4)}, 0
    v_mfma_f32_16x16x32_bf16 {v(S0,4)}, {v(KS,4)}, {v(X,4)}, 0
    v_mfma_f32_16x16x32_bf16 {v(S1,4)}, {v(KS+4,4)}, {v(X,4)}, 0
    s_mov_b64 exec, s[{S_MHI}:{S_MHI+1}]
    buffer_store_dwordx4 {v(X,4)}, v{V_KM}, {WS}, s{S_KMOFF} offen
    s_mov_b64 exec, s[{S_MLO}:{S_MLO+1}]
    ds_write_b128 v{V_SW}, {v(S0,4)}
    ds_write_b128 v{V_SW}, {v(S1,4)} offset:128
    s_mov_b64 exec, s[{S_MSM}:{S_MSM+1}]
    ds_write2_b32 v{V_SMW}, v{SMM}, v{SMM+1} offset0:0 offset1:32
    ds_write2_b32 v{V_SMW}, v{SMM+2}, v{SMM+3} offset0:64 offset1:96
    s_mov_b64 exec, -1
    s_add_u32 s{S_KMOFF}, s{S_KMOFF}, 65536
    ''')
    CV = SP
    A(f'''
    v_cvt_pk_bf16_f32 v{CV}, v{V0}, v{V0+1}
    v_cvt_pk_bf16_f32 v{CV+1}, v{V0+2}, v{V0+3}
    v_cvt_pk_bf16_f32 v{CV+2}, v{V1}, v{V1+1}
    v_cvt_pk_bf16_f32 v{CV+3}, v{V1+2}, v{V1+3}
    buffer_store_dwordx2 {v(CV,2)}, v{V_VM}, {WS}, s{S_VMOFF} offen
    buffer_store_dwordx2 {v(CV+2,2)}, v{V_VM}, {WS}, s{S_VMOFF} offen offset:128
    s_add_u32 s{S_VMOFF}, s{S_VMOFF}, 131072
    s_cmp_eq_u32 s{S_STEP}, {cfg.nsteps-1}
    s_cbranch_scc1 {name}_exit
    ''')
    env['kv_prefetch']()
    A('s_waitcnt lgkmcnt(0)')
    A('s_barrier')
    stamp()
    R0 = [T, T + 4, T + 8, T + 12]
    RM = FB[0]
    for wq in range(4):
        A(f'ds_read_b128 {v(R0[wq],4)}, v{V_L16} offset:{L_S + wq*1024}')
    A(f'ds_read_b128 {v(RM,4)}, v{V_SMR}')
    s_ = [FB[1] + i for i in range(4)]
    sm = FB[2]
    for i in range(4):
        A(f'v_add_f32 v{s_[i]}, v{R0[0]+i}, v{R0[1]+i}')
        A(f'v_add_f32 v{R0[2]+i}, v{R0[2]+i}, v{R0[3]+i}')
    for i in range(4):
        A(f'v_add_f32 v{s_[i]}, v{s_[i]}, v{R0[2]+i}')
    A(f'''
    v_add_f32 v{sm}, v{RM}, v{RM+1}
    v_add_f32 v{RM+2}, v{RM+2}, v{RM+3}
    v_add_f32 v{sm}, v{sm}, v{RM+2}
    ''')
    m, m2 = T, T + 1
    A(f'''
    v_max3_f32 v{m}, v{s_[0]}, v{s_[1]}, v{s_[2]}
    v_max3_f32 v{m}, v{m}, v{s_[3]}, v{sm}
    v_max_f32_dpp v{m}, v{m}, v{m} row_ror:8 row_mask:0xf bank_mask:0xf
    v_mov_b32 v{m2}, v{m}
    v_permlane16_swap_b32 v{m}, v{m2}
    v_max_f32 v{m}, v{m}, v{m2}
    v_mov_b32 v{m2}, v{m}
    v_permlane32_swap_b32 v{m}, v{m2}
    v_max_f32 v{m}, v{m}, v{m2}
    v_mul_f32 v{m}, s{S_SC}, v{m}
    ''')
    for x in s_ + [sm]:
        A(f'v_fma_f32 v{x}, v{x}, s{S_SC}, -v{m}')
    for x in s_ + [sm]:
        A(f'v_exp_f32 v{x}, v{x}')
    PS = T + 4
    PM = T + 8
    u = T + 10
    A(f'''
    v_cvt_pk_bf16_f32 v{PS}, v{s_[0]}, v{s_[1]}
    v_cvt_pk_bf16_f32 v{PS+1}, v{s_[2]}, v{s_[3]}
    v_mov_b32_dpp v{PS+2}, v{PS} row_ror:8 row_mask:0xf bank_mask:0xf
    v_mov_b32_dpp v{PS+3}, v{PS+1} row_ror:8 row_mask:0xf bank_mask:0xf
    v_mov_b32_dpp v{u}, v{sm} row_ror:8 row_mask:0xf bank_mask:0xf
    v_cvt_pk_bf16_f32 v{PM}, v{sm}, v{u}
    v_mov_b32 v{PM+1}, v{PM}
    v_permlane32_swap_b32 v{PM}, v{PM+1}
    ''')
    O0, O1 = T + 12, BT[0]
    A(f'''
    v_mfma_f32_16x16x32_bf16 {v(O0,4)}, {v(VS,4)}, {v(PS,4)}, 0
    v_mfma_f32_16x16x32_bf16 {v(O1,4)}, {v(VS+4,4)}, {v(PS,4)}, 0
    v_mfma_f32_16x16x16_bf16 {v(O0,4)}, {v(CV,2)}, {v(PM,2)}, {v(O0,4)}
    v_mfma_f32_16x16x16_bf16 {v(O1,4)}, {v(CV+2,2)}, {v(PM,2)}, {v(O1,4)}
    ''')
    env['v_prefetch']()
    l, l2 = T, T + 1
    A(f'''
    v_add_f32 v{l}, v{s_[0]}, v{s_[1]}
    v_add_f32 v{l2}, v{s_[2]}, v{s_[3]}
    v_add_f32 v{l}, v{l}, v{sm}
    v_add_f32 v{l}, v{l}, v{l2}
    v_add_f32_dpp v{l}, v{l}, v{l} row_ror:8 row_mask:0xf bank_mask:0xf
    v_mov_b32 v{l2}, v{l}
    v_permlane16_swap_b32 v{l}, v{l2}
    v_add_f32 v{l}, v{l}, v{l2}
    v_mov_b32 v{l2}, v{l}
    v_permlane32_swap_b32 v{l}, v{l2}
    v_add_f32 v{l}, v{l}, v{l2}
    v_rcp_f32 v{l}, v{l}
    ''')
    for o in (O0, O1):
        for i in range(4):
            A(f'v_mul_f32 v{o+i}, v{o+i}, v{l}')
    OP = T + 4
    A(f'''
    v_cvt_pk_bf16_f32 v{OP}, v{O0}, v{O0+1}
    v_cvt_pk_bf16_f32 v{OP+1}, v{O0+2}, v{O0+3}
    v_cvt_pk_bf16_f32 v{OP+2}, v{O1}, v{O1+1}
    v_cvt_pk_bf16_f32 v{OP+3}, v{O1+2}, v{O1+3}
    s_mov_b64 exec, s[{S_MLO}:{S_MLO+1}]
    ds_write_b128 v{V_OW}, {v(OP,4)}
    s_mov_b64 exec, -1
    s_waitcnt lgkmcnt(0)
    s_barrier
    ''')
    stamp()
    AD = [T + 4 * k for k in range(4)]
    AF = [FB[0], FB[1]]
    ta = BT[0]
    A(f'v_xor_b32 v{ta}, 128, v{V_ORF}')
    A(f'ds_read_b128 {v(AF[0],4)}, v{V_ORF}')
    A(f'ds_read_b128 {v(AF[1],4)}, v{ta}')
    A(f'ds_read_b128 {v(AD[0],4)}, v{V_OR}')
    for kb in range(1, 4):
        A(f'v_xor_b32 v{ta+kb}, {64*kb}, v{V_OR}')
        A(f'ds_read_b128 {v(AD[kb],4)}, v{ta+kb}')
    acc = FB[2]
    A(f'v_add_u32 v{V_SP0}, {HALF}, v{V_WL}')

    def opnd2(op):
        if op not in lds_ops:
            return r(loc[op], 8)
        half, off = ldsloc[op]
        base = V_WL if half == 0 else V_SP0
        bt = BT[0]
        A(f'ds_read_b128 {v(bt,4)}, v{base} offset:{off}')
        A(f'ds_read_b128 {v(bt+4,4)}, v{base} offset:{off+1024}')
        return v(bt, 8)
    for i in range(4):
        A(f'v_mov_b32 v{acc+i}, 0')
    for blk in range(2):
        b = opnd2(('of', 0, blk))
        A(f'v_smfmac_f32_16x16x64_bf16 {v(acc,4)}, {v(AF[blk],4)}, {b}, {idx}')
    A(f'''
    v_permlane32_swap_b32 v{acc}, v{acc+2}
    v_permlane32_swap_b32 v{acc+1}, v{acc+3}
    v_add_f32 v{acc}, v{acc}, v{acc+2}
    v_add_f32 v{acc+1}, v{acc+1}, v{acc+3}
    v_cvt_pk_bf16_f32 v{SP}, v{acc}, v{acc+1}
    v_min_u32 v{SP}, -2, v{SP}
    buffer_store_dword v{SP}, v{V_PUBF}, {WS}, s{S_PART} offen{SC}
    ''')
    for p in range(4):
        acc = FB[2] if p % 2 else FB[0]
        for i in range(4):
            A(f'v_mov_b32 v{acc+i}, 0')
        for kb in range(4):
            b = opnd2(('o', p, kb))
            A(f'v_smfmac_f32_16x16x64_bf16 {v(acc,4)}, {v(AD[kb],4)}, {b}, {idx}')
        o2 = SP + 2 * (p % 2)
        A(f'''
        v_cvt_pk_bf16_f32 v{o2}, v{acc}, v{acc+1}
        v_cvt_pk_bf16_f32 v{o2+1}, v{acc+2}, v{acc+3}
        v_min_u32 v{o2}, -2, v{o2}
        v_min_u32 v{o2+1}, -2, v{o2+1}
        buffer_store_dwordx2 {v(o2,2)}, v{V_PUBD}, {WS}, s{S_PART} offen offset:{512*p}{SC}
        ''')
    stamp()
    A(f'''
    s_cmp_eq_u32 s{S_ISRED}, 0
    s_cbranch_scc1 {L('nored')}
    ''')
    RD = [T + 4 * i for i in range(4)]
    SR = FB[0]
    t0, t1, t2 = BT[0], BT[0] + 1, BT[0] + 2
    A(f'''
    v_and_b32 v{t0}, 7, v{V_TID}
    v_lshrrev_b32 v{t1}, 1, v{t0}
    v_and_b32 v{t0}, 1, v{t0}
    v_mov_b32 v{t2}, 0x3f80
    v_lshlrev_b32 v{t0}, 4, v{t0}
    v_lshlrev_b32 v{t2}, v{t0}, v{t2}
    ''')
    for i in range(4):
        A(f'v_cmp_eq_u32 vcc, {i}, v{t1}')
        A(f'v_cndmask_b32 v{SR+i}, 0, v{t2}, vcc')
    A.label(L('rpoll'))
    for i in range(4):
        A(f's_add_u32 s{S_T1}, s{S_T5}, {i*4*9216}')
        A(f'buffer_load_dwordx4 {v(RD[i],4)}, v{V_RL}, {WS}, s{S_T1} offen sc1')
    cm = FB[1]
    regs = [RD[i] + j for i in range(4) for j in range(4)]
    A(f'v_max3_u32 v{cm}, v{regs[0]}, v{regs[1]}, v{regs[2]}')
    A(f'v_max3_u32 v{cm+1}, v{regs[3]}, v{regs[4]}, v{regs[5]}')
    A(f'v_max3_u32 v{cm}, v{cm}, v{regs[6]}, v{regs[7]}')
    A(f'v_max3_u32 v{cm+1}, v{cm+1}, v{regs[8]}, v{regs[9]}')
    A(f'v_max3_u32 v{cm}, v{cm}, v{regs[10]}, v{regs[11]}')
    A(f'v_max3_u32 v{cm+1}, v{cm+1}, v{regs[12]}, v{regs[13]}')
    A(f'v_max3_u32 v{cm}, v{cm}, v{regs[14]}, v{regs[15]}')
    A(f'''
    v_max_u32 v{cm}, v{cm}, v{cm+1}
    v_cmp_eq_u32 vcc, -1, v{cm}
    s_sub_u32 s{S_BUD}, s{S_BUD}, 1
    s_cmp_eq_u32 s{S_BUD}, 0
    s_cbranch_scc1 {name}_exit
    s_cbranch_vccnz {L('rpoll')}
    ''')
    acc = FB[2]
    A(f'v_mfma_f32_16x16x32_bf16 {v(acc,4)}, {v(RD[0],4)}, {v(SR,4)}, 0')
    for i in range(1, 4):
        A(f'v_mfma_f32_16x16x32_bf16 {v(acc,4)}, {v(RD[i],4)}, {v(SR,4)}, {v(acc,4)}')
    A(f'''
    v_permlane32_swap_b32 v{acc}, v{acc+2}
    v_permlane32_swap_b32 v{acc+1}, v{acc+3}
    v_add_f32 v{acc}, v{acc}, v{acc+2}
    v_add_f32 v{acc+1}, v{acc+1}, v{acc+3}
    v_cvt_pk_bf16_f32 v{cm}, v{acc}, v{acc+1}
    v_min_u32 v{cm}, -2, v{cm}
    v_mov_b32 v{SR}, -1
    v_mov_b32 v{SR+1}, -1
    v_mov_b32 v{SR+2}, -1
    v_mov_b32 v{SR+3}, -1
    s_mov_b64 exec, s[{S_MLO}:{S_MLO+1}]
    buffer_store_dword v{cm}, v{V_RP}, {WS}, s{S_MNXT} offen{SC}
    buffer_store_dword v{SR}, v{V_RP}, {WS}, s{S_MCUR} offen{SC}
    s_mov_b64 exec, -1
    ''')
    for i in range(4):
        if cfg.norearm:
            break
        A(f's_add_u32 s{S_T1}, s{S_T5}, {i*4*9216}')
        A(f'buffer_store_dwordx4 {v(SR,4)}, v{V_RL}, {WS}, s{S_T1} offen{SC}')
    A.label(L('nored'))
    stamp()
    A(f'''
    s_mov_b32 s{S_T1}, s{S_MCUR}
    s_mov_b32 s{S_MCUR}, s{S_MNXT}
    s_mov_b32 s{S_MNXT}, s{S_MTHD}
    s_mov_b32 s{S_MTHD}, s{S_T1}
    s_and_b32 s{S_T1}, s{S_STEP}, 1
    s_mov_b32 s{S_T2}, {PART_SLOT}
    s_cmp_eq_u32 s{S_T1}, 0
    s_cselect_b32 s{S_T2}, s{S_T2}, {(-PART_SLOT) & 0xffffffff}
    s_add_u32 s{S_PART}, s{S_PART}, s{S_T2}
    s_add_u32 s{S_T5}, s{S_T5}, s{S_T2}
    s_add_u32 s{S_STEP}, s{S_STEP}, 1
    ''')
    PD0 = T
    A.label(L('mpoll'))
    A(f'''
    buffer_load_dwordx4 {v(PD0,4)}, v{V_P16}, {WS}, s{S_MCUR} offen sc1
    buffer_load_dwordx4 {v(PD0+4,4)}, v{V_P16}, {WS}, s{S_MCUR} offen offset:1024 sc1
    buffer_load_dword {v(PD0+8)}, v{V_P4}, {WS}, s{S_MCUR} offen sc1
    v_max3_u32 v{cm}, v{PD0}, v{PD0+1}, v{PD0+2}
    v_max3_u32 v{cm+1}, v{PD0+3}, v{PD0+4}, v{PD0+5}
    v_max3_u32 v{cm}, v{cm}, v{PD0+6}, v{PD0+7}
    v_max3_u32 v{cm}, v{cm}, v{cm+1}, v{PD0+8}
    v_cmp_eq_u32 vcc, -1, v{cm}
    s_sub_u32 s{S_BUD}, s{S_BUD}, 1
    s_cmp_eq_u32 s{S_BUD}, 0
    s_cbranch_scc1 {name}_exit
    s_cbranch_vccnz {L('mpoll')}
    ds_write_b128 v{V_P16}, {v(PD0,4)} offset:{L_M}
    ds_write_b128 v{V_P16}, {v(PD0+4,4)} offset:{L_M+1024}
    ds_write_b32 v{V_P4}, {v(PD0+8)} offset:{L_M}
    s_waitcnt lgkmcnt(0)
    s_barrier
    ''')
    stamp()
    if cfg.stamps and variant == 'fast':
        lab = L('nost')
        A(f'''
        s_cmp_lg_u32 s{S_STEP}, 20
        s_cbranch_scc1 {lab}
        s_waitcnt lgkmcnt(0)
        s_lshl_b32 s{S_T1}, s{S_H}, 2
        s_add_u32 s{S_T1}, s{S_T1}, s{S_W}
        s_lshl_b32 s{S_T1}, s{S_T1}, 7
        s_add_u32 s{S_T1}, s{S_T1}, {WS_STAMP}
        v_mov_b32 v{T+20}, 0
        ''')
        for i in range(8):
            A(f'v_mov_b32 v{T+16}, s{56+2*i}')
            A(f'v_mov_b32 v{T+17}, s{57+2*i}')
            A(f'buffer_store_dwordx2 {v(T+16,2)}, v{T+20}, {WS}, s{S_T1} offen offset:{8*i}')
            A('s_waitcnt vmcnt(0)')
        A.label(lab)
    A(f's_branch {name}_{variant}_loop')
```

```python
from asmlib import Asm, v, a, s, r
from layout import *
import struct


def f2u(x):
    return struct.unpack('<I', struct.pack('<f', x))[0]


class GemmCfg:
    def __init__(self, NI, NJ, nstages, nbuf, ldx, mode, sc1=False):
        self.NI, self.NJ = NI, NJ
        self.TW, self.TT = 64 * NI, 64 * NJ
        self.nstages, self.nbuf = nstages, nbuf
        self.ldx = ldx
        self.mode = mode
        self.sc1 = sc1
        self.xbytes = self.TT * 128
        self.wrow = self.TW * 2
        self.wbytes = 64 * self.wrow
        self.stage = self.xbytes + self.wbytes
        self.nx = self.xbytes // 4096
        self.nw = self.wbytes // 4096


S_WAVE = 4
SRD_WS, SRD_W = 8, 12
S_XOFF, S_WOFF, S_LDW = 16, 17, 18
S_XK, S_WK, S_T1, S_T2, S_LOOP = 19, 20, 21, 22, 23
S_WJ = 24
S_OUT, S_LDO = 25, 26
S_C0 = 27
S_T0 = 28
SRD_B = 32
SRD_X = 36
S_K0, S_K1, S_K2 = 40, 41, 42

V_LANE = 0
V_XD = 1
V_WD = 2
V_XA = 5
V_WA = 9
V_T = 13
FR = 16
EP = 80


def emit_gemm_setup(A, c):
    lane = V_LANE
    t0, t1, t2 = V_T, V_T + 1, V_T + 2
    A(f'''
    v_lshrrev_b32 v{t0}, 4, v{lane}
    s_and_b32 s{S_T1}, s{S_WAVE}, 1
    s_lshl_b32 s{S_T1}, s{S_T1}, 2
    v_add_u32 v{t0}, s{S_T1}, v{t0}
    v_and_b32 v{t1}, 7, v{lane}
    v_xor_b32 v{t0}, v{t0}, v{t1}
    v_lshlrev_b32 v{t0}, 4, v{t0}
    v_lshrrev_b32 v{t1}, 3, v{lane}
    s_lshl_b32 s{S_T1}, s{S_WAVE}, 3
    v_add_u32 v{t1}, s{S_T1}, v{t1}
    s_mov_b32 s{S_T1}, {c.ldx}
    v_mul_lo_u32 v{t1}, v{t1}, s{S_T1}
    v_add_u32 v{V_XD}, v{t0}, v{t1}
    ''')
    if c.wrow == 512:
        A(f'''
        v_lshrrev_b32 v{t0}, 5, v{lane}
        s_and_b32 s{S_T1}, s{S_WAVE}, 1
        s_lshl_b32 s{S_T1}, s{S_T1}, 1
        v_add_u32 v{t1}, s{S_T1}, v{t0}
        v_lshlrev_b32 v{t1}, 2, v{t1}
        v_and_b32 v{t2}, 31, v{lane}
        v_xor_b32 v{t1}, v{t1}, v{t2}
        v_lshlrev_b32 v{t1}, 4, v{t1}
        s_lshl_b32 s{S_T1}, s{S_WAVE}, 1
        v_add_u32 v{t0}, s{S_T1}, v{t0}
        v_mul_lo_u32 v{t0}, v{t0}, s{S_LDW}
        v_add_u32 v{V_WD}, v{t0}, v{t1}
        s_lshl_b32 s{S_WJ}, s{S_LDW}, 3
        ''')
    elif c.wrow == 384:
        for b in range(3):
            A(f'''
            v_add_u32 v{t0}, {64*b}, v{lane}
            v_mul_u32_u24 v{t1}, 2731, v{t0}
            v_lshrrev_b32 v{t1}, 16, v{t1}
            v_mul_u32_u24 v{t2}, 24, v{t1}
            v_sub_u32 v{t0}, v{t0}, v{t2}
            v_and_b32 v{t2}, 2, v{t1}
            v_lshlrev_b32 v{t2}, 1, v{t2}
            v_xor_b32 v{t0}, v{t0}, v{t2}
            v_lshlrev_b32 v{t0}, 4, v{t0}
            s_lshl_b32 s{S_T1}, s{S_WAVE}, 4
            v_add_u32 v{t1}, s{S_T1}, v{t1}
            v_mul_lo_u32 v{t1}, v{t1}, s{S_LDW}
            v_add_u32 v{V_WD+b}, v{t0}, v{t1}
            ''')
        assert all((P * 2731) >> 16 == P // 24 for P in range(192))
        A(f's_lshl_b32 s{S_WJ}, s{S_LDW}, 3')
    else:
        raise ValueError
    A(f'''
    v_and_b32 v{t0}, 31, v{lane}
    v_bfe_u32 v{t1}, v{lane}, 1, 3
    v_lshrrev_b32 v{t2}, 5, v{lane}
    v_xor_b32 v{t1}, v{t1}, v{t2}
    v_lshlrev_b32 v{t1}, 4, v{t1}
    s_lshr_b32 s{S_T1}, s{S_WAVE}, 1
    s_mul_i32 s{S_T1}, s{S_T1}, {c.NJ*32}
    v_add_u32 v{t0}, s{S_T1}, v{t0}
    v_lshl_add_u32 v{V_XA}, v{t0}, 7, v{t1}
    v_xor_b32 v{V_XA+1}, 32, v{V_XA}
    v_xor_b32 v{V_XA+2}, 64, v{V_XA}
    v_xor_b32 v{V_XA+3}, 96, v{V_XA}
    ''')
    swz = (lambda: f'v_lshlrev_b32 v{t2}, 2, v{t2}') if c.wrow == 512 else None
    A(f'''
    v_bfe_u32 v{t2}, v{lane}, 2, 2
    v_lshrrev_b32 v{t0}, 5, v{lane}
    v_lshl_add_u32 v{t0}, v{t0}, 3, v{t2}
    v_mul_u32_u24 v{t0}, {c.wrow}, v{t0}
    v_and_b32 v{t1}, 1, v{lane}
    v_lshl_add_u32 v{t0}, v{t1}, 3, v{t0}
    v_add_u32 v{t0}, {c.xbytes}, v{t0}
    ''')
    if c.wrow == 512:
        A(f'v_lshlrev_b32 v{t2}, 2, v{t2}')
    else:
        A(f'''
        v_and_b32 v{t2}, 2, v{t2}
        v_lshlrev_b32 v{t2}, 1, v{t2}
        ''')
    for i in range(c.NI):
        wa = V_WA + i
        A(f'''
        v_bfe_u32 v{t1}, v{lane}, 4, 1
        v_lshlrev_b32 v{t1}, 1, v{t1}
        v_bfe_u32 v{wa}, v{lane}, 1, 1
        v_add_u32 v{t1}, v{t1}, v{wa}
        s_and_b32 s{S_T1}, s{S_WAVE}, 1
        s_mul_i32 s{S_T1}, s{S_T1}, {c.NI*4}
        s_add_u32 s{S_T1}, s{S_T1}, {4*i}
        v_add_u32 v{t1}, s{S_T1}, v{t1}
        v_xor_b32 v{t1}, v{t1}, v{t2}
        v_lshl_add_u32 v{wa}, v{t1}, 4, v{t0}
        ''')


def emit_gemm_main(A, c, swap, label):
    NI, NJ = c.NI, c.NJ
    WF = lambda p, i: FR + p * (NI + NJ) * 4 + 4 * i
    XF = lambda p, j: FR + p * (NI + NJ) * 4 + 4 * NI + 4 * j
    acc = lambda i, j: a(16 * (i * NJ + j), 16)
    WS = f's[{SRD_WS}:{SRD_WS+3}]'
    WW = f's[{SRD_W}:{SRD_W+3}]'
    ndma = c.nx + c.nw

    def dma_list(buf):
        g = []
        base = buf * c.stage
        for j in range(c.nx):
            g.append(f'''s_add_u32 m0, s{S_K0}, {base + 4096*j}
            s_add_u32 s{S_T1}, s{S_XK}, {j*32*c.ldx}
            buffer_load_dwordx4 v{V_XD}, {WS}, s{S_T1} offen lds''')
        wb = base + c.xbytes
        if c.wrow == 512:
            for j in range(c.nw):
                pre = f's_mov_b32 s{S_T2}, s{S_WK}' if j == 0 else f's_add_u32 s{S_T2}, s{S_T2}, s{S_WJ}'
                g.append(f'''s_add_u32 m0, s{S_K0}, {wb + 4096*j}
                {pre}
                buffer_load_dwordx4 v{V_WD}, {WW}, s{S_T2} offen lds''')
        else:
            for aa in range(2):
                for b in range(3):
                    if b == 0:
                        pre = f's_mov_b32 s{S_T2}, s{S_WK}' if aa == 0 else f's_add_u32 s{S_T2}, s{S_T2}, s{S_WJ}'
                    else:
                        pre = 's_nop 0'
                    g.append(f'''s_add_u32 m0, s{S_K1}, {wb + (3*aa+b)*1024}
                    {pre}
                    buffer_load_dwordx4 v{V_WD+b}, {WW}, s{S_T2} offen lds''')
        g.append(f'''s_add_u32 s{S_XK}, s{S_XK}, 128
        s_add_u32 s{S_WK}, s{S_WK}, s{S_K2}''')
        return g

    A(f'''
    s_lshl_b32 s{S_K0}, s{S_WAVE}, 10
    s_mul_i32 s{S_K1}, s{S_WAVE}, 6144
    s_lshl_b32 s{S_K2}, s{S_LDW}, 6
    s_mov_b32 s{S_XK}, s{S_XOFF}
    s_mov_b32 s{S_WK}, s{S_WOFF}
    ''')

    cur = [0]

    def point(buf):
        d = buf * c.stage - cur[0]
        if d:
            for x in [V_XA + k for k in range(4)] + [V_WA + i for i in range(NI)]:
                A(f'v_add_u32 v{x}, {d & 0xffffffff:#x}, v{x}')
            cur[0] = buf * c.stage

    def reads(p, ks):
        g = []
        for i in range(NI):
            for jj in range(2):
                g.append(f'ds_read_b64_tr_b16 {v(WF(p,i)+2*jj,2)}, v{V_WA+i} offset:{(16*ks+4*jj)*c.wrow}')
        for j in range(NJ):
            g.append(f'ds_read_b128 {v(XF(p,j),4)}, v{V_XA+ks} offset:{4096*j}')
        wr = g[:2 * NI]
        xr = g[2 * NI:]
        o = wr[0:2] + xr[0:1] + wr[2:4] + xr[1:]
        o += wr[4:]
        return o

    def step(p, first, fill):
        mm = []
        for i in range(NI):
            for j in range(NJ):
                cin = '0' if first else acc(i, j)
                if swap:
                    mm.append(f'v_mfma_f32_32x32x16_bf16 {acc(i,j)}, {v(XF(p,j),4)}, {v(WF(p,i),4)}, {cin}')
                else:
                    mm.append(f'v_mfma_f32_32x32x16_bf16 {acc(i,j)}, {v(WF(p,i),4)}, {v(XF(p,j),4)}, {cin}')
        n = len(mm)
        fi = 0
        for q, m in enumerate(mm):
            A(m)
            tgt = (len(fill) * (q + 1) + n - 1) // n
            while fi < min(tgt, len(fill)):
                A(fill[fi])
                fi += 1
        while fi < len(fill):
            A(fill[fi])
            fi += 1

    def stage(k, buf, first, issue, outstanding_after, last):
        for ks in range(4):
            p = ks & 1
            if ks < 3:
                step(p, first and ks == 0, reads(p ^ 1, ks + 1))
            else:
                fill = []
                if not last:
                    A(f's_waitcnt vmcnt({outstanding_after}) lgkmcnt(0)')
                    A('s_barrier')
                    nb = (buf + 1) % c.nbuf
                    point(nb)
                    fill = reads(p ^ 1, 0)
                    if issue:
                        fill = fill[:3] + dma_list(buf) [:4] + fill[3:] + dma_list(buf)[4:]
                step(p, False, fill)

    for b in range(c.nbuf):
        for g in dma_list(b):
            A(g)
    A(f's_waitcnt vmcnt({ndma*(c.nbuf-1)})')
    A('s_barrier')
    for g in reads(0, 0):
        A(g)
    nb = c.nbuf
    if c.nstages % nb == 0 and c.nstages > 3 * nb:
        for i in range(16 * NI * NJ):
            A(f'v_accvgpr_write_b32 a{i}, 0')
        ngroups = c.nstages // nb
        A(f's_mov_b32 s{S_LOOP}, {ngroups - 1}')
        A.label(label + '_loop')
        for q in range(nb):
            stage(q, q, False, True, ndma * (nb - 2), False)
        assert cur[0] == 0
        A(f'''
        s_sub_u32 s{S_LOOP}, s{S_LOOP}, 1
        s_cmp_lg_u32 s{S_LOOP}, 0
        s_cbranch_scc1 {label}_loop
        ''')
        for q in range(nb):
            rem = nb - 1 - q
            stage(q, q, False, False, ndma * max(rem - 1, 0), rem == 0)
    else:
        for k in range(c.nstages):
            rem = c.nstages - 1 - k
            issue = k + nb < c.nstages
            infl = max(0, min(k + nb - 1, c.nstages - 1) - (k + 1))
            stage(k, k % nb, k == 0, issue, ndma * infl, rem == 0)
    point(0)
    A('s_barrier')


def GELU_consts():
    k0 = -2.0 * 0.7978845608028654 * 1.4426950408889634
    k1 = k0 * 0.044715
    return f2u(k0), f2u(k1)


def emit_epi_bf16(A, c, swap, gelu, label):
    NI, NJ = c.NI, c.NJ
    lane = V_LANE
    WS = f's[{SRD_WS}:{SRD_WS+3}]'
    sc = ' sc1' if c.sc1 else ''
    t0, t1 = V_T, V_T + 1
    VO = V_T + 2
    nN, nM = (NI, NJ) if swap else (NJ, NI)
    wn = f's_and_b32 s{S_T1}, s{S_WAVE}, 1' if swap else f's_lshr_b32 s{S_T1}, s{S_WAVE}, 1'
    wm = f's_lshr_b32 s{S_T2}, s{S_WAVE}, 1' if swap else f's_and_b32 s{S_T2}, s{S_WAVE}, 1'
    A(f'''
    {wn}
    {wm}
    s_mul_i32 s{S_T1}, s{S_T1}, {nN*32}
    s_mul_i32 s{S_T2}, s{S_T2}, {nM*32*2}
    v_and_b32 v{t0}, 31, v{lane}
    v_add_u32 v{t0}, s{S_T1}, v{t0}
    v_mul_lo_u32 v{t0}, v{t0}, s{S_LDO}
    v_lshrrev_b32 v{t1}, 5, v{lane}
    v_lshl_add_u32 v{t0}, v{t1}, 4, v{t0}
    v_add_u32 v{VO}, s{S_T2}, v{t0}
    s_lshl_b32 s{S_T2}, s{S_LDO}, 5
    ''')
    BI = EP + 40
    if gelu:
        k0, k1 = GELU_consts()
        A(f'''
        s_and_b32 s{S_T1}, s{S_WAVE}, 1
        s_mul_i32 s{S_T1}, s{S_T1}, {NI*32}
        s_add_u32 s{S_T1}, s{S_T1}, s{S_C0}
        s_lshl_b32 s{S_T1}, s{S_T1}, 1
        v_lshrrev_b32 v{t1}, 5, v{lane}
        v_lshlrev_b32 v{t1}, 3, v{t1}
        v_mov_b32 v{EP+76}, {k0:#x}
        s_mov_b32 s{S_K1}, {k1:#x}
        ''')
    for i in range(NI):
        if gelu:
            for q in range(4):
                A(f'buffer_load_dwordx2 {v(BI+16+2*q,2)}, v{t1}, s[{SRD_B}:{SRD_B+3}], s{S_T1} offen offset:{64*i+16*q}')
            for q in range(4):
                for e2 in range(2):
                    src = BI + 16 + 2 * q + e2
                    A(f'v_lshlrev_b32 v{BI+4*q+2*e2}, 16, v{src}')
                    A(f'v_and_b32 v{BI+4*q+2*e2+1}, 0xffff0000, v{src}')
        for j in range(NJ):
            ab = 16 * (i * NJ + j)
            E = EP + 20 * (j & 1)
            for e in range(16):
                A(f'v_accvgpr_read_b32 v{E+e}, a{ab+e}')
            if gelu:
                G = EP + 72
                for e0 in range(0, 16, 4):
                    xs = [E + e0 + e for e in range(4)]
                    gs = [G + e for e in range(4)]
                    for e in range(4):
                        A(f'v_add_f32 v{xs[e]}, v{xs[e]}, v{BI+e0+e}')
                    for e in range(4):
                        A(f'v_mul_f32 v{gs[e]}, v{xs[e]}, v{xs[e]}')
                    for e in range(4):
                        A(f'v_fma_f32 v{gs[e]}, v{gs[e]}, s{S_K1}, v{G+4}')
                    for e in range(4):
                        A(f'v_mul_f32 v{gs[e]}, v{gs[e]}, v{xs[e]}')
                    for e in range(4):
                        A(f'v_exp_f32 v{gs[e]}, v{gs[e]}')
                    for e in range(4):
                        A(f'v_add_f32 v{gs[e]}, 1.0, v{gs[e]}')
                    for e in range(4):
                        A(f'v_rcp_f32 v{gs[e]}, v{gs[e]}')
                    for e in range(4):
                        A(f'v_mul_f32 v{xs[e]}, v{xs[e]}, v{gs[e]}')
            for u in range(2):
                R = E + 8 * u
                A(f'''
                v_cvt_pk_bf16_f32 v{R}, v{E+8*u}, v{E+8*u+1}
                v_cvt_pk_bf16_f32 v{R+1}, v{E+8*u+2}, v{E+8*u+3}
                v_cvt_pk_bf16_f32 v{R+2}, v{E+8*u+4}, v{E+8*u+5}
                v_cvt_pk_bf16_f32 v{R+3}, v{E+8*u+6}, v{E+8*u+7}
                v_permlane32_swap_b32 v{R}, v{R+2}
                v_permlane32_swap_b32 v{R+1}, v{R+3}
                ''')
            fn, fm = (i, j) if swap else (j, i)
            if fn == 0:
                A(f's_mov_b32 s{S_LOOP}, s{S_OUT}')
            else:
                A(f's_mul_i32 s{S_LOOP}, s{S_T2}, {fn}')
                A(f's_add_u32 s{S_LOOP}, s{S_LOOP}, s{S_OUT}')
            for u in range(2):
                A(f'buffer_store_dwordx4 {v(E+8*u,4)}, v{VO}, {WS}, s{S_LOOP} offen offset:{fm*64+u*32}{sc}')


def emit_epi_base(A, c):
    NI, NJ = c.NI, c.NJ
    lane = V_LANE
    WS = f's[{SRD_WS}:{SRD_WS+3}]'
    sc = ' sc1' if c.sc1 else ''
    t0, t1 = V_T, V_T + 1
    VO, VX = V_T + 2, EP + 60
    A(f'''
    s_lshr_b32 s{S_T1}, s{S_WAVE}, 1
    s_and_b32 s{S_T2}, s{S_WAVE}, 1
    s_mul_i32 s{S_T1}, s{S_T1}, {NJ*32}
    s_add_u32 s{S_T1}, s{S_T1}, s{S_T0}
    s_mul_i32 s{S_T2}, s{S_T2}, {NI*32}
    s_add_u32 s{S_T2}, s{S_T2}, s{S_C0}
    v_and_b32 v{t0}, 31, v{lane}
    v_add_u32 v{t0}, s{S_T1}, v{t0}
    v_lshrrev_b32 v{t1}, 5, v{lane}
    v_lshlrev_b32 v{t1}, 2, v{t1}
    v_add_u32 v{t1}, s{S_T2}, v{t1}
    v_mul_u32_u24 v{VO}, 2304, v{t0}
    v_lshl_add_u32 v{VO}, v{t1}, 2, v{VO}
    v_mul_u32_u24 v{VX}, 1152, v{t0}
    v_lshl_add_u32 v{VX}, v{t1}, 1, v{VX}
    v_lshlrev_b32 v{t1}, 1, v{t1}
    ''')
    BI = EP + 40
    for i in range(NI):
        for q in range(4):
            A(f'buffer_load_dwordx2 {v(BI+2*q,2)}, v{t1}, s[{SRD_B}:{SRD_B+3}], 0 offen offset:{64*i+16*q}')
        for j in range(NJ):
            ab = 16 * (i * NJ + j)
            E = EP + 20 * (j & 1)
            XV = EP + 48
            A(f's_mov_b32 s{S_LOOP}, {j*32*1152}')
            for q in range(4):
                A(f'buffer_load_dwordx2 {v(XV+2*q,2)}, v{VX}, s[{SRD_X}:{SRD_X+3}], s{S_LOOP} offen offset:{64*i+16*q}')
            for e in range(16):
                A(f'v_accvgpr_read_b32 v{E+e}, a{ab+e}')
            T1 = EP + 56
            for q in range(4):
                for e2 in range(2):
                    for hi in range(2):
                        e = 4 * q + 2 * e2 + hi
                        for src in (BI + 2 * q + e2, XV + 2 * q + e2):
                            if hi == 0:
                                A(f'v_lshlrev_b32 v{T1}, 16, v{src}')
                            else:
                                A(f'v_and_b32 v{T1}, 0xffff0000, v{src}')
                            A(f'v_add_f32 v{E+e}, v{E+e}, v{T1}')
            A(f's_mov_b32 s{S_LOOP}, {WS_BASE + j*32*2304}')
            for q in range(4):
                A(f'buffer_store_dwordx4 {v(E+4*q,4)}, v{VO}, {WS}, s{S_LOOP} offen offset:{128*i+32*q}{sc}')


SRD_O = 44


def emit_epi_out(A, c):
    NI, NJ = c.NI, c.NJ
    lane = V_LANE
    WS = f's[{SRD_WS}:{SRD_WS+3}]'
    t0, t1 = V_T, V_T + 1
    VO, VX = V_T + 2, EP + 60
    A(f'''
    s_lshr_b32 s{S_T1}, s{S_WAVE}, 1
    s_and_b32 s{S_T2}, s{S_WAVE}, 1
    s_mul_i32 s{S_T1}, s{S_T1}, {NJ*32}
    s_add_u32 s{S_T1}, s{S_T1}, s{S_T0}
    s_mul_i32 s{S_T2}, s{S_T2}, {NI*32}
    s_add_u32 s{S_T2}, s{S_T2}, s{S_C0}
    v_and_b32 v{t0}, 31, v{lane}
    v_add_u32 v{t0}, s{S_T1}, v{t0}
    v_lshrrev_b32 v{t1}, 5, v{lane}
    v_lshlrev_b32 v{t1}, 2, v{t1}
    v_add_u32 v{VO}, s{S_T2}, v{t1}
    v_mul_u32_u24 v{VX}, 2304, v{t0}
    v_lshl_add_u32 v{VX}, v{VO}, 2, v{VX}
    v_add_u32 v{VO}, v{VO}, v{t1}
    v_lshlrev_b32 v{VO}, 1, v{VO}
    v_mul_u32_u24 v{t0}, 1152, v{t0}
    v_add_u32 v{VO}, v{VO}, v{t0}
    ''')
    for i in range(NI):
        for j in range(NJ):
            ab = 16 * (i * NJ + j)
            E = EP + 20 * (j & 1)
            XV = EP + 40
            A(f's_mov_b32 s{S_LOOP}, {WS_BASE + j*32*2304}')
            for q in range(4):
                A(f'buffer_load_dwordx4 {v(XV+4*q,4)}, v{VX}, {WS}, s{S_LOOP} offen offset:{128*i+32*q}')
            for e in range(16):
                A(f'v_accvgpr_read_b32 v{E+e}, a{ab+e}')
            for e in range(16):
                A(f'v_add_f32 v{E+e}, v{E+e}, v{XV+e}')
            for u in range(2):
                R = E + 8 * u
                A(f'''
                v_cvt_pk_bf16_f32 v{R}, v{E+8*u}, v{E+8*u+1}
                v_cvt_pk_bf16_f32 v{R+1}, v{E+8*u+2}, v{E+8*u+3}
                v_cvt_pk_bf16_f32 v{R+2}, v{E+8*u+4}, v{E+8*u+5}
                v_cvt_pk_bf16_f32 v{R+3}, v{E+8*u+6}, v{E+8*u+7}
                v_permlane32_swap_b32 v{R}, v{R+2}
                v_permlane32_swap_b32 v{R+1}, v{R+3}
                ''')
            A(f's_mov_b32 s{S_LOOP}, {j*32*1152}')
            for u in range(2):
                A(f'buffer_store_dwordx4 {v(E+8*u,4)}, v{VO}, s[{SRD_O}:{SRD_O+3}], s{S_LOOP} offen offset:{64*i+32*u}')
```

```python
import sys, os
sys.path.insert(0, os.path.dirname(os.path.abspath(__file__)))
from asmlib import Asm
from layout import *

REF = 'cdna_kernels/' + NAME + '.s.ref'


def header_comment():
    lines = []
    for ln in open(REF).read().split('\n'):
        if ln.startswith('; Override launch') or ln.startswith('; grid=ceil') or ln.startswith('; @launch'):
            continue
        if ln.startswith(';'):
            lines.append(ln)
        else:
            break
    return '\n'.join(lines) + '\n'


def descriptor(name, vgpr=256, accum=256, sgpr=102):
    return f'''.amdhsa_kernel {name}
  .amdhsa_next_free_vgpr {vgpr}
  .amdhsa_next_free_sgpr {sgpr}
  .amdhsa_accum_offset {accum}
  .amdhsa_group_segment_fixed_size 0
  .amdhsa_kernarg_size 120
  .amdhsa_user_sgpr_count 2
  .amdhsa_user_sgpr_kernarg_segment_ptr 1
  .amdhsa_system_sgpr_workgroup_id_x 1
.end_amdhsa_kernel
'''


def build(kernels, launches):
    out = header_comment()
    if len(launches) == 1 and launches[0][0] == NAME + '_kernel':
        n, g, b, lds = launches[0]
        out += f'; @launch grid=({g},1,1) block=({b},1,1) lds={lds}\n'
    else:
        for n, g, b, lds in launches:
            out += f'; @launch kernel={n} grid=({g},1,1) block=({b},1,1) lds={lds}\n'
    out += '.amdgcn_target "amdgcn-amd-amdhsa--gfx950"\n.text\n'
    total = 0
    for name, fn, vg, acc in kernels:
        A = Asm()
        fn(A, name)
        A.finalize()
        total += A.count()
        out += f'.globl {name}\n.p2align 8\n.type {name},@function\n'
        out += A.text()
    out += '.section .rodata,"a"\n'
    for name, fn, vg, acc in kernels:
        out += '.p2align 6\n' + descriptor(name, vg, acc)
    return out, total
```

```python
from asmlib import Asm, v, a, s, r
from layout import *
import gemm as G
from gemm import GemmCfg, f2u


def common_entry(A, nwg, exit_label):
    A(f'''
    s_cmp_ge_u32 s2, {nwg}
    s_cbranch_scc1 {exit_label}
    s_load_dwordx2 s[{G.SRD_WS}:{G.SRD_WS+1}], s[0:1], {KA_WS}
    v_lshrrev_b32 v1, 6, v0
    v_readfirstlane_b32 s{G.S_WAVE}, v1
    v_and_b32 v0, 63, v0
    s_mov_b32 s{G.SRD_WS+2}, {WS_SIZE}
    s_mov_b32 s{G.SRD_WS+3}, 0x20000
    s_mov_b32 s{G.SRD_W+3}, 0x20000
    s_mov_b32 s{G.SRD_B+3}, 0x20000
    s_mov_b32 s{G.SRD_X+3}, 0x20000
    ''')


def emit_ln_rows(A, s_row0, sc1=False):
    sc = ' sc1' if sc1 else ''
    lane = 0
    D = 16
    Fv = 52
    t0, t1, t2, t3 = 2, 3, 4, 5
    VA = 6
    X = f's[{G.SRD_X}:{G.SRD_X+3}]'
    WS = f's[{G.SRD_WS}:{G.SRD_WS+3}]'
    A(f'''
    v_lshrrev_b32 v{t0}, 3, v{lane}
    v_add_u32 v{t0}, s{s_row0}, v{t0}
    v_mul_u32_u24 v{t0}, 1152, v{t0}
    v_and_b32 v{t1}, 7, v{lane}
    v_lshl_add_u32 v{VA}, v{t1}, 4, v{t0}
    ''')
    for i in range(9):
        A(f'buffer_load_dwordx4 {v(D+4*i,4)}, v{VA}, {X}, 0 offen offset:{128*i}')
    for i in range(36):
        A(f'v_lshlrev_b32 v{Fv+2*i}, 16, v{D+i}')
        A(f'v_and_b32 v{Fv+2*i+1}, 0xffff0000, v{D+i}')

    def red8(x):
        A(f'''
        v_add_f32_dpp v{x}, v{x}, v{x} quad_perm:[1,0,3,2] row_mask:0xf bank_mask:0xf
        v_add_f32_dpp v{x}, v{x}, v{x} quad_perm:[2,3,0,1] row_mask:0xf bank_mask:0xf
        v_add_f32_dpp v{x}, v{x}, v{x} row_half_mirror row_mask:0xf bank_mask:0xf
        ''')
    A(f'v_add_f32 v{t0}, v{Fv}, v{Fv+1}')
    A(f'v_add_f32 v{t1}, v{Fv+2}, v{Fv+3}')
    for i in range(4, 72, 2):
        A(f'v_add_f32 v{t0}, v{t0}, v{Fv+i}')
        A(f'v_add_f32 v{t1}, v{t1}, v{Fv+i+1}')
    A(f'v_add_f32 v{t0}, v{t0}, v{t1}')
    red8(t0)
    A(f'v_mul_f32 v{t0}, {f2u(1.0/576):#x}, v{t0}')
    A(f'v_mov_b32 v{t1}, 0')
    A(f'v_mov_b32 v{t2}, 0')
    for i in range(0, 72, 2):
        A(f'v_sub_f32 v{t3}, v{Fv+i}, v{t0}')
        A(f'v_fma_f32 v{t1}, v{t3}, v{t3}, v{t1}')
        A(f'v_sub_f32 v{7}, v{Fv+i+1}, v{t0}')
        A(f'v_fma_f32 v{t2}, v{7}, v{7}, v{t2}')
    A(f'v_add_f32 v{t1}, v{t1}, v{t2}')
    red8(t1)
    A(f'v_mul_f32 v{t1}, {f2u(1.0/576):#x}, v{t1}')
    def rnd(x):
        A(f'v_cvt_pk_bf16_f32 v{x}, v{x}, v{x}')
        A(f'v_lshlrev_b32 v{x}, 16, v{x}')
    rnd(t0)
    rnd(t1)
    A(f'v_add_f32 v{t1}, {f2u(1e-5):#x}, v{t1}')
    rnd(t1)
    A(f'v_sqrt_f32 v{t1}, v{t1}')
    rnd(t1)
    A(f'v_rcp_f32 v{t1}, v{t1}')
    for i in range(0, 72, 2):
        A(f'v_sub_f32 v{Fv+i}, v{Fv+i}, v{t0}')
        A(f'v_sub_f32 v{Fv+i+1}, v{Fv+i+1}, v{t0}')
        A(f'v_cvt_pk_bf16_f32 v{t2}, v{Fv+i}, v{Fv+i+1}')
        A(f'v_lshlrev_b32 v{Fv+i}, 16, v{t2}')
        A(f'v_and_b32 v{Fv+i+1}, 0xffff0000, v{t2}')
        A(f'v_mul_f32 v{Fv+i}, v{Fv+i}, v{t1}')
        A(f'v_mul_f32 v{Fv+i+1}, v{Fv+i+1}, v{t1}')
        A(f'v_cvt_pk_bf16_f32 v{D+i//2}, v{Fv+i}, v{Fv+i+1}')
    for i in range(9):
        A(f'buffer_store_dwordx4 {v(D+4*i,4)}, v{VA}, {WS}, 0 offen offset:{128*i}{sc}')


def emit_prep(A, name):
    A.label(name)
    common_entry(A, 64, name + '_exit')
    A(f'''
    s_load_dwordx2 s[{G.SRD_X}:{G.SRD_X+1}], s[0:1], {KA_X}
    s_mov_b32 s{G.SRD_X+2}, {2048*1152}
    s_lshl_b32 s16, s2, 5
    s_lshl_b32 s17, s{G.S_WAVE}, 3
    s_add_u32 s16, s16, s17
    s_waitcnt lgkmcnt(0)
    ''')
    assert WS_XN == 0
    emit_ln_rows(A, 16)
    A.label(name + '_exit')
    A('s_endpgm')


C1 = GemmCfg(4, 4, 9, 2, 1152, 'rm')


def emit_gemm1_task(A, name, s_cb, s_rb, c=C1):
    L = lambda x: f'{name}_{x}'
    A(f'''
    s_lshr_b32 s{G.S_T1}, s{s_cb}, 4
    s_min_u32 s{G.S_T1}, s{G.S_T1}, 3
    s_lshl_b32 s{G.S_T2}, s{G.S_T1}, 3
    s_add_u32 s{G.S_T2}, s{G.S_T2}, {KA_WQ}
    s_cmp_eq_u32 s{G.S_T1}, 3
    s_cselect_b32 s{G.S_T2}, {KA_W1}, s{G.S_T2}
    s_load_dwordx2 s[{G.SRD_W}:{G.SRD_W+1}], s[0:1], s{G.S_T2}
    s_load_dwordx2 s[{G.SRD_B}:{G.SRD_B+1}], s[0:1], {KA_B1}
    s_mov_b32 s{G.SRD_B+2}, {4608*2}
    s_mov_b32 s{G.S_LDW}, 8192
    s_cselect_b32 s{G.S_LDW}, 9216, s{G.S_LDW}
    s_mul_i32 s{G.SRD_W+2}, s{G.S_LDW}, 576
    s_lshl_b32 s{G.S_K0}, s{G.S_T1}, 4
    s_sub_u32 s{G.S_C0}, s{s_cb}, s{G.S_K0}
    s_lshl_b32 s{G.S_C0}, s{G.S_C0}, 8
    s_lshl_b32 s{G.S_WOFF}, s{G.S_C0}, 1
    s_mul_i32 s{G.S_T0}, s{s_rb}, {c.TT}
    s_mul_i32 s{G.S_XOFF}, s{G.S_T0}, 1152
    s_add_u32 s{G.S_XOFF}, s{G.S_XOFF}, {WS_XN}
    s_mov_b32 s43, s{G.S_T1}
    s_waitcnt lgkmcnt(0)
    ''')
    G.emit_gemm_setup(A, c)
    A(f'''
    s_cmp_eq_u32 s43, 2
    s_cbranch_scc1 {L('vt')}
    ''')
    G.emit_gemm_main(A, c, False, L('m0'))
    A(f'''
    s_cmp_eq_u32 s43, 3
    s_cbranch_scc1 {L('h')}
    s_lshl_b32 s{G.S_OUT}, s43, 24
    s_add_u32 s{G.S_OUT}, s{G.S_OUT}, {WS_Q}
    s_mov_b32 s{G.S_LDO}, 8192
    s_lshl_b32 s{G.S_T1}, s{G.S_T0}, 13
    s_add_u32 s{G.S_OUT}, s{G.S_OUT}, s{G.S_T1}
    s_add_u32 s{G.S_OUT}, s{G.S_OUT}, s{G.S_WOFF}
    ''')
    assert WS_K - WS_Q == 1 << 24
    G.emit_epi_bf16(A, c, False, False, L('e0'))
    A(f's_branch {L("done")}')
    A.label(L('h'))
    A(f'''
    s_mov_b32 s{G.S_LDO}, 9216
    s_mul_i32 s{G.S_OUT}, s{G.S_T0}, 9216
    s_add_u32 s{G.S_OUT}, s{G.S_OUT}, {WS_H}
    s_add_u32 s{G.S_OUT}, s{G.S_OUT}, s{G.S_WOFF}
    ''')
    G.emit_epi_bf16(A, c, False, True, L('e1'))
    A(f's_branch {L("done")}')
    A.label(L('vt'))
    G.emit_gemm_main(A, c, True, L('m1'))
    A(f'''
    s_mov_b32 s{G.S_LDO}, 64
    s_lshl_b32 s{G.S_OUT}, s{G.S_C0}, 6
    s_lshl_b32 s{G.S_T1}, s{G.S_T0}, 13
    s_add_u32 s{G.S_OUT}, s{G.S_OUT}, s{G.S_T1}
    s_add_u32 s{G.S_OUT}, s{G.S_OUT}, {WS_VT}
    ''')
    G.emit_epi_bf16(A, c, True, False, L('e2'))
    A.label(L('done'))


def emit_gemm1(A, name):
    A.label(name)
    common_entry(A, 528, name + '_exit')
    A(f'''
    s_and_b32 s44, s2, 7
    s_lshr_b32 s45, s2, 3
    s_mul_i32 s44, s44, 66
    s_add_u32 s44, s44, s45
    s_and_b32 s45, s44, 7
    s_lshr_b32 s44, s44, 3
    ''')
    emit_gemm1_task(A, name, 44, 45)
    A.label(name + '_exit')
    A('s_endpgm')


C2 = GemmCfg(3, 2, 72, 3, 9216, 'base')


def emit_ffn2_task(A, name, s_cb, s_rb, c=C2):
    A(f'''
    s_load_dwordx2 s[{G.SRD_W}:{G.SRD_W+1}], s[0:1], {KA_W2}
    s_load_dwordx2 s[{G.SRD_B}:{G.SRD_B+1}], s[0:1], {KA_B2}
    s_load_dwordx2 s[{G.SRD_X}:{G.SRD_X+1}], s[0:1], {KA_X}
    s_mov_b32 s{G.SRD_B+2}, {576*2}
    s_mov_b32 s{G.SRD_X+2}, {2048*1152}
    s_mov_b32 s{G.SRD_W+2}, {4608*1152}
    s_mov_b32 s{G.S_LDW}, 1152
    s_mul_i32 s{G.S_C0}, s{s_cb}, 192
    s_lshl_b32 s{G.S_WOFF}, s{G.S_C0}, 1
    s_mul_i32 s{G.S_T0}, s{s_rb}, {c.TT}
    s_mul_i32 s{G.S_XOFF}, s{G.S_T0}, 9216
    s_add_u32 s{G.S_XOFF}, s{G.S_XOFF}, {WS_H}
    s_waitcnt lgkmcnt(0)
    ''')
    G.emit_gemm_setup(A, c)
    G.emit_gemm_main(A, c, False, name + '_m')
    G.emit_epi_base(A, c)


def emit_ffn2(A, name):
    A.label(name)
    common_entry(A, 48, name + '_exit')
    A(f'''
    s_and_b32 s45, s2, 15
    s_lshr_b32 s44, s2, 4
    ''')
    emit_ffn2_task(A, name, 44, 45)
    A.label(name + '_exit')
    A('s_endpgm')


import attn as AT


def emit_attn(A, name):
    A.label(name)
    common_entry(A, 512, name + '_exit')
    A(f'''
    s_lshr_b32 s44, s2, 3
    s_and_b32 s45, s2, 7
    s_lshl_b32 s45, s45, 2
    s_add_u32 s45, s45, s{G.S_WAVE}
    s_waitcnt lgkmcnt(0)
    ''')
    AT.emit_attn_setup(A, G.S_WAVE)
    AT.emit_attn_task(A, 44, 45)
    A.label(name + '_exit')
    A('s_endpgm')


C3 = GemmCfg(3, 2, 64, 3, 8192, 'out')


def emit_outp(A, name, c=C3):
    A.label(name)
    common_entry(A, 48, name + '_exit')
    A(f'''
    s_and_b32 s49, s2, 15
    s_lshr_b32 s48, s2, 4
    s_load_dwordx2 s[{G.SRD_W}:{G.SRD_W+1}], s[0:1], {KA_WO}
    s_load_dwordx2 s[{G.SRD_O}:{G.SRD_O+1}], s[0:1], {KA_OUT}
    s_mov_b32 s{G.SRD_O+2}, {2048*1152}
    s_mov_b32 s{G.SRD_O+3}, 0x20000
    s_mov_b32 s{G.SRD_W+2}, {4096*1152}
    s_mov_b32 s{G.S_LDW}, 1152
    s_mul_i32 s{G.S_C0}, s48, 192
    s_lshl_b32 s{G.S_WOFF}, s{G.S_C0}, 1
    s_mul_i32 s{G.S_T0}, s49, {c.TT}
    s_lshl_b32 s{G.S_XOFF}, s{G.S_T0}, 13
    s_add_u32 s{G.S_XOFF}, s{G.S_XOFF}, {WS_O}
    s_waitcnt lgkmcnt(0)
    ''')
    G.emit_gemm_setup(A, c)
    G.emit_gemm_main(A, c, False, name + '_m')
    G.emit_epi_out(A, c)
    A.label(name + '_exit')
    A('s_endpgm')
```

```python
S, D, H, DH, F = 2048, 576, 32, 128, 4608
NSEG = 64
WS_XN = 0x0000000
WS_Q = 0x0400000
WS_K = 0x1400000
WS_VT = 0x2400000
WS_H = 0x3400000
WS_O = 0x4600000
WS_KM = 0x5600000
WS_VM = 0x5A00000
WS_PART = 0x6200000
PART_SLOT = 32 * 9216
WS_MEM = 0x6300000
MEM_SLOT = 16384
WS_STAMP = 0x6400000
WS_BASE = 0x6500000
WS_FLAG = 0x6A00000
WS_PF = WS_FLAG
WS_AF = WS_FLAG + 4096
WS_SIZE = 0x10000000
NAME = 'parallel_sum__memory_aug_recurrent_mem_tr__dense_activation_gelu__prompt'
KA_X, KA_MEM0, KA_WQ, KA_WK, KA_WV, KA_WO, KA_SEG, KA_BX, KA_W1, KA_B1, KA_W2, KA_B2, KA_OUT, KA_DBG, KA_WS = \
    [8 * i for i in range(15)]
```

```python
import sys
from gen import *
from kernels import *
from chain import emit_chain, ChainCfg
cfg = ChainCfg()
txt, n = build([('prep_kernel', emit_prep, 256, 256), ('gemm1_kernel', emit_gemm1, 512, 256),
                ('chain_kernel', lambda A, name: emit_chain(A, cfg, name), 512, 256),
                ('ffn2_kernel', emit_ffn2, 512, 256), ('attn_kernel', emit_attn, 256, 256), ('outp_kernel', emit_outp, 512, 256)],
               [('prep_kernel', 64, 256, 0), ('gemm1_kernel', 528, 256, 131072), ('chain_kernel', 256, 256, 163840),
                ('ffn2_kernel', 48, 256, 3*40960), ('attn_kernel', 512, 256, 32768), ('outp_kernel', 48, 256, 3*40960)])
out = sys.argv[1] if len(sys.argv) > 1 else 'full_test.s'
open(out, 'w').write(txt)
print('instrs', n, 'bytes', len(txt))
```

```python
import re

REG_RE = re.compile(r'^(v|a|s)(\d+)$')
RANGE_RE = re.compile(r'^(v|a|s)\[(\d+):(\d+)\]$')


def regs_of(tok):
    tok = tok.strip()
    neg = tok.lstrip('-|').rstrip('|')
    m = REG_RE.match(neg)
    if m:
        return {(m.group(1), int(m.group(2)))}
    m = RANGE_RE.match(neg)
    if m:
        return {(m.group(1), i) for i in range(int(m.group(2)), int(m.group(3)) + 1)}
    if neg == 'vcc':
        return {('s', 106), ('s', 107)}
    if neg == 'vcc_lo':
        return {('s', 106)}
    if neg == 'vcc_hi':
        return {('s', 107)}
    if neg == 'exec':
        return {('s', 126), ('s', 127)}
    if neg == 'exec_lo':
        return {('s', 126)}
    if neg == 'exec_hi':
        return {('s', 127)}
    if neg == 'm0':
        return {('s', 124)}
    if neg == 'scc':
        return {('s', 253)}
    return set()


def v(i, n=1):
    return f'v{i}' if n == 1 else f'v[{i}:{i + n - 1}]'


def a(i, n=1):
    return f'a{i}' if n == 1 else f'a[{i}:{i + n - 1}]'


def s(i, n=1):
    return f's{i}' if n == 1 else f's[{i}:{i + n - 1}]'


def r(i, n=1):
    if i < 256:
        assert i + n <= 256, (i, n)
        return v(i, n)
    return a(i - 256, n)


TRANS = ('v_exp_f32', 'v_log_f32', 'v_rcp_f32', 'v_rsq_f32', 'v_sqrt_f32', 'v_sin_f32', 'v_cos_f32',
         'v_rcp_iflag_f32')
EXEC = {('s', 126), ('s', 127)}
VCC = {('s', 106), ('s', 107)}


class Instr:
    def __init__(self, text, tag=None):
        self.text = text.strip()
        self.tag = tag
        t = self.text.split(';')[0].strip()
        parts = t.split(None, 1)
        self.op = parts[0]
        rest = parts[1] if len(parts) > 1 else ''
        ops, cur, depth = [], '', 0
        for ch in rest:
            if ch in '[(':
                depth += 1
            if ch in '])':
                depth -= 1
            if ch == ',' and depth == 0:
                ops.append(cur.strip())
                cur = ''
            else:
                cur += ch
        if cur.strip():
            ops.append(cur.strip())
        self.mods = ''
        if ops:
            last = ops[-1].split(None, 1)
            if len(last) > 1:
                ops[-1] = last[0]
                self.mods = last[1]
        self.ops = ops
        self.classify()
        if tag == 'dummy':
            self.dst = set()
        if tag == 'stamp':
            self.dst = set()
            self.lgkm = 0
            self.smem = False

    def classify(self):
        op, ops = self.op, self.ops
        R = [regs_of(o) for o in ops]
        self.dst, self.src = set(), set()
        self.kind = 'other'
        self.passes = 0
        self.srcC = set()
        self.srcAB = set()
        self.store_data = set()
        self.is_dpp = ('row_' in self.mods or 'quad_perm' in self.mods or 'wave_' in self.mods
                       or op.endswith('_dpp') or 'row_bcast' in self.mods)
        self.vm = False
        self.lgkm = 0
        self.smem = False
        self.wide_store = False
        if op == '_keep':
            self.kind = 'keep'
        elif op.startswith('v_mfma') or op.startswith('v_smfmac'):
            self.kind = 'mfma'
            self.passes = 8 if '32x32' in op else 4
            self.dst = R[0]
            if op.startswith('v_smfmac'):
                self.srcC = R[0]
                self.srcAB = R[1] | R[2] | R[3]
            else:
                self.srcC = R[3]
                self.srcAB = R[1] | R[2]
            self.src = self.srcC | self.srcAB
            self.dtok = ops[0]
            self.ctok = ops[0] if op.startswith('v_smfmac') else ops[3]
        elif op.startswith('v_'):
            self.kind = 'valu'
            base = op.replace('_e32', '').replace('_e64', '').replace('_dpp', '').replace('_sdwa', '')
            self.base = base
            if base.startswith('v_cmpx'):
                self.dst = set(EXEC) | R[0]
                self.src = set().union(*R[1:]) if len(R) > 1 else set()
            elif base.startswith('v_cmp'):
                self.dst = R[0]
                self.src = set().union(*R[1:])
            elif base in ('v_permlane32_swap_b32', 'v_permlane16_swap_b32', 'v_swap_b32'):
                self.dst = R[0] | R[1]
                self.src = R[0] | R[1]
            elif base in ('v_add_co_u32', 'v_sub_co_u32', 'v_addc_co_u32', 'v_subb_co_u32', 'v_subrev_co_u32',
                          'v_mad_u64_u32', 'v_div_scale_f32'):
                self.dst = R[0] | R[1]
                self.src = set().union(*R[2:])
            elif base == 'v_nop':
                pass
            else:
                self.dst = R[0]
                self.src = set().union(*R[1:]) if len(R) > 1 else set()
                if base in ('v_fmac_f32', 'v_mac_f32', 'v_pk_fmac_f16', 'v_dot2c_f32_bf16', 'v_writelane_b32',
                            'v_fmac_f64') or self.is_dpp or 'op_sel' in self.mods and False:
                    self.src |= R[0]
                if base == 'v_cndmask_b32' and len(ops) == 3:
                    self.src |= VCC
                if base in ('v_cvt_pk_bf16_f32',):
                    pass
            self.src_all = self.src
            self.trans = base in TRANS
        elif op.startswith('ds_'):
            self.kind = 'ds'
            self.lgkm = 1
            if op.startswith('ds_read') or op.startswith('ds_bpermute') or op.startswith('ds_permute') \
                    or op.startswith('ds_swizzle') or '_rtn' in op:
                self.dst = R[0]
                self.src = set().union(*R[1:])
            else:
                self.src = set().union(*R)
        elif op.startswith('buffer_') or op.startswith('global_'):
            self.kind = 'vmem'
            self.vm = True
            mods = self.mods.split()
            is_lds = 'lds' in mods or op.startswith('global_load_lds')
            if 'load' in op:
                if is_lds:
                    self.src = set().union(*R) | {('s', 124)}
                    self.lds_dma = True
                else:
                    self.dst = R[0]
                    self.src = set().union(*R[1:])
            elif 'store' in op:
                self.src = set().union(*R)
                di = 0 if op.startswith('buffer_') else 1
                self.store_data = R[di]
                self.wide_store = ('x3' in op or 'x4' in op)
            elif 'atomic' in op:
                if 'sc0' in mods:
                    self.dst = R[0]
                    self.src = set().union(*R) if op.startswith('buffer_') else set().union(*R[1:])
                else:
                    self.src = set().union(*R)
            elif op in ('buffer_wbl2', 'buffer_inv'):
                pass
            else:
                raise ValueError(self.text)
        elif op.startswith('s_load') or op.startswith('s_buffer_load') or op in ('s_memtime', 's_memrealtime'):
            self.kind = 'smem'
            self.smem = True
            self.lgkm = 1 if op.endswith('dword') else 2
            self.dst = R[0]
            self.src = set().union(*R[1:]) if len(R) > 1 else set()
        elif op == 's_waitcnt':
            self.kind = 'wait'
            m = re.search(r'vmcnt\((\d+)\)', t_all(self))
            self.w_vm = int(m.group(1)) if m else None
            m = re.search(r'lgkmcnt\((\d+)\)', t_all(self))
            self.w_lgkm = int(m.group(1)) if m else None
        elif op == 's_nop':
            self.kind = 'nop'
            self.n = int(ops[0]) + 1
        elif op.startswith('s_cbranch') or op == 's_branch':
            self.kind = 'branch'
            self.target = ops[0]
            if 'vcc' in op:
                self.src = set(VCC)
            elif 'exec' in op:
                self.src = set(EXEC)
        elif op in ('s_barrier', 's_endpgm', 's_sleep', 's_setprio', 's_sethalt'):
            self.kind = 'sctl'
        elif op.startswith('s_'):
            self.kind = 'salu'
            if op.startswith('s_cmp') or op.startswith('s_bitcmp'):
                self.src = set().union(*R)
            elif op == 's_setreg_b32' or op == 's_setreg_imm32_b32':
                self.src = set().union(*R)
            else:
                self.dst = R[0] if R else set()
                self.src = set().union(*R[1:]) if len(R) > 1 else set()
                if 'saveexec' in op:
                    self.dst |= EXEC
                    self.src |= EXEC
                if op in ('s_addk_i32', 's_mulk_i32', 's_bitset0_b32', 's_bitset1_b32', 's_cmov_b32', 's_cmov_b64'):
                    self.src |= R[0]
        else:
            raise ValueError('unknown op ' + self.text)


def t_all(i):
    return i.text.split(';')[0]


class Label:
    def __init__(self, name):
        self.name = name


class Raw:
    def __init__(self, text):
        self.text = text


def vg(regs):
    return {x for x in regs if x[0] in 'va'}


def sg(regs):
    return {x for x in regs if x[0] == 's'}


def needed_nops(hist, ins):
    need = 0
    dist = 0
    if ins.kind == 'keep':
        return 0
    for p in reversed(hist):
        if p.kind == 'keep':
            continue
        if dist > 24:
            break
        req = 0
        if p.kind == 'valu':
            pv, ps = vg(p.dst), sg(p.dst)
            if ins.kind == 'mfma' and (pv & ins.src):
                req = max(req, 2)
            if ins.kind == 'mfma' and (ps & EXEC):
                req = max(req, 4)
            if ins.kind == 'valu':
                if ins.is_dpp and (pv & vg(ins.src)):
                    req = max(req, 2)
                if ins.is_dpp and (ps & EXEC):
                    req = max(req, 5)
                if ins.base in ('v_permlane32_swap_b32', 'v_permlane16_swap_b32') and (pv & ins.src):
                    req = max(req, 2)
                if ins.base in ('v_permlane32_swap_b32', 'v_permlane16_swap_b32') and (ps & EXEC):
                    req = max(req, 4)
                if ins.base in ('v_readlane_b32', 'v_readfirstlane_b32') and (pv & ins.src):
                    req = max(req, 1)
                if ins.base in ('v_readlane_b32', 'v_readfirstlane_b32', 'v_writelane_b32'):
                    if ps & EXEC:
                        req = max(req, 4)
                    if ins.base != 'v_readfirstlane_b32' and len(ins.ops) > 2 and (ps & regs_of(ins.ops[2])):
                        req = max(req, 4)
                if ps & sg(ins.src):
                    req = max(req, 2)
                if p.trans and not ins.trans and (pv & ins.src):
                    req = max(req, 1)
                if p.trans and ins.trans and (pv & ins.src):
                    req = max(req, 1)
                if ('op_sel' in p.mods or p.op.endswith('_sdwa') or 'dst_sel' in p.mods) and (pv & (ins.src | ins.dst)):
                    req = max(req, 1)
            if ins.kind == 'vmem' and (ps & sg(ins.src)):
                req = max(req, 5)
            if ins.kind in ('vmem', 'ds') and p.trans and (pv & ins.src):
                req = max(req, 1)
            if ins.kind == 'branch' and (ps & ins.src):
                req = max(req, 1)
            if ins.kind == 'salu' and (ps & ins.src):
                req = max(req, 1)
        elif p.kind == 'mfma':
            P = p.passes
            d = p.dst
            if ins.kind == 'mfma':
                if d & ins.srcAB:
                    req = max(req, 8 if P == 4 else 12)
                if d & ins.srcC:
                    same = (ins.ctok == p.dtok and ins.passes == p.passes and ins.op == p.op)
                    req = max(req, 0 if same else (6 if P == 4 else 10))
                elif d & ins.dst:
                    req = max(req, 6 if P == 4 else 10)
            elif ins.kind in ('valu', 'ds', 'vmem'):
                if d & (ins.src | ins.dst):
                    req = max(req, 8 if P == 4 else 12)
                if ins.kind == 'valu' and (p.srcC & ins.dst):
                    req = max(req, 3 if P == 4 else 7)
        elif p.kind == 'vmem':
            if p.wide_store and ins.kind == 'valu' and (p.store_data & ins.dst):
                req = max(req, 2)
            elif p.wide_store and (p.store_data & ins.dst):
                req = max(req, 1)
        elif p.kind == 'ds':
            if p.op.startswith('ds_write') and ('b128' in p.op or 'b96' in p.op) and ins.kind == 'valu' \
                    and (p.src & ins.dst):
                req = max(req, 2)
        elif p.kind == 'salu':
            if ('s', 124) in p.dst and (ins.kind == 'vmem' and getattr(ins, 'lds_dma', False)):
                req = max(req, 1)
            if p.op.startswith('s_setreg') and ins.op.startswith('s_getreg'):
                req = max(req, 2)
        need = max(need, req - dist)
        dist += p.n if p.kind == 'nop' else 1
    return need


class WaitState:
    def __init__(self):
        self.vm = []
        self.lg = []

    def copy(self):
        w = WaitState()
        w.vm = list(self.vm)
        w.lg = list(self.lg)
        return w

    def need(self, ins):
        touch = ins.src | ins.dst
        nv = None
        for i, d in enumerate(self.vm):
            if d & touch:
                n = len(self.vm) - 1 - i
                nv = n if nv is None else min(nv, n)
        nl = None
        has_smem = any(x[2] for x in self.lg)
        for i, (d, c, sm) in enumerate(self.lg):
            if d & touch:
                if has_smem:
                    n = 0
                else:
                    n = sum(x[1] for x in self.lg[i + 1:])
                nl = n if nl is None else min(nl, n)
        return nv, nl

    def apply_wait(self, nv, nl):
        if nv is not None:
            while len(self.vm) > nv:
                self.vm.pop(0)
        if nl is not None:
            if any(x[2] for x in self.lg):
                if nl == 0:
                    self.lg = []
            else:
                while sum(x[1] for x in self.lg) > nl:
                    self.lg.pop(0)

    def issue(self, ins):
        if ins.kind == 'wait':
            self.apply_wait(ins.w_vm, ins.w_lgkm)
        if ins.vm:
            self.vm.append(set(ins.dst))
        if ins.lgkm:
            self.lg.append((set(ins.dst), ins.lgkm, ins.smem))


class Asm:
    def __init__(self):
        self.items = []
        self.uid = 0

    def __call__(self, text, tag=None):
        for line in text.split('\n'):
            line = line.strip()
            if not line or line.startswith(';'):
                if line:
                    self.items.append(Raw('\t' + line))
                continue
            if line.endswith(':'):
                self.items.append(Label(line[:-1]))
                continue
            self.items.append(Instr(line, tag))

    def label(self, name):
        self.items.append(Label(name))

    SYM_RE = re.compile(r'%([A-Za-z_][A-Za-z0-9_]*)(?:\+(\d+))?(?::(\d+))?')

    def regalloc(self, start_label, end_label, pool, persist=(), wrap=(), fixed=None, verbose=False, outer=()):
        items = self.items
        idx = {it.name: i for i, it in enumerate(items) if isinstance(it, Label)}
        lo, hi = idx[start_label], idx[end_label]
        size, al2, ment = {}, {}, {}
        for i, it in enumerate(items):
            if not isinstance(it, Instr):
                continue
            for m in self.SYM_RE.finditer(it.text.split(';')[0]):
                n, k, c = m.group(1), int(m.group(2) or 0), int(m.group(3) or 1)
                size[n] = max(size.get(n, 0), k + c)
                if c > 1:
                    assert k % 2 == 0, it.text
                    al2[n] = True
                if lo <= i < hi:
                    ment.setdefault(n, []).append(i)
        loops = []
        for i in range(lo, hi):
            it = items[i]
            if isinstance(it, Instr) and it.kind == 'branch' and it.target in idx:
                tg = idx[it.target]
                if lo < tg <= i and it.target not in outer:
                    loops.append((tg, i))
        iv = {}
        for n in size:
            if n in persist:
                iv[n] = [(lo, hi)]
                continue
            ms = sorted(set(ment.get(n, [])))
            assert ms, f'symbol {n} not mentioned in region'
            if n in wrap:
                gaps = [(ms[j + 1] - ms[j], j) for j in range(len(ms) - 1)]
                g, j = max(gaps)
                iv[n] = [(lo, ms[j]), (ms[j + 1], hi)]
            else:
                a_, b_ = ms[0], ms[-1]
                for (s_, e_) in loops:
                    if a_ < s_ and any(s_ <= x <= e_ for x in ms):
                        b_ = max(b_, e_)
                iv[n] = [(a_, b_)]
        mp = dict(fixed or {})
        busy = {p: [] for p in pool}
        for n, p in mp.items():
            for k in range(size.get(n, 1)):
                if p + k in busy:
                    busy[p + k] += iv.get(n, [(lo, hi)])

        def free(p, ivs):
            for (a_, b_) in ivs:
                for (c_, d_) in busy[p]:
                    if a_ <= d_ and c_ <= b_:
                        return False
            return True
        order = sorted([n for n in size if n not in mp],
                       key=lambda n: (0 if n in persist else 1 if n in wrap else 2, iv[n][0][0], -size[n]))
        for n in order:
            ok = False
            cands = list(pool)
            if size[n] == 1:
                cands = list(reversed(cands))
            elif size[n] >= 4:
                cands = [p for p in cands if p % 4 == 0] + [p for p in cands if p % 4]
            else:
                cands = list(reversed(cands))
            for p in cands:
                if al2.get(n) and p % 2:
                    continue
                if all((p + k) in busy and free(p + k, iv[n]) for k in range(size[n])):
                    mp[n] = p
                    for k in range(size[n]):
                        busy[p + k] += iv[n]
                    ok = True
                    break
            if not ok:
                a0 = iv[n][0][0]
                live = [(m_, size[m_]) for m_ in mp if any(x <= a0 <= y for x, y in iv.get(m_, []))]
                raise RuntimeError(f'regalloc failed for {n} (size {size[n]}) at "{items[a0].text}"; live: {live} total {sum(x[1] for x in live)}')
        if verbose:
            prof = []
            for i in range(lo, hi):
                prof.append(sum(size[n] for n in iv if any(x <= i <= y for x, y in iv[n])))
            print('regalloc max pressure', max(prof), 'of', len(pool))

        def sub(m):
            n, k, c = m.group(1), int(m.group(2) or 0), int(m.group(3) or 1)
            return v(mp[n] + k, c)
        out = []
        for it in items:
            if isinstance(it, Instr) and '%' in it.text:
                code = it.text.split(';')[0]
                out.append(Instr(self.SYM_RE.sub(sub, code), it.tag))
            else:
                out.append(it)
        self.items = out
        return mp

    def raw(self, text):
        self.items.append(Raw(text))

    def new_label(self, base):
        self.uid += 1
        return f'{base}_{self.uid}'

    def _blocks(self):
        idx = {it.name: i for i, it in enumerate(self.items) if isinstance(it, Label)}
        return idx

    def insert_waits(self):
        items = self.items
        idx = self._blocks()
        need_vm = {}
        need_lg = {}

        def sig(w):
            return (tuple(frozenset(d) for d in w.vm), tuple((frozenset(d), c, sm) for d, c, sm in w.lg))

        changed = True
        rounds = 0
        while changed:
            changed = False
            rounds += 1
            assert rounds < 50
            seen = set()
            work = [(e, WaitState()) for e in self.entries()]
            steps = 0
            while work:
                pc, w = work.pop()
                while pc < len(items):
                    it = items[pc]
                    if isinstance(it, Label):
                        k = (pc, sig(w))
                        if k in seen:
                            break
                        seen.add(k)
                        pc += 1
                        continue
                    if isinstance(it, Raw):
                        pc += 1
                        continue
                    steps += 1
                    assert steps < 20_000_000, 'wait analysis exploded'
                    nv, nl = w.need(it)
                    if it.tag == 'nowait':
                        nv = None
                    if it.op == 's_barrier' and it.tag == 'nowait':
                        pass
                    cv, cl = need_vm.get(pc), need_lg.get(pc)
                    if nv is not None and (cv is None or nv < cv):
                        need_vm[pc] = cv = nv
                        changed = True
                    if nl is not None and (cl is None or nl < cl):
                        need_lg[pc] = cl = nl
                        changed = True
                    w.apply_wait(cv, cl)
                    w.issue(it)
                    while w.vm and not w.vm[0]:
                        w.vm.pop(0)
                    while w.lg and not w.lg[0][0] and not w.lg[0][2]:
                        w.lg.pop(0)
                    if it.kind == 'branch':
                        tgt = idx[it.target]
                        if it.op == 's_branch':
                            pc = tgt
                            continue
                        work.append((tgt, w.copy()))
                    if it.op == 's_endpgm':
                        break
                    pc += 1
        out = []
        for pc, it in enumerate(items):
            if pc in need_vm or pc in need_lg:
                parts = []
                if pc in need_vm:
                    assert need_vm[pc] <= 63
                    parts.append(f'vmcnt({need_vm[pc]})')
                if pc in need_lg:
                    parts.append(f'lgkmcnt({min(need_lg[pc], 15)})')
                out.append(Instr('s_waitcnt ' + ' '.join(parts) + ' ; auto'))
            out.append(it)
        self.items = out

    def entries(self):
        e = [0]
        for i, it in enumerate(self.items):
            if isinstance(it, Label) and it.name.endswith('_kernel'):
                e.append(i)
        return e

    def insert_nops(self):
        for _round in range(30):
            items = self.items
            idx = self._blocks()
            need = {}
            seen = set()
            work = [(e, ()) for e in self.entries()]
            H = 26
            while work:
                pc, hist = work.pop()
                hist = list(hist)
                while pc < len(items):
                    it = items[pc]
                    if isinstance(it, Label):
                        k = (pc, tuple((x.text if x.kind == 'nop' else id(x)) for x in hist[-H:]))
                        if k in seen:
                            break
                        seen.add(k)
                        pc += 1
                        continue
                    if isinstance(it, Raw):
                        pc += 1
                        continue
                    n = needed_nops(hist, it)
                    if n > 0:
                        need[pc] = max(need.get(pc, 0), n)
                        hist.append(Instr(f's_nop {min(n,16) - 1}'))
                    hist.append(it)
                    if len(hist) > 4 * H:
                        hist = hist[-H:]
                    if it.kind == 'branch':
                        tgt = idx[it.target]
                        if it.op == 's_branch':
                            pc = tgt
                            continue
                        work.append((tgt, tuple(hist[-H:])))
                    if it.op == 's_endpgm':
                        break
                    pc += 1
            if not need:
                return
            out = []
            for pc, it in enumerate(items):
                if pc in need:
                    n = need[pc]
                    while n > 0:
                        k = min(n, 16)
                        out.append(Instr(f's_nop {k - 1} ; hz'))
                        n -= k
                out.append(it)
            self.items = out
        raise RuntimeError('nop insertion did not converge')

    def finalize(self):
        self.insert_waits()
        self.insert_nops()

    def text(self):
        o = []
        for it in self.items:
            if isinstance(it, Label):
                o.append(it.name + ':')
            elif isinstance(it, Raw):
                o.append(it.text)
            elif it.kind == 'keep':
                continue
            else:
                o.append('\t' + it.text)
        return '\n'.join(o) + '\n'

    def count(self):
        return sum(1 for it in self.items if isinstance(it, Instr) and it.kind != 'keep')
```

```python
from asmlib import Asm, v, a, s, r
from layout import *
import struct, math


def f2u(x):
    return struct.unpack('<I', struct.pack('<f', x))[0]


SC_L2E = f2u(128 ** -0.5 * math.log2(math.e))
NEG_RAW = f2u(-1e9 * math.sqrt(128.0))

SRD_WS = 8
S_MASK = 56
S_A1, S_A2, S_A3, S_A4, S_A5 = 16, 17, 18, 19, 20
S_SC = 21

V_LANE = 0
V_QA = 1
V_KMA = 2
V_VTA = 3
V_VMA = 4
V_LW = 5
V_LR = 6
V_OA = 10
V_T = 11
QF = 16
KF = 48
KMF = 80
VTF = 112
VMF = 144
SS = 160
SM = 176
OA = 192


def emit_attn_setup(A, s_wave, lds_base=0):
    t0, t1, t2 = V_T, V_T + 1, V_T + 2
    A(f'''
    v_and_b32 v{t0}, 31, v{V_LANE}
    v_lshrrev_b32 v{t1}, 5, v{V_LANE}
    v_lshlrev_b32 v{t2}, 4, v{t1}
    v_lshl_add_u32 v{V_QA}, v{t0}, 13, v{t2}
    v_lshl_add_u32 v{V_VTA}, v{t0}, 6, v{t2}
    v_lshl_add_u32 v{V_VMA}, v{t0}, 5, v{t2}
    v_and_b32 v{V_KMA}, 7, v{t0}
    v_lshl_add_u32 v{V_KMA}, v{V_KMA}, 8, v{t2}
    s_lshl_b32 s{S_A1}, s{s_wave}, 13
    s_add_u32 s{S_A1}, s{S_A1}, {lds_base}
    v_and_b32 v{t2}, 15, v{t0}
    v_xor_b32 v{t2}, v{t2}, v{t1}
    v_lshlrev_b32 v{t2}, 4, v{t2}
    v_lshl_add_u32 v{t2}, v{t0}, 8, v{t2}
    v_add_u32 v{V_LW}, s{S_A1}, v{t2}
    v_lshlrev_b32 v{t1}, 2, v{t1}
    v_sub_u32 v{t2}, v{t0}, v{t1}
    ''')
    for i in range(16):
        A(f'v_cmp_le_i32 s[{S_MASK+2*i}:{S_MASK+2*i+1}], {8*(i>>2)+(i&3)}, v{t2}')
    A(f'''
    v_lshrrev_b32 v{t0}, 4, v{V_LANE}
    v_and_b32 v{t1}, 15, v{V_LANE}
    v_xor_b32 v{t2}, v{t0}, v{t1}
    v_lshlrev_b32 v{t2}, 4, v{t2}
    v_lshl_add_u32 v{t2}, v{t0}, 8, v{t2}
    v_add_u32 v{V_LR}, s{S_A1}, v{t2}
    v_xor_b32 v{V_LR+1}, 64, v{V_LR}
    v_xor_b32 v{V_LR+2}, 128, v{V_LR}
    v_xor_b32 v{V_LR+3}, 192, v{V_LR}
    v_lshlrev_b32 v{t1}, 4, v{t1}
    v_lshl_add_u32 v{V_OA}, v{t0}, 13, v{t1}
    s_mov_b32 s{S_SC}, {SC_L2E:#x}
    ''')


def emit_attn_task(A, s_seg, s_head, sc1_in=False, sc1_out=False, poll=None):
    WS = f's[{SRD_WS}:{SRD_WS+3}]'
    si = ' sc1' if sc1_in else ''
    so = ' sc1' if sc1_out else ''
    t0, t1, t2, t3 = V_T, V_T + 1, V_T + 2, V_T + 3
    A(f'''
    s_lshl_b32 s{S_A1}, s{s_seg}, 18
    s_lshl_b32 s{S_A2}, s{s_head}, 8
    s_add_u32 s{S_A1}, s{S_A1}, s{S_A2}
    s_add_u32 s{S_A2}, s{S_A1}, {WS_K}
    s_add_u32 s{S_A5}, s{S_A1}, {WS_O}
    s_add_u32 s{S_A1}, s{S_A1}, {WS_Q}
    s_lshl_b32 s{S_A3}, s{s_head}, 13
    s_lshl_b32 s{S_A4}, s{s_seg}, 18
    s_add_u32 s{S_A3}, s{S_A3}, s{S_A4}
    s_add_u32 s{S_A3}, s{S_A3}, {WS_VT}
    ''')
    for ks in range(8):
        A(f'buffer_load_dwordx4 {v(KF+4*ks,4)}, v{V_QA}, {WS}, s{S_A2} offen offset:{32*ks}{si}')
        A(f'buffer_load_dwordx4 {v(QF+4*ks,4)}, v{V_QA}, {WS}, s{S_A1} offen offset:{32*ks}{si}')
    for eb in range(4):
        for kb in range(2):
            A(f'buffer_load_dwordx4 {v(VTF+8*eb+4*kb,4)}, v{V_VTA}, {WS}, s{S_A3} offen offset:{32*kb}{si}')
        if eb < 3:
            A(f's_add_u32 s{S_A3}, s{S_A3}, {32*64}')
    for ks in range(8):
        cin = '0' if ks == 0 else v(SS, 16)
        A(f'v_mfma_f32_32x32x16_bf16 {v(SS,16)}, {v(KF+4*ks,4)}, {v(QF+4*ks,4)}, {cin}')
    if poll:
        poll()
    A(f'''
    s_lshl_b32 s{S_A1}, s{s_seg}, 16
    s_lshl_b32 s{S_A2}, s{s_head}, 11
    s_add_u32 s{S_A1}, s{S_A1}, s{S_A2}
    s_lshl_b32 s{S_A2}, s{S_A1}, 1
    s_add_u32 s{S_A1}, s{S_A1}, {WS_KM}
    s_add_u32 s{S_A2}, s{S_A2}, {WS_VM}
    ''')
    for ks in range(8):
        A(f'buffer_load_dwordx4 {v(KMF+4*ks,4)}, v{V_KMA}, {WS}, s{S_A1} offen offset:{32*ks}{si}')
    for eb in range(4):
        A(f'buffer_load_dwordx4 {v(VMF+4*eb,4)}, v{V_VMA}, {WS}, s{S_A2} offen offset:{1024*eb}{si}')
    A(f'v_mov_b32 v{t0}, {NEG_RAW:#x}')
    for i in range(16):
        A(f'v_cndmask_b32 v{SS+i}, v{t0}, v{SS+i}, s[{S_MASK+2*i}:{S_MASK+2*i+1}]')
    m = t1
    A(f'v_max3_f32 v{m}, v{SS}, v{SS+1}, v{SS+2}')
    for i in range(3, 15, 2):
        A(f'v_max3_f32 v{m}, v{m}, v{SS+i}, v{SS+i+1}')
    A(f'v_max_f32 v{m}, v{m}, v{SS+15}')
    for ks in range(8):
        cin = '0' if ks == 0 else v(SM, 16)
        A(f'v_mfma_f32_32x32x16_bf16 {v(SM,16)}, {v(KMF+4*ks,4)}, {v(QF+4*ks,4)}, {cin}')
    A(f'''
    v_max3_f32 v{m}, v{m}, v{SM}, v{SM+1}
    v_max3_f32 v{m}, v{m}, v{SM+2}, v{SM+3}
    v_mov_b32 v{t2}, v{m}
    v_permlane32_swap_b32 v{m}, v{t2}
    v_max_f32 v{m}, v{m}, v{t2}
    v_mul_f32 v{m}, s{S_SC}, v{m}
    ''')
    vals = [SM + i for i in range(4)] + [SS + i for i in range(16)]
    for x in vals:
        A(f'v_fma_f32 v{x}, v{x}, s{S_SC}, -v{m}')
    for x in vals:
        A(f'v_exp_f32 v{x}, v{x}')
    l = t1
    A(f'v_add_f32 v{l}, v{vals[0]}, v{vals[1]}')
    A(f'v_add_f32 v{t2}, v{vals[2]}, v{vals[3]}')
    for i in range(4, 20, 2):
        A(f'v_add_f32 v{l}, v{l}, v{vals[i]}')
        A(f'v_add_f32 v{t2}, v{t2}, v{vals[i+1]}')
    A(f'''
    v_add_f32 v{l}, v{l}, v{t2}
    v_mov_b32 v{t2}, v{l}
    v_permlane32_swap_b32 v{l}, v{t2}
    v_add_f32 v{l}, v{l}, v{t2}
    v_rcp_f32 v{l}, v{l}
    ''')
    PM = KF
    PS = KF + 4
    A(f'''
    v_cvt_pk_bf16_f32 v{PM}, v{SM}, v{SM+1}
    v_cvt_pk_bf16_f32 v{PM+1}, v{SM+2}, v{SM+3}
    v_mov_b32 v{PM+2}, v{PM}
    v_mov_b32 v{PM+3}, v{PM+1}
    v_permlane32_swap_b32 v{PM}, v{PM+2}
    v_permlane32_swap_b32 v{PM+1}, v{PM+3}
    ''')
    for kb in range(2):
        R = PS + 4 * kb
        b = SS + 8 * kb
        A(f'''
        v_cvt_pk_bf16_f32 v{R}, v{b}, v{b+1}
        v_cvt_pk_bf16_f32 v{R+1}, v{b+2}, v{b+3}
        v_cvt_pk_bf16_f32 v{R+2}, v{b+4}, v{b+5}
        v_cvt_pk_bf16_f32 v{R+3}, v{b+6}, v{b+7}
        v_permlane32_swap_b32 v{R}, v{R+2}
        v_permlane32_swap_b32 v{R+1}, v{R+3}
        ''')
    for eb in range(4):
        acc = v(OA + 16 * eb, 16)
        A(f'v_mfma_f32_32x32x16_bf16 {acc}, {v(VTF+8*eb,4)}, {v(PS,4)}, 0')
        A(f'v_mfma_f32_32x32x16_bf16 {acc}, {v(VTF+8*eb+4,4)}, {v(PS+4,4)}, {acc}')
        A(f'v_mfma_f32_32x32x16_bf16 {acc}, {v(VMF+4*eb,4)}, {v(PM,4)}, {acc}')
    for eb in range(4):
        b0 = OA + 16 * eb
        for i in range(16):
            A(f'v_mul_f32 v{b0+i}, v{b0+i}, v{l}')
        for u in range(2):
            b = b0 + 8 * u
            A(f'''
            v_cvt_pk_bf16_f32 v{b}, v{b}, v{b+1}
            v_cvt_pk_bf16_f32 v{b+1}, v{b+2}, v{b+3}
            v_cvt_pk_bf16_f32 v{b+2}, v{b+4}, v{b+5}
            v_cvt_pk_bf16_f32 v{b+3}, v{b+6}, v{b+7}
            v_permlane32_swap_b32 v{b}, v{b+2}
            v_permlane32_swap_b32 v{b+1}, v{b+3}
            v_xor_b32 v{t2}, {(4*eb+2*u)*16}, v{V_LW}
            ds_write_b128 v{t2}, {v(b,4)}
            ''')
    A('s_waitcnt lgkmcnt(0)')
    for j in range(8):
        A(f'ds_read_b128 {v(QF+4*j,4)}, v{V_LR+(j&3)} offset:{1024*j}')
    for j in range(8):
        A(f'buffer_store_dwordx4 {v(QF+4*j,4)}, v{V_OA}, {WS}, s{S_A5} offen{so}')
        if j < 7:
            A(f's_add_u32 s{S_A5}, s{S_A5}, {4*8192}')
```

```python
from asmlib import Asm, v, a, s, r
from layout import *

RS = 21792
R_S, R_M, R_W = 0, 1024, 3328
L_SM = 4 * RS
L_W = 16384
HALF = 73728
L_R1 = L_W + HALF
LDS_BYTES = 163840

SCALE_LOG2E = 0x3E0293EE
import struct, math
def f2u(x):
    return struct.unpack('<I', struct.pack('<f', x))[0]
SCALE_LOG2E = f2u(128 ** -0.5 * math.log2(math.e))

QK = [('qk', t, kb) for kb in range(18) for t in range(2)]
VV = [('v', t, blk) for blk in range(9) for t in range(2)]
WO = [('of', 0, blk) for blk in range(2)] + [('o', p, kb) for p in range(4) for kb in range(4)]


class ChainCfg:
    def __init__(self):
        self.lds_ops = [('qk', 1, kb) for kb in (0, 1, 2, 5, 7, 9, 11, 13, 15)] + \
                       [('v', 1, blk) for blk in (1, 5, 8)] + \
                       [('o', 0, 0), ('o', 0, 3), ('o', 1, 2), ('o', 2, 1), ('o', 3, 0), ('o', 3, 3)]
        self.na = 5
        self.nwb = 2
        self.nqb = 3
        self.stamps = False
        self.norearm = False
        self.nsteps = 64
        self.kv_sc1 = False
        self.x_nokv = False
        self.x_bar = True
        self.x_nost = False
        self.x_nowarm = False
        self.warm3 = True
        self.wdist = 0
        self.x_lat = False
        self.warm0 = True
        self.pts = ('m', 'b1', 'b2', 'wo', 'red')
        self.epoch = True
        self.mrepoll = True
        self.rearm_sm = False
        self.pp_r = False
        self.pp_m = False
        self.pp_rw = 3
        self.pp_mw = 2


S_H, S_W, S_STEP, S_BUD, S_T0 = 3, 4, 5, 6, 7
SRD_WS, SRD_X = 8, 12
S_P0, S_P1 = 16, 18
S_MCUR, S_MNXT, S_MTHD = 20, 21, 22
S_PART, S_KOFF, S_VOFF, S_KMOFF, S_VMOFF = 23, 24, 25, 26, 27
S_T1, S_T2, S_T3, S_T4 = 28, 29, 30, 31
S_MLO, S_MHI, S_MSM = 32, 34, 36
S_SC = 38
S_TILE = 39
S_ISRED = 40
S_FAST = 41
S_DBG = 44
S_TS = 48
S_STAMP = 50
S_T5, S_T6 = 52, 53
S_WOFF, S_MP, S_PDELTA = 42, 43, 54
S_EPO = 55
S_MK = 76

V_TID = 0
V_IDX, V_MA0, V_MAF, V_WL, V_L16, V_SMW, V_SMR, V_OW = 1, 2, 3, 4, 5, 6, 7, 8
V_KA, V_VA, V_PUBD, V_PUBF, V_RL, V_RP, V_KM, V_VM, V_R1 = 9, 10, 11, 12, 13, 14, 15, 16, 17
V_SEL = 18
KS = 20
VS = 20
V_DUM = 0
T = 40
POOL = list(range(28, 80))
NWORK = 80
OOB = 0x80000000


def slot_reg(i):
    return NWORK + 8 * i


def emit_chain(A: Asm, cfg: ChainCfg, name='chain_kernel'):
    L = lambda x: f'{name}_{x}'
    lds_ops = list(cfg.lds_ops)
    assert len(lds_ops) == 18
    A.label(name)
    A(f'''
    s_and_b32 s{S_T0}, s2, 7
    s_cmp_lg_u32 s{S_T0}, 0
    s_cbranch_scc1 {L('exit')}
    s_lshr_b32 s{S_H}, s2, 3
    s_cmp_ge_u32 s{S_H}, 32
    s_cbranch_scc1 {L('exit')}
    s_load_dwordx2 s[{SRD_WS}:{SRD_WS+1}], s[0:1], {KA_WS}
    s_load_dwordx2 s[{S_DBG}:{S_DBG+1}], s[0:1], {KA_DBG}
    v_lshrrev_b32 v1, 6, v0
    v_readfirstlane_b32 s{S_W}, v1
    v_and_b32 v{V_TID}, 63, v0
    s_mov_b32 s{SRD_WS+2}, {WS_SIZE}
    s_mov_b32 s{SRD_WS+3}, 0x20000
    s_mov_b32 s{S_DBG+2}, 256
    s_mov_b32 s{S_DBG+3}, 0x20000
    s_mov_b32 s{SRD_X+3}, 0x20000
    s_mov_b32 s{S_BUD}, 400000
    s_mov_b32 s{S_MLO}, 0x00ff00ff
    s_mov_b32 s{S_MLO+1}, 0x00ff00ff
    s_mov_b32 s{S_MHI}, 0xff00ff00
    s_mov_b32 s{S_MHI+1}, 0xff00ff00
    s_mov_b32 s{S_MSM}, 0
    s_mov_b32 s{S_MSM+1}, 0x00ff00ff
    s_mov_b32 s{S_SC}, {SCALE_LOG2E:#x}
    ''')
    A(f'''
    s_getreg_b32 s{S_T0}, hwreg(HW_REG_XCC_ID, 0, 4)
    s_lshl_b32 s{S_T0}, 1, s{S_T0}
    s_waitcnt lgkmcnt(0)
    s_cmp_lg_u32 s{S_W}, 0
    s_cbranch_scc1 {L('noatom')}
    s_mov_b64 exec, 1
    v_mov_b32 v2, s{S_T0}
    v_mov_b32 v3, 0
    buffer_atomic_or v2, v3, s[{S_DBG}:{S_DBG+3}], 0 offen sc1
    s_mov_b64 exec, -1
    ''')
    A.label(L('noatom'))
    A(f'''
    s_mul_i32 s{S_T1}, s{S_W}, 2304
    v_lshlrev_b32 v1, 4, v{V_TID}
    v_add_u32 v1, s{S_T1}, v1
    v_lshlrev_b32 v2, 2, v{V_TID}
    v_add_u32 v2, s{S_T1}, v2
    v_mov_b32 v4, -1
    v_mov_b32 v5, -1
    v_mov_b32 v6, -1
    v_mov_b32 v7, -1
    s_mul_i32 s{S_T1}, s{S_H}, 9216
    s_add_u32 s{S_T1}, s{S_T1}, {WS_PART}
    s_add_u32 s{S_T2}, s{S_T1}, {PART_SLOT}
    ''')
    WSB = f's[{SRD_WS}:{SRD_WS+3}]'
    for sr in (S_T1, S_T2):
        A(f'''
        buffer_store_dwordx4 v[4:7], v1, {WSB}, s{sr} offen sc1
        buffer_store_dwordx4 v[4:7], v1, {WSB}, s{sr} offen offset:1024 sc1
        buffer_store_dword v4, v2, {WSB}, s{sr} offen offset:2048 sc1
        ''')
    A(f'''
    s_cmp_ge_u32 s{S_H}, 3
    s_cbranch_scc1 {L('noarm')}
    s_lshl_b32 s{S_T1}, s{S_H}, 14
    s_add_u32 s{S_T1}, s{S_T1}, {WS_MEM}
    buffer_store_dwordx4 v[4:7], v1, {WSB}, s{S_T1} offen sc1
    buffer_store_dwordx4 v[4:7], v1, {WSB}, s{S_T1} offen offset:1024 sc1
    buffer_store_dword v4, v2, {WSB}, s{S_T1} offen offset:2048 sc1
    ''')
    A.label(L('noarm'))

    lane = V_TID
    G, C = T + 0, T + 1
    X0, X1, X2, X3 = T + 2, T + 3, T + 4, T + 5
    A(f'''
    v_lshrrev_b32 v{G}, 4, v{lane}
    v_and_b32 v{C}, 15, v{lane}
    ''')

    free_final = list(range(54))
    work_slots = [8 + 8 * i for i in range(9)]
    loc = {}
    early = [op for op in lds_ops if op[0] in ('qk', 'v')]
    n_early = len(early)
    res_early = [op for op in QK + VV if op not in lds_ops]
    for op in res_early:
        loc[op] = slot_reg(free_final.pop(0))
    wo_final = free_final[:]
    assert len(wo_final) == n_early
    park_free = list(work_slots) + [slot_reg(i) for i in wo_final]
    for op in early:
        loc[op] = park_free.pop(0)
    assert len(park_free) == 9
    PA, PB, PC, PD, PE, PF, PG = 1, 2, 3, 4, 5, 6, 7

    def stage_qkv(ka_off, lds_base, row0, nrows, fmode, mat):
        A(f'''
        s_load_dwordx2 s[{SRD_X}:{SRD_X+1}], s[0:1], {ka_off}
        s_mov_b32 s{SRD_X+2}, {576*8192}
        v_lshrrev_b32 v{PA}, 4, v{lane}
        v_lshlrev_b32 v{PA}, 13, v{PA}
        v_and_b32 v{PB}, 15, v{lane}
        s_lshl_b32 s{S_T1}, s{S_H}, 8
        s_waitcnt lgkmcnt(0)
        ''')
        fs = sorted(set(fmode(k, mat) for k in range(nrows // 4)))
        regs = {}
        for i, f in enumerate(fs):
            reg = [PC, PD, PE, PF][i]
            regs[f] = reg
            A(f'''
            v_xor_b32 v{reg}, {f}, v{PB}
            v_lshlrev_b32 v{reg}, 4, v{reg}
            v_add_u32 v{reg}, v{reg}, v{PA}
            ''')
        ninst = nrows // 4
        assert ninst % 4 == 0 or True
        nm = ninst // 4
        assert ninst % 4 == 0
        for j in range((nm + 3) // 4):
            guard = (4 * j + 3 >= nm)
            if guard:
                lab = A.new_label(L('stg'))
                A(f'''
                s_add_u32 s{S_T2}, s{S_W}, {4*j}
                s_cmp_ge_u32 s{S_T2}, {nm}
                s_cbranch_scc1 {lab}
                ''')
            A(f'''
            s_add_u32 s{S_T2}, s{S_W}, {4*j}
            s_lshl_b32 s{S_T3}, s{S_T2}, 17
            s_add_u32 s{S_T3}, s{S_T3}, s{S_T1}
            s_add_u32 s{S_T3}, s{S_T3}, {row0*8192}
            s_lshl_b32 s{S_T4}, s{S_T2}, 12
            s_add_u32 s{S_T4}, s{S_T4}, {lds_base}
            ''')
            for i in range(4):
                f = fmode(i, mat)
                A(f'''
                s_mov_b32 m0, s{S_T4}
                buffer_load_dwordx4 v{regs[f]}, s[{SRD_X}:{SRD_X+3}], s{S_T3} offen lds
                ''')
                if i < 3:
                    A(f'''
                    s_add_u32 s{S_T3}, s{S_T3}, {4*8192}
                    s_add_u32 s{S_T4}, s{S_T4}, 1024
                    ''')
            if guard:
                A.label(lab)

    def sync_stage():
        A('s_waitcnt vmcnt(0)')
        A('s_barrier')

    def done_reads():
        A('s_waitcnt lgkmcnt(0)')
        A('s_barrier')

    def tr_fields():
        pass

    fq = lambda k, mat: 8 * (k & 1) + 4 * mat
    for h2 in range(2):
        stage_qkv(KA_WQ, L_W, 288 * h2, 288, fq, 0)
        stage_qkv(KA_WK, L_W + HALF, 288 * h2, 288, fq, 1)
        sync_stage()
        if h2 == 0:
            A(f'''
            s_cmp_lg_u32 s{S_W}, 0
            s_cbranch_scc1 {L('nocnt')}
            s_mov_b64 exec, 1
            v_mov_b32 v2, 1
            v_mov_b32 v3, 0
            buffer_atomic_add v2, v3, s[{S_DBG}:{S_DBG+3}], 0 offen offset:4 sc1
            s_mov_b64 exec, -1
            ''')
            A.label(L('nocnt'))
        A(f'''
        v_lshrrev_b32 v{PA}, 4, v{lane}
        v_and_b32 v{PB}, 1, v{PA}
        v_lshrrev_b32 v{PA}, 1, v{PA}
        v_lshlrev_b32 v{PA}, 3, v{PA}
        v_lshl_add_u32 v{PA}, v{PB}, 2, v{PA}
        v_lshrrev_b32 v{PC}, 2, v{lane}
        v_and_b32 v{PD}, 1, v{PC}
        v_add_u32 v{PA}, v{PA}, v{PD}
        v_lshlrev_b32 v{PA}, 8, v{PA}
        v_bfe_u32 v{PC}, v{lane}, 3, 1
        v_mul_u32_u24 v{PD}, {HALF}, v{PC}
        v_add_u32 v{PA}, v{PA}, v{PD}
        v_lshlrev_b32 v{PB}, 3, v{PB}
        v_lshl_add_u32 v{PB}, v{PC}, 2, v{PB}
        v_and_b32 v{PC}, 3, v{lane}
        s_lshl_b32 s{S_T1}, s{S_W}, 2
        v_add_u32 v{PC}, s{S_T1}, v{PC}
        v_xor_b32 v{PC}, v{PC}, v{PB}
        v_lshl_add_u32 v{PA}, v{PC}, 4, v{PA}
        v_add_u32 v{PA}, {L_W}, v{PA}
        ''')
        for kbl in range(9):
            kb = 9 * h2 + kbl
            if kbl == 5:
                A(f'v_add_u32 v{PA}, {5*8192}, v{PA}')
            ob = (kbl - 5 if kbl >= 5 else kbl) * 8192
            for t in range(2):
                dst = loc[('qk', t, kb)]
                for k in range(4):
                    off = ob + (16 * (k >> 1) + 2 * (k & 1)) * 256 + 8 * t
                    A(f'ds_read_b64_tr_b16 {r(dst + 2*k, 2)}, v{PA} offset:{off}')
        done_reads()

    fv = lambda k, mat: 4 * (k & 3)
    stage_qkv(KA_WV, L_W, 0, 576, fv, 0)
    sync_stage()
    A(f'''
    v_lshrrev_b32 v{PA}, 4, v{lane}
    v_and_b32 v{PB}, 1, v{PA}
    v_lshrrev_b32 v{PA}, 1, v{PA}
    v_lshlrev_b32 v{PA}, 4, v{PA}
    v_lshl_add_u32 v{PA}, v{PB}, 2, v{PA}
    v_bfe_u32 v{PD}, v{lane}, 2, 1
    v_add_u32 v{PA}, v{PA}, v{PD}
    v_bfe_u32 v{PC}, v{lane}, 3, 1
    v_lshl_add_u32 v{PA}, v{PC}, 3, v{PA}
    v_lshlrev_b32 v{PA}, 8, v{PA}
    v_lshl_add_u32 v{PB}, v{PC}, 1, v{PB}
    v_lshlrev_b32 v{PB}, 2, v{PB}
    v_and_b32 v{PC}, 3, v{lane}
    s_lshl_b32 s{S_T1}, s{S_W}, 2
    v_add_u32 v{PC}, s{S_T1}, v{PC}
    v_xor_b32 v{PC}, v{PC}, v{PB}
    v_lshl_add_u32 v{PA}, v{PC}, 4, v{PA}
    v_add_u32 v{PA}, {L_W}, v{PA}
    ''')
    for blk in range(9):
        if blk in (3, 6):
            A(f'v_add_u32 v{PA}, {3*16384}, v{PA}')
        ob = (blk % 3) * 16384
        for t in range(2):
            dst = loc[('v', t, blk)]
            for k in range(4):
                off = ob + (32 * (k >> 1) + 2 * (k & 1)) * 256 + 8 * t
                A(f'ds_read_b64_tr_b16 {r(dst + 2*k, 2)}, v{PA} offset:{off}')
    done_reads()

    A(f'''
    s_load_dwordx2 s[{SRD_X}:{SRD_X+1}], s[0:1], {KA_WO}
    s_mov_b32 s{SRD_X+2}, {32*147456}
    s_mul_i32 s{S_T1}, s{S_H}, 147456
    s_waitcnt lgkmcnt(0)
    ''')
    for j in range(36):
        A(f'''
        s_add_u32 s{S_T2}, s{S_W}, {4*j}
        s_lshl_b32 s{S_T3}, s{S_T2}, 6
        v_add_u32 v{PA}, s{S_T3}, v{lane}
        v_mul_u32_u24 v{PB}, 58255, v{PA}
        v_lshrrev_b32 v{PB}, 22, v{PB}
        v_and_b32 v{PC}, 4, v{PB}
        v_and_b32 v{PB}, 8, v{PB}
        v_lshrrev_b32 v{PB}, 2, v{PB}
        v_or_b32 v{PB}, v{PB}, v{PC}
        v_xor_b32 v{PA}, v{PA}, v{PB}
        v_lshlrev_b32 v{PA}, 4, v{PA}
        s_lshl_b32 s{S_T4}, s{S_T2}, 10
        s_add_u32 s{S_T4}, s{S_T4}, {L_W}
        s_mov_b32 m0, s{S_T4}
        buffer_load_dwordx4 v{PA}, s[{SRD_X}:{SRD_X+3}], s{S_T1} offen lds
        ''')
    sync_stage()
    def wo_addr_dup(p):
        A(f'''
        v_lshrrev_b32 v{PA}, 4, v{lane}
        v_and_b32 v{PB}, 1, v{PA}
        v_lshrrev_b32 v{PA}, 1, v{PA}
        v_lshlrev_b32 v{PC}, 1, v{PA}
        v_lshl_add_u32 v{PC}, v{PB}, 2, v{PC}
        v_lshlrev_b32 v{PA}, 3, v{PA}
        v_lshl_add_u32 v{PA}, v{PB}, 2, v{PA}
        v_bfe_u32 v{PD}, v{lane}, 2, 1
        v_add_u32 v{PA}, v{PA}, v{PD}
        v_mul_u32_u24 v{PA}, 1152, v{PA}
        s_mul_i32 s{S_T1}, s{S_W}, 18
        s_add_u32 s{S_T1}, s{S_T1}, {2 + 4*p}
        v_bfe_u32 v{PD}, v{lane}, 3, 1
        v_lshlrev_b32 v{PD}, 1, v{PD}
        v_bfe_u32 v{PB}, v{lane}, 1, 1
        v_add3_u32 v{PD}, v{PD}, v{PB}, s{S_T1}
        v_xor_b32 v{PD}, v{PD}, v{PC}
        v_lshl_add_u32 v{PA}, v{PD}, 4, v{PA}
        v_and_b32 v{PB}, 1, v{lane}
        v_lshl_add_u32 v{PA}, v{PB}, 3, v{PA}
        v_add_u32 v{PA}, {L_W}, v{PA}
        ''')
    def wo_addr_fold():
        A(f'''
        v_lshrrev_b32 v{PA}, 4, v{lane}
        v_and_b32 v{PB}, 1, v{PA}
        v_lshrrev_b32 v{PA}, 1, v{PA}
        v_lshlrev_b32 v{PA}, 4, v{PA}
        v_lshl_add_u32 v{PA}, v{PB}, 2, v{PA}
        v_bfe_u32 v{PD}, v{lane}, 2, 1
        v_add_u32 v{PA}, v{PA}, v{PD}
        v_bfe_u32 v{PD}, v{lane}, 3, 1
        v_lshl_add_u32 v{PA}, v{PD}, 3, v{PA}
        v_mul_u32_u24 v{PA}, 1152, v{PA}
        v_lshlrev_b32 v{PC}, 1, v{PD}
        v_lshl_add_u32 v{PC}, v{PB}, 2, v{PC}
        s_mul_i32 s{S_T1}, s{S_W}, 18
        v_bfe_u32 v{PB}, v{lane}, 1, 1
        v_add_u32 v{PD}, s{S_T1}, v{PB}
        v_xor_b32 v{PD}, v{PD}, v{PC}
        v_lshl_add_u32 v{PA}, v{PD}, 4, v{PA}
        v_and_b32 v{PB}, 1, v{lane}
        v_lshl_add_u32 v{PA}, v{PB}, 3, v{PA}
        v_add_u32 v{PA}, {L_W}, v{PA}
        ''')

    def wo_read(op):
        dst = loc[op]
        if op[0] == 'o':
            _, p, kb = op
            for k in range(4):
                e = 32 * kb + 16 * (k >> 1) + 2 * (k & 1)
                off = e * 1152
                reg = PA
                if off > 65535:
                    A(f'v_add_u32 v{PE}, {64*1152}, v{PA}')
                    off -= 64 * 1152
                    reg = PE
                A(f'ds_read_b64_tr_b16 {r(dst + 2*k, 2)}, v{reg} offset:{off}')
        else:
            _, _, blk = op
            for k in range(4):
                e = 64 * blk + 32 * (k >> 1) + 2 * (k & 1)
                off = e * 1152
                reg = PA
                if off > 65535:
                    A(f'v_add_u32 v{PE}, {64*1152}, v{PA}')
                    off -= 64 * 1152
                    reg = PE
                A(f'ds_read_b64_tr_b16 {r(dst + 2*k, 2)}, v{reg} offset:{off}')

    D1 = [('of', 0, 1)] + [('o', p, kb) for p in range(4) for kb in (2, 3)]
    D0 = [('of', 0, 0)] + [('o', p, kb) for p in range(4) for kb in (0, 1)]
    wo_final_regs = [slot_reg(i) for i in wo_final]
    free = list(park_free)
    def take(op):
        if op in lds_ops:
            cand = [x for x in free if x not in wo_final_regs] or free
        else:
            cand = [x for x in free if x in wo_final_regs]
        x = cand[0]
        free.remove(x)
        loc[op] = x
    for op in sorted(D1, key=lambda o: o in lds_ops):
        take(op)
    def read_group(ops):
        cur = None
        for op in ops:
            key = ('o', op[1]) if op[0] == 'o' else ('of',)
            if key != cur:
                if op[0] == 'o':
                    wo_addr_dup(op[1])
                else:
                    wo_addr_fold()
                cur = key
            wo_read(op)
    read_group(D1)
    done_reads()
    parked = [op for op in lds_ops if op in loc]
    parked.sort(key=lambda o: (loc[o] not in wo_final_regs))
    first = parked[:9]
    ldsloc = {}
    A(f'''
    s_mul_i32 s{S_T1}, s{S_W}, 18432
    s_add_u32 s{S_T1}, s{S_T1}, {L_W}
    v_lshlrev_b32 v{PG}, 4, v{lane}
    v_add_u32 v{PG}, s{S_T1}, v{PG}
    v_add_u32 v{PF}, {HALF}, v{PG}
    ''')
    def flush(ops, half):
        for i, op in enumerate(ops):
            ldsloc[op] = (half, i * 2048)
            reg = PF if half else PG
            src = loc[op]
            for q in range(2):
                A(f'ds_write_b128 v{reg}, {r(src + 4*q, 4)} offset:{i*2048 + q*1024}')
            free.append(src)
    flush(first, 1)
    for op in sorted(D0, key=lambda o: o in lds_ops):
        take(op)
    A('s_waitcnt lgkmcnt(0)')
    read_group(D0)
    done_reads()
    rest = [op for op in lds_ops if op not in ldsloc]
    assert len(rest) == 9
    A(f'''
    s_mul_i32 s{S_T1}, s{S_W}, {RS}
    s_add_u32 s{S_T1}, s{S_T1}, {R_W}
    v_lshlrev_b32 v{PG}, 4, v{lane}
    v_add_u32 v{PG}, s{S_T1}, v{PG}
    ''')
    flush(rest, 0)
    A('s_waitcnt lgkmcnt(0)')
    for op in QK + VV + WO:
        if op not in lds_ops:
            assert loc[op] >= NWORK, op


    g_, c_, x0, x1, x2, mb = T, T + 1, T + 2, T + 3, T + 4, T + 5
    A(f'''
    v_lshrrev_b32 v{g_}, 4, v{lane}
    v_and_b32 v{c_}, 15, v{lane}
    v_lshlrev_b32 v{V_L16}, 4, v{lane}
    s_mul_i32 s{S_T1}, s{S_W}, {RS}
    v_add_u32 v{V_WL}, s{S_T1}, v{V_L16}
    s_mul_i32 s{S_T1}, s{S_W}, 18432
    s_add_u32 s{S_T1}, s{S_T1}, {L_R1}
    v_add_u32 v{V_R1}, s{S_T1}, v{V_L16}
    v_mov_b32 v{x0}, 0x44444444
    v_mov_b32 v{x1}, 0xeeeeeeee
    v_cmp_gt_u32 vcc, 8, v{c_}
    v_cndmask_b32 v{V_IDX}, v{x1}, v{x0}, vcc
    v_bfe_u32 v{x0}, v{c_}, 1, 2
    v_mul_u32_u24 v{mb}, {RS}, v{x0}
    v_and_b32 v{x0}, 1, v{c_}
    v_mul_u32_u24 v{x0}, 1152, v{x0}
    v_add_u32 v{mb}, v{mb}, v{x0}
    v_add_u32 v{mb}, {R_M}, v{mb}
    v_lshl_add_u32 v{V_MA0}, v{g_}, 4, v{mb}
    v_lshrrev_b32 v{x2}, 3, v{c_}
    v_lshl_add_u32 v{x2}, v{g_}, 1, v{x2}
    v_lshl_add_u32 v{V_MAF}, v{x2}, 4, v{mb}
    s_lshl_b32 s{S_T1}, s{S_W}, 6
    v_add_u32 v{V_OW}, s{S_T1}, v{V_MA0}
    v_and_b32 v{x2}, 1, v{g_}
    v_lshlrev_b32 v{x2}, 5, v{x2}
    v_add_u32 v{x2}, v{x2}, v{c_}
    v_lshlrev_b32 v{x2}, 4, v{x2}
    s_lshl_b32 s{S_T1}, s{S_W}, 2
    s_add_u32 s{S_T1}, s{S_T1}, {L_SM}
    v_add_u32 v{V_SMW}, s{S_T1}, v{x2}
    v_and_b32 v{x2}, 1, v{g_}
    v_lshlrev_b32 v{x2}, 2, v{x2}
    v_lshrrev_b32 v{x1}, 1, v{g_}
    v_lshl_add_u32 v{x2}, v{x1}, 1, v{x2}
    v_lshrrev_b32 v{x1}, 3, v{c_}
    v_add_u32 v{x2}, v{x2}, v{x1}
    v_and_b32 v{x1}, 7, v{c_}
    v_lshl_add_u32 v{x2}, v{x2}, 3, v{x1}
    v_lshlrev_b32 v{x2}, 4, v{x2}
    v_add_u32 v{V_SMR}, {L_SM}, v{x2}
    v_lshrrev_b32 v{x0}, 2, v{c_}
    v_lshlrev_b32 v{x0}, 3, v{x0}
    v_and_b32 v{x1}, 3, v{c_}
    v_add_u32 v{x0}, v{x0}, v{x1}
    v_lshlrev_b32 v{x1}, 4, v{g_}
    v_lshl_add_u32 v{V_KA}, v{x0}, 13, v{x1}
    v_lshl_add_u32 v{V_VA}, v{x0}, 6, v{x1}
    v_lshlrev_b32 v{x1}, 3, v{g_}
    v_lshl_add_u32 v{V_VM}, v{x0}, 5, v{x1}
    v_and_b32 v{x0}, 7, v{c_}
    v_lshlrev_b32 v{x1}, 4, v{g_}
    v_lshl_add_u32 v{V_KM}, v{x0}, 8, v{x1}
    v_mov_b32 v{x1}, {OOB:#x}
    v_cmp_gt_u32 vcc, 8, v{c_}
    v_cndmask_b32 v{V_KM}, v{V_KM}, v{x1}, vcc
    v_and_b32 v{x0}, 1, v{g_}
    v_lshlrev_b32 v{x0}, 3, v{x0}
    v_lshl_add_u32 v{x0}, v{c_}, 4, v{x0}
    v_lshrrev_b32 v{x1}, 1, v{g_}
    v_lshl_add_u32 v{V_PUBF}, v{x1}, {31 if cfg.epoch else 2}, v{x0}
    v_lshl_add_u32 v{V_PUBD}, v{x1}, 8, v{x0}
    v_add_u32 v{V_PUBD}, 256, v{V_PUBD}
    v_lshlrev_b32 v{x0}, 2, v{g_}
    v_sub_u32 v{x0}, v{c_}, v{x0}
    v_mov_b32 v{x1}, 0x3f80
    v_mov_b32 v{x2}, 0x3f800000
    v_cmp_eq_u32 vcc, 0, v{x0}
    v_cndmask_b32 v{V_SEL}, 0, v{x1}, vcc
    v_cmp_eq_u32 vcc, 1, v{x0}
    v_cndmask_b32 v{V_SEL}, v{V_SEL}, v{x2}, vcc
    v_cmp_eq_u32 vcc, 2, v{x0}
    v_cndmask_b32 v{V_SEL+1}, 0, v{x1}, vcc
    v_cmp_eq_u32 vcc, 3, v{x0}
    v_cndmask_b32 v{V_SEL+1}, v{V_SEL+1}, v{x2}, vcc
    ''')
    A(f'''
    s_lshl_b32 s{S_TILE}, s{S_H}, 1
    s_add_u32 s{S_TILE}, s{S_TILE}, s{S_W}
    s_mov_b32 s{S_ISRED}, 1
    s_cmp_lt_u32 s{S_W}, 2
    s_cbranch_scc1 {L('role_done')}
    s_add_u32 s{S_TILE}, s{S_H}, 64
    s_cmp_eq_u32 s{S_W}, 2
    s_cselect_b32 s{S_ISRED}, 1, 0
    s_cmp_lt_u32 s{S_H}, 8
    s_cselect_b32 s{S_ISRED}, s{S_ISRED}, 0
    s_cmp_eq_u32 s{S_ISRED}, 0
    s_cselect_b32 s{S_TILE}, 0, s{S_TILE}
    ''')
    A.label(L('role_done'))
    A(f'''
    v_lshrrev_b32 v{x0}, 3, v{c_}
    v_lshl_add_u32 v{x0}, v{x0}, 4, v{g_}
    v_mul_u32_u24 v{x0}, 9216, v{x0}
    v_and_b32 v{x1}, 7, v{c_}
    v_lshl_add_u32 v{x0}, v{x1}, 4, v{x0}
    s_lshl_b32 s{S_T1}, s{S_TILE}, 7
    v_add_u32 v{V_RL}, s{S_T1}, v{x0}
    v_mul_u32_u24 v{x1}, 1152, v{x1}
    s_lshl_b32 s{S_T1}, s{S_TILE}, 4
    v_add_u32 v{x0}, s{S_T1}, v{x1}
    v_and_b32 v{x1}, 1, v{g_}
    v_lshl_add_u32 v{x0}, v{x1}, 3, v{x0}
    v_lshrrev_b32 v{x1}, 1, v{g_}
    v_lshl_add_u32 v{V_RP}, v{x1}, 2, v{x0}
    v_mov_b32 v{x1}, {OOB:#x}
    v_cmp_lt_u32 vcc, 7, v{c_}
    v_cndmask_b32 v{V_RP}, v{V_RP}, v{x1}, vcc
    s_cmp_eq_u32 s{S_ISRED}, 0
    s_cselect_b32 s{S_T1}, {OOB:#x}, 0
    v_or_b32 v{V_RP}, s{S_T1}, v{V_RP}
    v_or_b32 v{V_RL}, s{S_T1}, v{V_RL}
    ''')
    A(f'''
    s_mov_b32 s{S_STEP}, 0
    s_mov_b32 s{S_EPO}, 0
    s_mov_b32 s{S_MCUR}, {WS_MEM}
    s_mov_b32 s{S_MNXT}, {WS_MEM + MEM_SLOT}
    s_mov_b32 s{S_MTHD}, {WS_MEM + 2*MEM_SLOT}
    s_mul_i32 s{S_WOFF}, s{S_W}, {(2304 - RS) & 0xffffffff:#x}
    s_mul_i32 s{S_PART}, s{S_H}, 9216
    s_mul_i32 s{S_T1}, s{S_W}, 2304
    s_add_u32 s{S_PART}, s{S_PART}, s{S_T1}
    s_add_u32 s{S_PART}, s{S_PART}, {WS_PART}
    s_mov_b32 s{S_T5}, {WS_PART}
    s_mov_b32 s{S_PDELTA}, {PART_SLOT}
    s_lshl_b32 s{S_KOFF}, s{S_H}, 8
    s_lshl_b32 s{S_T1}, s{S_W}, 6
    s_add_u32 s{S_KOFF}, s{S_KOFF}, s{S_T1}
    s_add_u32 s{S_KOFF}, s{S_KOFF}, {WS_K}
    s_lshl_b32 s{S_VOFF}, s{S_H}, 13
    s_lshl_b32 s{S_T1}, s{S_W}, 11
    s_add_u32 s{S_VOFF}, s{S_VOFF}, s{S_T1}
    s_add_u32 s{S_VOFF}, s{S_VOFF}, {WS_VT}
    s_lshl_b32 s{S_KMOFF}, s{S_H}, 11
    s_lshl_b32 s{S_T1}, s{S_W}, 6
    s_add_u32 s{S_KMOFF}, s{S_KMOFF}, s{S_T1}
    s_add_u32 s{S_KMOFF}, s{S_KMOFF}, {WS_KM}
    s_lshl_b32 s{S_VMOFF}, s{S_H}, 12
    s_lshl_b32 s{S_T1}, s{S_W}, 10
    s_add_u32 s{S_VMOFF}, s{S_VMOFF}, s{S_T1}
    s_add_u32 s{S_VMOFF}, s{S_VMOFF}, {WS_VM}
    ''')

    def k_prefetch():
        A(f'''
        s_add_u32 s{S_T1}, s{S_KOFF}, {4*8192}
        buffer_load_dwordx4 {v(KS,4)}, v{V_KA}, s[{SRD_WS}:{SRD_WS+3}], s{S_KOFF} offen
        buffer_load_dwordx4 {v(KS+4,4)}, v{V_KA}, s[{SRD_WS}:{SRD_WS+3}], s{S_T1} offen
        s_add_u32 s{S_KOFF}, s{S_KOFF}, {32*8192}
        ''')

    def v_load():
        A(f'''
        buffer_load_dwordx4 {v(VS,4)}, v{V_VA}, s[{SRD_WS}:{SRD_WS+3}], s{S_VOFF} offen
        buffer_load_dwordx4 {v(VS+4,4)}, v{V_VA}, s[{SRD_WS}:{SRD_WS+3}], s{S_VOFF} offen offset:256
        s_add_u32 s{S_VOFF}, s{S_VOFF}, 262144
        ''')

    def v_warm():
        A(f'''
        buffer_load_dword v{V_DUM}, v{V_VA}, s[{SRD_WS}:{SRD_WS+3}], s{S_VOFF} offen
        buffer_load_dword v{V_DUM}, v{V_VA}, s[{SRD_WS}:{SRD_WS+3}], s{S_VOFF} offen offset:256
        ''', tag='dummy')
    k_prefetch()
    A(f'''
    s_load_dwordx2 s[{SRD_X}:{SRD_X+1}], s[0:1], {KA_MEM0}
    s_mov_b32 s{SRD_X+2}, 9216
    ''')
    lab = L('xcc_poll')
    A.label(lab)
    A(f'''
    v_mov_b32 v{T+2}, 0
    buffer_load_dwordx2 {v(T+14,2)}, v{T+2}, s[{S_DBG}:{S_DBG+3}], 0 offen sc1
    s_waitcnt vmcnt(0) lgkmcnt(0)
    v_readfirstlane_b32 s{S_T1}, v{T+15}
    v_readfirstlane_b32 s{S_T2}, v{T+14}
    s_sub_u32 s{S_BUD}, s{S_BUD}, 1
    s_cmp_eq_u32 s{S_BUD}, 0
    s_cbranch_scc1 {L('exit')}
    s_cmp_lt_u32 s{S_T1}, 32
    s_cbranch_scc1 {lab}
    s_bcnt1_i32_b32 s{S_T2}, s{S_T2}
    s_cmp_eq_u32 s{S_T2}, 1
    s_cbranch_scc0 {name}_slow_pre
    ''')
    env = dict(loc=loc, ldsloc=ldsloc, lds_ops=lds_ops, k_prefetch=k_prefetch, v_load=v_load, v_warm=v_warm)
    for variant in ('fast', 'slow'):
        emit_loop(A, cfg, name, variant, env)
    A.label(L('exit'))
    A('s_endpgm')
    return env


def emit_loop(A, cfg, name, variant, env):
    L = lambda x: f'{name}_{variant}_{x}'
    SC = '' if variant == 'fast' else ' sc1'
    SCKV = ' sc1' if cfg.kv_sc1 else ''
    loc, ldsloc, lds_ops = env['loc'], env['ldsloc'], env['lds_ops']
    WS = f's[{SRD_WS}:{SRD_WS+3}]'
    idx = v(V_IDX)
    stamp_i = [0]
    ED = 1

    def stamp(nm='x'):
        if not cfg.stamps or variant != 'fast':
            return
        if nm not in cfg.pts:
            return
        i = stamp_i[0]
        stamp_i[0] += 1
        assert i < 7
        A(f's_memtime s[{56+2*i}:{57+2*i}]', tag='stamp')

    def lds_read(op, nm):
        reg, off = ldsloc[op]
        base = V_R1 if reg else V_WL
        if not reg:
            off += R_W
        A(f'ds_read_b128 %{nm}:4, v{base} offset:{off}')
        A(f'ds_read_b128 %{nm}+4:4, v{base} offset:{off+1024}')

    def zero(nm, n):
        for i in range(0, n, 2):
            A(f'v_mov_b64 %{nm}+{i}:2, 0')

    class Stream:
        def __init__(self, ops, pre):
            self.ops = ops
            self.lds = [o[0] for o in ops if o[0] in lds_ops]
            self.pre = pre
            self.issued = 0
            self.pos = 0

        def bname(self, op):
            return f'{self.pre}{self.lds.index(op)}'

        def read_next(self):
            if self.issued < len(self.lds):
                op = self.lds[self.issued]
                lds_read(op, self.bname(op))
                self.issued += 1

        def mf(self, after=None):
            op, acc, an = self.ops[self.pos]
            self.pos += 1
            if op in lds_ops:
                b = f'%{self.bname(op)}:8'
            else:
                b = r(loc[op], 8)
            A(f'v_smfmac_f32_16x16x64_bf16 %{acc}:4, %{an}:4, {b}, {idx}')
            if op in lds_ops:
                self.read_next()

        def done(self):
            return self.pos >= len(self.ops)

    qk = Stream([(('qk', t, kb), f'qk{t}', f'qa{kb}') for kb in range(18) for t in range(2)], 'qb')
    vv = Stream([(('v', t, blk), f'vc{t}', f'va{blk}') for blk in range(9) for t in range(2)], 'vb')

    def qk_pre():
        qk.issued = 0
        for i in range(cfg.nqb):
            qk.read_next()

    def warm(kadd, vadd):
        A(f'''
        s_cmp_eq_u32 s{S_W}, 3
        s_cselect_b32 s{S_T4}, 0, {OOB:#x}
        v_lshrrev_b32 %wk, 5, v{V_L16}
        v_lshlrev_b32 %wk, 13, %wk
        v_and_b32 %wk2, 16, v{V_L16}
        v_lshl_add_u32 %wk, %wk2, 3, %wk
        v_lshlrev_b32 %wv, 3, v{V_L16}
        v_or_b32 %wk, s{S_T4}, %wk
        v_or_b32 %wv, s{S_T4}, %wv
        s_add_u32 s{S_T1}, s{S_KOFF}, {(kadd - 192) & 0xffffffff:#x}
        s_add_u32 s{S_T2}, s{S_VOFF}, {((vadd - 3*2048) & 0xffffffff):#x}
        ''')
        A(f'''
        buffer_load_dword v{V_DUM}, %wk, {WS}, s{S_T1} offen
        buffer_load_dword v{V_DUM}, %wv, {WS}, s{S_T2} offen
        ''', tag='dummy')
        if cfg.x_lat:
            A('s_waitcnt vmcnt(0)')
            stamp('l2')

    A.label(L('pre'))
    A(f'''
    s_mul_i32 s{S_T2}, s{S_W}, {RS}
    s_add_u32 s{S_T2}, s{S_T2}, {R_M}
    s_mov_b32 m0, s{S_T2}
    s_mul_i32 s{S_T2}, s{S_W}, 2304
    v_add_u32 %i0, s{S_T2}, v{V_L16}
    v_lshrrev_b32 %i1, 2, v{V_L16}
    v_add_u32 %i1, s{S_T2}, %i1
    buffer_load_dwordx4 %ip:4, %i0, s[{SRD_X}:{SRD_X+3}], 0 offen
    buffer_load_dwordx4 %ip+4:4, %i0, s[{SRD_X}:{SRD_X+3}], 0 offen offset:1024
    buffer_load_dword %ip+8, %i1, s[{SRD_X}:{SRD_X+3}], 0 offen offset:2048
    v_lshrrev_b32 %i0, 2, v{V_L16}
    v_sub_u32 %i1, v{V_WL}, v{V_L16}
    v_add_u32 %i1, %i1, %i0
    ds_write_b128 v{V_WL}, %ip:4 offset:{R_M}
    ds_write_b128 v{V_WL}, %ip+4:4 offset:{R_M+1024}
    ds_write_b32 %i1, %ip+8 offset:{R_M+2048}
    ''')
    qk_pre()
    A(f's_branch {L("mem_ready")}')

    A.label(L('top'))
    qk_pre()
    A(f'''
    v_lshrrev_b32 %w4t, 2, v{V_L16}
    v_sub_u32 %w4, v{V_WL}, v{V_L16}
    v_add_u32 %w4, %w4, %w4t
    s_add_u32 s{S_MP}, s{S_MCUR}, s{S_WOFF}
    ''')
    def mloads(masked=False):
        if masked:
            A(f's_mov_b64 exec, s[{S_MK}:{S_MK+1}]')
        A(f'buffer_load_dwordx4 %mp:4, v{V_WL}, {WS}, s{S_MP} offen sc1')
        if masked:
            A(f's_mov_b64 exec, s[{S_MK+2}:{S_MK+3}]')
        A(f'buffer_load_dwordx4 %mp+4:4, v{V_WL}, {WS}, s{S_MP} offen offset:1024 sc1')
        if masked:
            A(f's_mov_b64 exec, s[{S_MK+4}:{S_MK+5}]')
        A(f'buffer_load_dword %mp+8, %w4, {WS}, s{S_MP} offen offset:2048 sc1')
        if masked:
            A('s_mov_b64 exec, -1')
    if not cfg.mrepoll:
        A.label(L('mpoll'))
        mloads()
        A(f'''
        s_sub_u32 s{S_BUD}, s{S_BUD}, 1
        s_cbranch_scc1 {name}_exit
        v_max3_u32 %mc, %mp+0, %mp+1, %mp+2
        v_max3_u32 %mc1, %mp+3, %mp+4, %mp+5
        v_max3_u32 %mc, %mc, %mp+6, %mp+7
        v_max3_u32 %mc, %mc, %mc1, %mp+8
        v_cmp_eq_u32 vcc, -1, %mc
        s_cbranch_vccnz {L('mpoll')}
        ''')
    elif cfg.pp_m:
        assert cfg.x_bar
        stamp('m0')

        def dma(masked):
            if masked:
                A(f's_mov_b64 exec, s[{S_MK}:{S_MK+1}]')
            A(f'buffer_load_dwordx4 v{V_WL}, {WS}, s{S_MP} offen sc1 lds')
            if masked:
                A(f's_mov_b64 exec, s[{S_MK+2}:{S_MK+3}]')
            A(f'buffer_load_dwordx4 v{V_WL}, {WS}, s{S_MP} offen offset:1024 sc1 lds')
            if masked:
                A(f's_mov_b64 exec, s[{S_MK+4}:{S_MK+5}]')
            A(f'buffer_load_dword %w4, {WS}, s{S_MP} offen offset:2048 sc1 lds')
            if masked:
                A('s_mov_b64 exec, -1')
        dma(False)
        for i in range(3):
            A(f's_mov_b64 s[{S_MK+2*i}:{S_MK+2*i+1}], -1')
        A.label(L('mchk'))
        A(f'''
        s_sub_u32 s{S_BUD}, s{S_BUD}, 1
        s_cbranch_scc1 {name}_exit
        s_waitcnt vmcnt({cfg.pp_mw})
        ''')
        dma(True)
        A(f'''
        s_waitcnt vmcnt(3)
        ds_read_b128 %mp:4, v{V_WL} offset:{R_M}
        ds_read_b128 %mp+4:4, v{V_WL} offset:{R_M+1024}
        ds_read_b32 %mp+8, %w4 offset:{R_M+2048}
        v_max3_u32 %mc, %mp+0, %mp+1, %mp+2
        v_max_u32 %mc, %mc, %mp+3
        v_max3_u32 %mc1, %mp+4, %mp+5, %mp+6
        v_max_u32 %mc1, %mc1, %mp+7
        v_max3_u32 %mc2, %mc, %mc1, %mp+8
        v_cmp_eq_u32 vcc, -1, %mc2
        s_cbranch_vccz {L('mok')}
        v_cmp_eq_u32 s[{S_MK}:{S_MK+1}], -1, %mc
        v_cmp_eq_u32 s[{S_MK+2}:{S_MK+3}], -1, %mc1
        v_cmp_eq_u32 s[{S_MK+4}:{S_MK+5}], -1, %mp+8
        s_branch {L('mchk')}
        ''')
        A.label(L('mok'))
        stamp('m2')
        if cfg.pp_r:
            A('_keep %rd:16')
    else:
        stamp('m0')
        A('s_mov_b32 s84, 0')
        mloads()
        A.label(L('mchk'))
        A(f'''
        s_sub_u32 s{S_BUD}, s{S_BUD}, 1
        s_cbranch_scc1 {name}_exit
        v_max3_u32 %mc, %mp+0, %mp+1, %mp+2
        v_max3_u32 %mc1, %mp+4, %mp+5, %mp+6
        v_max_u32 %mc, %mc, %mp+3
        v_max_u32 %mc1, %mc1, %mp+7
        v_max3_u32 %mc2, %mc, %mc1, %mp+8
        v_cmp_eq_u32 vcc, -1, %mc2
        ''')
        if 'm1' in cfg.pts and variant == 'fast' and cfg.stamps:
            lab1 = L('m1skip')
            A(f's_cmp_lg_u32 s84, 0')
            A(f's_cbranch_scc1 {lab1}')
            stamp('m1')
            A('s_mov_b32 s84, 1')
            A.label(lab1)
        A(f'''
        s_cbranch_vccz {L('mok')}
        v_cmp_eq_u32 s[{S_MK}:{S_MK+1}], -1, %mc
        v_cmp_eq_u32 s[{S_MK+2}:{S_MK+3}], -1, %mc1
        v_cmp_eq_u32 s[{S_MK+4}:{S_MK+5}], -1, %mp+8
        ''')
        mloads(True)
        A(f's_branch {L("mchk")}')
        A.label(L('mok'))
        stamp('m2')
    if not cfg.pp_m:
        A(f'''
        ds_write_b128 v{V_WL}, %mp:4 offset:{R_M}
        ds_write_b128 v{V_WL}, %mp+4:4 offset:{R_M+1024}
        ds_write_b32 %w4, %mp+8 offset:{R_M+2048}
        ''')
        if cfg.pp_r:
            A('_keep %rd:16')
    A.label(L('mem_ready'))
    zero('qk0', 4)
    zero('qk1', 4)
    A('s_waitcnt lgkmcnt(0)')
    A('s_barrier')
    if cfg.stamps and variant == 'fast':
        A('s_mov_b64 s[70:71], s[56:57]')
        A(f's_sub_u32 s72, s74, s{S_BUD}')
    stamp('m')
    if cfg.warm0:
        warm(cfg.wdist*262144, (cfg.wdist+1)*262144)
    def rdA(kb):
        A(f'ds_read_b128 %qa{kb}:4, v{V_MA0} offset:{64*kb}')

    def rdV(blk):
        A(f'ds_read_b128 %va{blk}:4, v{V_MAF} offset:{128*blk}')
    NA = cfg.na
    for kb in range(NA):
        rdA(kb)
    NVA = 3
    vq = 0
    for kb in range(18):
        qk.mf()
        qk.mf()
        if kb + NA < 18:
            rdA(kb + NA)
        elif vq < NVA:
            rdV(vq)
            vq += 1
        if kb == 13:
            zero('vc0', 4)
        if kb == 14:
            zero('vc1', 4)
        if kb == 16:
            vv.read_next()

    def vm(n):
        for _ in range(n):
            if vv.done():
                return
            (o_, t, blk) = vv.ops[vv.pos][0]
            vv.mf()
            if t == 1 and blk + NVA < 9:
                rdV(blk + NVA)
    sch = cfg.vsched if hasattr(cfg, 'vsched') else (2, 2, 2, 4, 8)
    stamp('qk')
    vm(sch[0])
    A(f'''
    v_cvt_pk_bf16_f32 %ta+0, %qk0+0, %qk0+1
    v_cvt_pk_bf16_f32 %ta+1, %qk0+2, %qk0+3
    v_cvt_pk_bf16_f32 %ta+2, %qk1+0, %qk1+1
    v_cvt_pk_bf16_f32 %ta+3, %qk1+2, %qk1+3
    v_mfma_f32_16x16x16_bf16 %t0:4, %ta+0:2, {v(V_SEL,2)}, 0
    v_mfma_f32_16x16x16_bf16 %t1:4, %ta+2:2, {v(V_SEL,2)}, 0
    ''')
    stamp('t1')
    vm(sch[1])
    A(f'''
    v_cvt_pk_bf16_f32 %x+0, %t0+0, %t0+1
    v_cvt_pk_bf16_f32 %x+1, %t0+2, %t0+3
    v_cvt_pk_bf16_f32 %x+2, %t1+0, %t1+1
    v_cvt_pk_bf16_f32 %x+3, %t1+2, %t1+3
    v_mfma_f32_16x16x32_bf16 %s0:4, {v(KS,4)}, %x:4, 0
    v_mfma_f32_16x16x32_bf16 %s1:4, {v(KS+4,4)}, %x:4, 0
    v_mfma_f32_16x16x32_bf16 %smm:4, %x:4, %x:4, 0
    {'; ' if cfg.x_nost else ''}buffer_store_dwordx4 %x:4, v{V_KM}, {WS}, s{S_KMOFF} offen{SCKV}
    s_add_u32 s{S_KMOFF}, s{S_KMOFF}, 65536
    ''')
    stamp('t2')
    vm(sch[2])
    A(f'''
    s_mov_b64 exec, s[{S_MLO}:{S_MLO+1}]
    ds_write_b128 v{V_WL}, %s0:4
    ds_write_b128 v{V_WL}, %s1:4 offset:128
    s_mov_b64 exec, s[{S_MSM}:{S_MSM+1}]
    ds_write2_b32 v{V_SMW}, %smm+0, %smm+1 offset0:0 offset1:32
    ds_write2_b32 v{V_SMW}, %smm+2, %smm+3 offset0:64 offset1:96
    s_mov_b64 exec, -1
    ''')
    if cfg.x_lat:
        A('s_waitcnt vmcnt(0)')
        stamp('l0')
        env['v_load']()
        A('s_waitcnt vmcnt(0)')
        stamp('l1')
    if not cfg.x_nokv:
        if not cfg.x_lat:
            env['v_load']()
        if cfg.warm3 and not cfg.warm0:
            warm(cfg.wdist*262144, cfg.wdist*262144)
    stamp('t3')
    vm(sch[3])
    stamp('t4')
    A('s_waitcnt lgkmcnt(0)')
    A('s_barrier')
    stamp('b1')
    for wq in range(4):
        A(f'ds_read_b128 %r{wq}:4, v{V_L16} offset:{R_S + wq*RS}')
    A(f'ds_read_b128 %rm:4, v{V_SMR}')
    if cfg.rearm_sm:
        A(f'''
        v_mov_b64 %ng+0:2, -1
        v_mov_b64 %ng+2:2, -1
        s_add_u32 s{S_T4}, s{S_T5}, s{S_PDELTA}
        s_add_u32 s{S_T1}, s{S_T4}, {1*4*9216}
        s_add_u32 s{S_T2}, s{S_T4}, {2*4*9216}
        s_add_u32 s{S_T3}, s{S_T4}, {3*4*9216}
        buffer_store_dwordx4 %ng:4, v{V_RL}, {WS}, s{S_T4} offen{SC}
        buffer_store_dwordx4 %ng:4, v{V_RL}, {WS}, s{S_T1} offen{SC}
        buffer_store_dwordx4 %ng:4, v{V_RL}, {WS}, s{S_T2} offen{SC}
        buffer_store_dwordx4 %ng:4, v{V_RL}, {WS}, s{S_T3} offen{SC}
        buffer_store_dword %ng+0, v{V_RP}, {WS}, s{S_MTHD} offen{SC}
        ''')
    vm(sch[4])
    vm(18)
    stamp('s1')
    for i in range(4):
        A(f'v_add_f32 %r0+{i}, %r0+{i}, %r1+{i}')
        A(f'v_add_f32 %r2+{i}, %r2+{i}, %r3+{i}')
    for i in range(4):
        A(f'v_add_f32 %r0+{i}, %r0+{i}, %r2+{i}')
    A(f'''
    v_add_f32 %sm, %rm+0, %rm+1
    v_add_f32 %rm+2, %rm+2, %rm+3
    v_add_f32 %sm, %sm, %rm+2
    v_max3_f32 %m, %r0+0, %r0+1, %r0+2
    v_max3_f32 %m, %m, %r0+3, %sm
    v_max_f32_dpp %m, %m, %m row_ror:8 row_mask:0xf bank_mask:0xf
    v_mov_b32 %m2, %m
    v_permlane16_swap_b32 %m, %m2
    v_max_f32 %m, %m, %m2
    v_mov_b32 %m2, %m
    v_permlane32_swap_b32 %m, %m2
    v_max_f32 %m, %m, %m2
    v_mul_f32 %m, s{S_SC}, %m
    ''')
    stamp('s2')
    wo_ops = []
    for blk in range(2):
        wo_ops.append((('of', 0, blk), 'wc4', f'af{blk}'))
    for p in range(4):
        for kb in range(4):
            wo_ops.append((('o', p, kb), f'wc{p}', f'ad{kb}'))
    wo = Stream(wo_ops, 'wb')
    for i in range(4):
        A(f'v_fma_f32 %r0+{i}, %r0+{i}, s{S_SC}, -%m')
    A(f'v_fma_f32 %sm, %sm, s{S_SC}, -%m')
    for i in range(4):
        A(f'v_exp_f32 %r0+{i}, %r0+{i}')
    A(f'v_exp_f32 %sm, %sm')
    A(f'''
    v_cvt_pk_bf16_f32 %cv+0, %vc0+0, %vc0+1
    v_cvt_pk_bf16_f32 %cv+1, %vc0+2, %vc0+3
    v_cvt_pk_bf16_f32 %cv+2, %vc1+0, %vc1+1
    v_cvt_pk_bf16_f32 %cv+3, %vc1+2, %vc1+3
    v_cvt_pk_bf16_f32 %ps+0, %r0+0, %r0+1
    v_cvt_pk_bf16_f32 %ps+1, %r0+2, %r0+3
    v_mov_b32_dpp %u, %sm row_ror:8 row_mask:0xf bank_mask:0xf
    v_mov_b32_dpp %ps+2, %ps+0 row_ror:8 row_mask:0xf bank_mask:0xf
    v_mov_b32_dpp %ps+3, %ps+1 row_ror:8 row_mask:0xf bank_mask:0xf
    v_cvt_pk_bf16_f32 %pm+0, %sm, %u
    v_mfma_f32_16x16x32_bf16 %o0:4, {v(VS,4)}, %ps:4, 0
    v_mfma_f32_16x16x32_bf16 %o1:4, {v(VS+4,4)}, %ps:4, 0
    v_mov_b32 %pm+1, %pm+0
    v_permlane32_swap_b32 %pm+0, %pm+1
    v_mfma_f32_16x16x16_bf16 %o0:4, %cv+0:2, %pm:2, %o0:4
    v_mfma_f32_16x16x16_bf16 %o1:4, %cv+2:2, %pm:2, %o1:4
    ''')
    stamp('s3')
    for i in range(cfg.nwb):
        wo.read_next()
    A(f'''
    v_add_f32 %l, %r0+0, %r0+1
    v_add_f32 %l2, %r0+2, %r0+3
    v_add_f32 %l, %l, %sm
    v_add_f32 %l, %l, %l2
    v_add_f32_dpp %l, %l, %l row_ror:8 row_mask:0xf bank_mask:0xf
    v_mov_b32 %l2, %l
    v_permlane16_swap_b32 %l, %l2
    v_add_f32 %l, %l, %l2
    v_mov_b32 %l2, %l
    v_permlane32_swap_b32 %l, %l2
    v_add_f32 %l, %l, %l2
    v_rcp_f32 %l, %l
    {'; ' if cfg.x_nost else ''}buffer_store_dwordx2 %cv+0:2, v{V_VM}, {WS}, s{S_VMOFF} offen{SCKV}
    {'; ' if cfg.x_nost else ''}buffer_store_dwordx2 %cv+2:2, v{V_VM}, {WS}, s{S_VMOFF} offen offset:128{SCKV}
    s_add_u32 s{S_VMOFF}, s{S_VMOFF}, 131072
    s_cmp_eq_u32 s{S_STEP}, {cfg.nsteps-1}
    s_cbranch_scc1 {name}_exit
    ''')
    stamp('s4')
    for o in ('o0', 'o1'):
        for i in range(4):
            A(f'v_mul_f32 %{o}+{i}, %{o}+{i}, %l')
    A(f'''
    v_cvt_pk_bf16_f32 %op+0, %o0+0, %o0+1
    v_cvt_pk_bf16_f32 %op+1, %o0+2, %o0+3
    v_cvt_pk_bf16_f32 %op+2, %o1+0, %o1+1
    v_cvt_pk_bf16_f32 %op+3, %o1+2, %o1+3
    s_mov_b64 exec, s[{S_MLO}:{S_MLO+1}]
    ds_write_b128 v{V_OW}, %op:4
    s_mov_b64 exec, -1
    ''')
    if not cfg.x_nokv:
        env['k_prefetch']()
        if not cfg.x_nowarm and not cfg.warm3:
            env['v_warm']()
    zero('wc4', 4)
    zero('wc0', 4)
    zero('wc1', 4)
    A('s_waitcnt lgkmcnt(0)')
    A('s_barrier')
    stamp('b2')
    for blk in range(2):
        A(f'ds_read_b128 %af{blk}:4, v{V_MAF} offset:{128*blk}')
    for kb in range(4):
        A(f'ds_read_b128 %ad{kb}:4, v{V_MA0} offset:{64*kb}')

    def pub(p):
        A(f'''
        v_cvt_pk_bf16_f32 %pu{p}+0, %wc{p}+0, %wc{p}+1
        v_cvt_pk_bf16_f32 %pu{p}+1, %wc{p}+2, %wc{p}+3
        {f'v_bfi_b32 %pu{p}+{ED}, 1, s{S_EPO}, %pu{p}+{ED}' if cfg.epoch else ''}
        buffer_store_dwordx2 %pu{p}:2, v{V_PUBD}, {WS}, s{S_PART} offen offset:{512*p}{SC}
        ''')
    wo.mf()
    wo.mf()
    stamp('w1')
    for p in range(4):
        for kb in range(4):
            wo.mf()
            if p == 0 and kb == 3:
                A(f'''
                v_permlane32_swap_b32 %wc4+0, %wc4+2
                v_permlane32_swap_b32 %wc4+1, %wc4+3
                ''')
            if p == 1 and kb == 0:
                A(f'''
                v_add_f32 %wc4+0, %wc4+0, %wc4+2
                v_add_f32 %wc4+1, %wc4+1, %wc4+3
                ''')
            if p == 1 and kb == 1:
                if cfg.epoch:
                    A(f'''
                    v_cvt_pk_bf16_f32 %puf+0, %wc4+0, %wc4+1
                    v_mov_b32 %puf+1, %puf+0
                    v_permlane32_swap_b32 %puf+0, %puf+1
                    v_bfi_b32 %puf+{ED}, 1, s{S_EPO}, %puf+{ED}
                    buffer_store_dwordx2 %puf:2, v{V_PUBF}, {WS}, s{S_PART} offen{SC}
                    ''')
                else:
                    A(f'''
                    v_cvt_pk_bf16_f32 %puf, %wc4+0, %wc4+1
                    buffer_store_dword %puf, v{V_PUBF}, {WS}, s{S_PART} offen{SC}
                    ''')
            if p == 1 and kb == 2:
                zero('wc2', 4)
            if kb == 3 and p >= 1:
                pub(p - 1)
            if kb == 1 and p == 2:
                zero('wc3', 4)
    pub(3)
    stamp('wo')
    if cfg.stamps and variant == 'fast':
        A(f's_mov_b32 s75, s{S_BUD}')
    A(f'''
    s_cmp_eq_u32 s{S_ISRED}, 0
    s_cbranch_scc1 {L('nored')}
    s_add_u32 s{S_T1}, s{S_T5}, {1*4*9216}
    s_add_u32 s{S_T2}, s{S_T5}, {2*4*9216}
    s_add_u32 s{S_T3}, s{S_T5}, {3*4*9216}
    ''')
    so = [S_T5, S_T1, S_T2, S_T3]

    def rloads():
        for i in range(4):
            A(f'buffer_load_dwordx4 %rd+{4*i}:4, v{V_RL}, {WS}, s{so[i]} offen sc1')
    stamp('r0')
    A('s_mov_b32 s84, 0')
    rloads()
    A(f'''
    v_bfe_u32 %q0, v{V_L16}, 4, 1
    v_bfe_u32 %q1, v{V_L16}, 5, 2
    v_lshlrev_b32 %q0, 4, %q0
    v_mov_b32 %q2, 0x3f80
    v_lshlrev_b32 %q2, %q0, %q2
    ''')
    for i in range(4):
        A(f'v_cmp_eq_u32 vcc, {i}, %q1')
        A(f'v_cndmask_b32 %sr+{i}, 0, %q2, vcc')
    if not cfg.mrepoll:
        assert not cfg.epoch
        A(f's_branch {L("rchk")}')
        A.label(L('rpoll'))
        rloads()
        A.label(L('rchk'))
        A(f'''
        s_sub_u32 s{S_BUD}, s{S_BUD}, 1
        s_cbranch_scc1 {name}_exit
        v_max3_u32 %c0, %rd+0, %rd+1, %rd+2
        v_max3_u32 %c1, %rd+3, %rd+4, %rd+5
        v_max3_u32 %c0, %c0, %rd+6, %rd+7
        v_max3_u32 %c1, %c1, %rd+8, %rd+9
        v_max3_u32 %c0, %c0, %rd+10, %rd+11
        v_max3_u32 %c1, %c1, %rd+12, %rd+13
        v_max3_u32 %c0, %c0, %rd+14, %rd+15
        v_max_u32 %c0, %c0, %c1
        v_cmp_eq_u32 vcc, -1, %c0
        s_cbranch_vccnz {L('rpoll')}
        ''')
    elif cfg.pp_r:
        assert cfg.epoch
        for i in range(4):
            A(f's_mov_b64 s[{S_MK+2*i}:{S_MK+2*i+1}], -1')
        A.label(L('rchk'))
        A(f'''
        s_sub_u32 s{S_BUD}, s{S_BUD}, 1
        s_cbranch_scc1 {name}_exit
        s_waitcnt vmcnt({cfg.pp_rw})
        ''')
        for i in range(4):
            A(f's_mov_b64 exec, s[{S_MK+2*i}:{S_MK+2*i+1}]')
            A(f'buffer_load_dwordx4 %rd+{4*i}:4, v{V_RL}, {WS}, s{so[i]} offen sc1', tag='nowait')
        A('s_mov_b64 exec, -1')
        A('s_waitcnt vmcnt(4)')
        for i in range(4):
            A(f'v_bitop3_b32 %ck+{i}, %rd+{4*i+1}, %rd+{4*i+3}, s{S_EPO} bitop3:0x7e', tag='nowait')
        A(f'''
        v_or3_b32 %c0, %ck+0, %ck+1, %ck+2
        v_or_b32 %c0, %c0, %ck+3
        v_and_b32 %c0, 1, %c0
        v_cmp_ne_u32 vcc, 0, %c0
        s_cbranch_vccz {L("rok")}
        ''')
        for i in range(4):
            A(f'v_and_b32 %ck+{i}, 1, %ck+{i}')
            A(f'v_cmp_ne_u32 s[{S_MK+2*i}:{S_MK+2*i+1}], 0, %ck+{i}')
        A(f's_branch {L("rchk")}')
        A.label(L('rok'))
        stamp('r2')
    else:
        A.label(L('rchk'))
        A(f'''
        s_sub_u32 s{S_BUD}, s{S_BUD}, 1
        s_cbranch_scc1 {name}_exit
        ''')
        for i in range(4):
            if cfg.epoch:
                A(f'v_bitop3_b32 %ck+{i}, %rd+{4*i+1}, %rd+{4*i+3}, s{S_EPO} bitop3:0x7e')
            else:
                A(f'v_max3_u32 %ck+{i}, %rd+{4*i}, %rd+{4*i+1}, %rd+{4*i+2}')
                A(f'v_max_u32 %ck+{i}, %ck+{i}, %rd+{4*i+3}')
        if cfg.epoch:
            A(f'''
            v_or3_b32 %c0, %ck+0, %ck+1, %ck+2
            v_or_b32 %c0, %c0, %ck+3
            v_and_b32 %c0, 1, %c0
            v_cmp_ne_u32 vcc, 0, %c0
            ''')
        else:
            A(f'''
            v_max3_u32 %c0, %ck+0, %ck+1, %ck+2
            v_max_u32 %c0, %c0, %ck+3
            v_cmp_eq_u32 vcc, -1, %c0
            ''')
        if 'r1' in cfg.pts and variant == 'fast' and cfg.stamps:
            lab1 = L('r1skip')
            A(f's_cmp_lg_u32 s84, 0')
            A(f's_cbranch_scc1 {lab1}')
            stamp('r1')
            A('s_mov_b32 s84, 1')
            A.label(lab1)
        A(f's_cbranch_vccz {L("rok")}')
        for i in range(4):
            if cfg.epoch:
                A(f'v_and_b32 %ck+{i}, 1, %ck+{i}')
                A(f'v_cmp_ne_u32 s[{S_MK+2*i}:{S_MK+2*i+1}], 0, %ck+{i}')
            else:
                A(f'v_cmp_eq_u32 s[{S_MK+2*i}:{S_MK+2*i+1}], -1, %ck+{i}')
        for i in range(4):
            A(f's_mov_b64 exec, s[{S_MK+2*i}:{S_MK+2*i+1}]')
            A(f'buffer_load_dwordx4 %rd+{4*i}:4, v{V_RL}, {WS}, s{so[i]} offen sc1')
        A('s_mov_b64 exec, -1')
        A(f's_branch {L("rchk")}')
        A.label(L('rok'))
        stamp('r2')
    A(f'''
    v_mfma_f32_16x16x32_bf16 %ra:4, %rd+0:4, %sr:4, 0
    v_mfma_f32_16x16x32_bf16 %ra:4, %rd+4:4, %sr:4, %ra:4
    v_mfma_f32_16x16x32_bf16 %ra:4, %rd+8:4, %sr:4, %ra:4
    v_mfma_f32_16x16x32_bf16 %ra:4, %rd+12:4, %sr:4, %ra:4
    ''', tag='nowait' if cfg.pp_r else None)
    A(f'''
    v_mov_b64 %neg+0:2, -1
    v_mov_b64 %neg+2:2, -1
    v_permlane32_swap_b32 %ra+0, %ra+2
    v_permlane32_swap_b32 %ra+1, %ra+3
    v_add_f32 %ra+0, %ra+0, %ra+2
    v_add_f32 %ra+1, %ra+1, %ra+3
    v_cvt_pk_bf16_f32 %c0, %ra+0, %ra+1
    buffer_store_dword %c0, v{V_RP}, {WS}, s{S_MNXT} offen{SC}
    ''')
    stamp('r3')
    if not cfg.rearm_sm:
        A(f'buffer_store_dword %neg+0, v{V_RP}, {WS}, s{S_MCUR} offen{SC}')
    if not cfg.norearm and not cfg.rearm_sm and not cfg.epoch:
        for i in range(4):
            A(f'buffer_store_dwordx4 %neg:4, v{V_RL}, {WS}, s{so[i]} offen{SC}')
    A.label(L('nored'))
    if cfg.x_bar:
        A('s_barrier')
    stamp('red')
    if cfg.stamps and variant == 'fast':
        A(f's_sub_u32 s73, s75, s{S_BUD}')
        A(f's_mov_b32 s74, s{S_BUD}')
    A(f'''
    s_mov_b32 s{S_T1}, s{S_MCUR}
    s_mov_b32 s{S_MCUR}, s{S_MNXT}
    s_mov_b32 s{S_MNXT}, s{S_MTHD}
    s_mov_b32 s{S_MTHD}, s{S_T1}
    s_add_u32 s{S_PART}, s{S_PART}, s{S_PDELTA}
    s_add_u32 s{S_T5}, s{S_T5}, s{S_PDELTA}
    s_sub_u32 s{S_PDELTA}, 0, s{S_PDELTA}
    s_add_u32 s{S_STEP}, s{S_STEP}, 1
    s_bfe_u32 s{S_EPO}, s{S_STEP}, 0x10001
    ''')
    if cfg.stamps and variant == 'fast':
        lab = L('nost')
        A(f'''
        s_cmp_lg_u32 s{S_STEP}, 20
        s_cbranch_scc1 {lab}
        s_waitcnt lgkmcnt(0)
        s_lshl_b32 s{S_T1}, s{S_H}, 2
        s_add_u32 s{S_T1}, s{S_T1}, s{S_W}
        s_lshl_b32 s{S_T1}, s{S_T1}, 7
        s_add_u32 s{S_T1}, s{S_T1}, {WS_STAMP}
        v_mov_b32 %z0, 0
        ''')
        for i in range(9):
            A(f'v_mov_b32 %z1+0, s{56+2*i}')
            A(f'v_mov_b32 %z1+1, s{57+2*i}')
            A(f'buffer_store_dwordx2 %z1:2, %z0, {WS}, s{S_T1} offen offset:{8*i}')
            A('s_waitcnt vmcnt(0)')
        A.label(lab)
    A(f's_branch {L("top")}')
    A.label(L('end'))
    A.regalloc(L('pre'), L('end'), POOL, verbose=True, outer=(L('top'),), wrap=(('rd',) if cfg.pp_r else ()))
```

```python
from asmlib import Asm, v, a, s, r
from layout import *
import struct


def f2u(x):
    return struct.unpack('<I', struct.pack('<f', x))[0]


class GemmCfg:
    def __init__(self, NI, NJ, nstages, nbuf, ldx, mode, sc1=False):
        self.NI, self.NJ = NI, NJ
        self.TW, self.TT = 64 * NI, 64 * NJ
        self.nstages, self.nbuf = nstages, nbuf
        self.ldx = ldx
        self.mode = mode
        self.sc1 = sc1
        self.xbytes = self.TT * 128
        self.wrow = self.TW * 2
        self.wbytes = 64 * self.wrow
        self.stage = self.xbytes + self.wbytes
        self.nx = self.xbytes // 4096
        self.nw = self.wbytes // 4096


S_WAVE = 4
SRD_WS, SRD_W = 8, 12
S_XOFF, S_WOFF, S_LDW = 16, 17, 18
S_XK, S_WK, S_T1, S_T2, S_LOOP = 19, 20, 21, 22, 23
S_WJ = 24
S_OUT, S_LDO = 25, 26
S_C0 = 27
S_T0 = 28
SRD_B = 32
SRD_X = 36
S_K0, S_K1, S_K2 = 40, 41, 42

V_LANE = 0
V_XD = 1
V_WD = 2
V_XA = 5
V_WA = 9
V_T = 13
FR = 16
EP = 80


def emit_gemm_setup(A, c):
    lane = V_LANE
    t0, t1, t2 = V_T, V_T + 1, V_T + 2
    A(f'''
    v_lshrrev_b32 v{t0}, 4, v{lane}
    s_and_b32 s{S_T1}, s{S_WAVE}, 1
    s_lshl_b32 s{S_T1}, s{S_T1}, 2
    v_add_u32 v{t0}, s{S_T1}, v{t0}
    v_and_b32 v{t1}, 7, v{lane}
    v_xor_b32 v{t0}, v{t0}, v{t1}
    v_lshlrev_b32 v{t0}, 4, v{t0}
    v_lshrrev_b32 v{t1}, 3, v{lane}
    s_lshl_b32 s{S_T1}, s{S_WAVE}, 3
    v_add_u32 v{t1}, s{S_T1}, v{t1}
    s_mov_b32 s{S_T1}, {c.ldx}
    v_mul_lo_u32 v{t1}, v{t1}, s{S_T1}
    v_add_u32 v{V_XD}, v{t0}, v{t1}
    ''')
    if c.wrow == 512:
        A(f'''
        v_lshrrev_b32 v{t0}, 5, v{lane}
        s_and_b32 s{S_T1}, s{S_WAVE}, 1
        s_lshl_b32 s{S_T1}, s{S_T1}, 1
        v_add_u32 v{t1}, s{S_T1}, v{t0}
        v_lshlrev_b32 v{t1}, 2, v{t1}
        v_and_b32 v{t2}, 31, v{lane}
        v_xor_b32 v{t1}, v{t1}, v{t2}
        v_lshlrev_b32 v{t1}, 4, v{t1}
        s_lshl_b32 s{S_T1}, s{S_WAVE}, 1
        v_add_u32 v{t0}, s{S_T1}, v{t0}
        v_mul_lo_u32 v{t0}, v{t0}, s{S_LDW}
        v_add_u32 v{V_WD}, v{t0}, v{t1}
        s_lshl_b32 s{S_WJ}, s{S_LDW}, 3
        ''')
    elif c.wrow == 384:
        for b in range(3):
            A(f'''
            v_add_u32 v{t0}, {64*b}, v{lane}
            v_mul_u32_u24 v{t1}, 2731, v{t0}
            v_lshrrev_b32 v{t1}, 16, v{t1}
            v_mul_u32_u24 v{t2}, 24, v{t1}
            v_sub_u32 v{t0}, v{t0}, v{t2}
            v_and_b32 v{t2}, 2, v{t1}
            v_lshlrev_b32 v{t2}, 1, v{t2}
            v_xor_b32 v{t0}, v{t0}, v{t2}
            v_lshlrev_b32 v{t0}, 4, v{t0}
            s_lshl_b32 s{S_T1}, s{S_WAVE}, 4
            v_add_u32 v{t1}, s{S_T1}, v{t1}
            v_mul_lo_u32 v{t1}, v{t1}, s{S_LDW}
            v_add_u32 v{V_WD+b}, v{t0}, v{t1}
            ''')
        assert all((P * 2731) >> 16 == P // 24 for P in range(192))
        A(f's_lshl_b32 s{S_WJ}, s{S_LDW}, 3')
    else:
        raise ValueError
    A(f'''
    v_and_b32 v{t0}, 31, v{lane}
    v_bfe_u32 v{t1}, v{lane}, 1, 3
    v_lshrrev_b32 v{t2}, 5, v{lane}
    v_xor_b32 v{t1}, v{t1}, v{t2}
    v_lshlrev_b32 v{t1}, 4, v{t1}
    s_lshr_b32 s{S_T1}, s{S_WAVE}, 1
    s_mul_i32 s{S_T1}, s{S_T1}, {c.NJ*32}
    v_add_u32 v{t0}, s{S_T1}, v{t0}
    v_lshl_add_u32 v{V_XA}, v{t0}, 7, v{t1}
    v_xor_b32 v{V_XA+1}, 32, v{V_XA}
    v_xor_b32 v{V_XA+2}, 64, v{V_XA}
    v_xor_b32 v{V_XA+3}, 96, v{V_XA}
    ''')
    swz = (lambda: f'v_lshlrev_b32 v{t2}, 2, v{t2}') if c.wrow == 512 else None
    A(f'''
    v_bfe_u32 v{t2}, v{lane}, 2, 2
    v_lshrrev_b32 v{t0}, 5, v{lane}
    v_lshl_add_u32 v{t0}, v{t0}, 3, v{t2}
    v_mul_u32_u24 v{t0}, {c.wrow}, v{t0}
    v_and_b32 v{t1}, 1, v{lane}
    v_lshl_add_u32 v{t0}, v{t1}, 3, v{t0}
    v_add_u32 v{t0}, {c.xbytes}, v{t0}
    ''')
    if c.wrow == 512:
        A(f'v_lshlrev_b32 v{t2}, 2, v{t2}')
    else:
        A(f'''
        v_and_b32 v{t2}, 2, v{t2}
        v_lshlrev_b32 v{t2}, 1, v{t2}
        ''')
    for i in range(c.NI):
        wa = V_WA + i
        A(f'''
        v_bfe_u32 v{t1}, v{lane}, 4, 1
        v_lshlrev_b32 v{t1}, 1, v{t1}
        v_bfe_u32 v{wa}, v{lane}, 1, 1
        v_add_u32 v{t1}, v{t1}, v{wa}
        s_and_b32 s{S_T1}, s{S_WAVE}, 1
        s_mul_i32 s{S_T1}, s{S_T1}, {c.NI*4}
        s_add_u32 s{S_T1}, s{S_T1}, {4*i}
        v_add_u32 v{t1}, s{S_T1}, v{t1}
        v_xor_b32 v{t1}, v{t1}, v{t2}
        v_lshl_add_u32 v{wa}, v{t1}, 4, v{t0}
        ''')


def emit_gemm_main(A, c, swap, label):
    NI, NJ = c.NI, c.NJ
    WF = lambda p, i: FR + p * (NI + NJ) * 4 + 4 * i
    XF = lambda p, j: FR + p * (NI + NJ) * 4 + 4 * NI + 4 * j
    acc = lambda i, j: a(16 * (i * NJ + j), 16)
    WS = f's[{SRD_WS}:{SRD_WS+3}]'
    WW = f's[{SRD_W}:{SRD_W+3}]'
    ndma = c.nx + c.nw

    def dma_list(buf):
        g = []
        base = buf * c.stage
        for j in range(c.nx):
            g.append(f'''s_add_u32 m0, s{S_K0}, {base + 4096*j}
            s_add_u32 s{S_T1}, s{S_XK}, {j*32*c.ldx}
            buffer_load_dwordx4 v{V_XD}, {WS}, s{S_T1} offen lds''')
        wb = base + c.xbytes
        if c.wrow == 512:
            for j in range(c.nw):
                pre = f's_mov_b32 s{S_T2}, s{S_WK}' if j == 0 else f's_add_u32 s{S_T2}, s{S_T2}, s{S_WJ}'
                g.append(f'''s_add_u32 m0, s{S_K0}, {wb + 4096*j}
                {pre}
                buffer_load_dwordx4 v{V_WD}, {WW}, s{S_T2} offen lds''')
        else:
            for aa in range(2):
                for b in range(3):
                    if b == 0:
                        pre = f's_mov_b32 s{S_T2}, s{S_WK}' if aa == 0 else f's_add_u32 s{S_T2}, s{S_T2}, s{S_WJ}'
                    else:
                        pre = 's_nop 0'
                    g.append(f'''s_add_u32 m0, s{S_K1}, {wb + (3*aa+b)*1024}
                    {pre}
                    buffer_load_dwordx4 v{V_WD+b}, {WW}, s{S_T2} offen lds''')
        g.append(f'''s_add_u32 s{S_XK}, s{S_XK}, 128
        s_add_u32 s{S_WK}, s{S_WK}, s{S_K2}''')
        return g

    A(f'''
    s_lshl_b32 s{S_K0}, s{S_WAVE}, 10
    s_mul_i32 s{S_K1}, s{S_WAVE}, 6144
    s_lshl_b32 s{S_K2}, s{S_LDW}, 6
    s_mov_b32 s{S_XK}, s{S_XOFF}
    s_mov_b32 s{S_WK}, s{S_WOFF}
    ''')

    cur = [0]

    def point(buf):
        d = buf * c.stage - cur[0]
        if d:
            for x in [V_XA + k for k in range(4)] + [V_WA + i for i in range(NI)]:
                A(f'v_add_u32 v{x}, {d & 0xffffffff:#x}, v{x}')
            cur[0] = buf * c.stage

    def reads(p, ks):
        g = []
        for i in range(NI):
            for jj in range(2):
                g.append(f'ds_read_b64_tr_b16 {v(WF(p,i)+2*jj,2)}, v{V_WA+i} offset:{(16*ks+4*jj)*c.wrow}')
        for j in range(NJ):
            g.append(f'ds_read_b128 {v(XF(p,j),4)}, v{V_XA+ks} offset:{4096*j}')
        wr = g[:2 * NI]
        xr = g[2 * NI:]
        o = wr[0:2] + xr[0:1] + wr[2:4] + xr[1:]
        o += wr[4:]
        return o

    def step(p, first, fill):
        mm = []
        for i in range(NI):
            for j in range(NJ):
                cin = '0' if first else acc(i, j)
                if swap:
                    mm.append(f'v_mfma_f32_32x32x16_bf16 {acc(i,j)}, {v(XF(p,j),4)}, {v(WF(p,i),4)}, {cin}')
                else:
                    mm.append(f'v_mfma_f32_32x32x16_bf16 {acc(i,j)}, {v(WF(p,i),4)}, {v(XF(p,j),4)}, {cin}')
        n = len(mm)
        fi = 0
        for q, m in enumerate(mm):
            A(m)
            tgt = (len(fill) * (q + 1) + n - 1) // n
            while fi < min(tgt, len(fill)):
                A(fill[fi])
                fi += 1
        while fi < len(fill):
            A(fill[fi])
            fi += 1

    def stage(k, buf, first, issue, outstanding_after, last):
        for ks in range(4):
            p = ks & 1
            if ks < 3:
                step(p, first and ks == 0, reads(p ^ 1, ks + 1))
            else:
                fill = []
                if not last:
                    A(f's_waitcnt vmcnt({outstanding_after}) lgkmcnt(0)')
                    A('s_barrier')
                    nb = (buf + 1) % c.nbuf
                    point(nb)
                    fill = reads(p ^ 1, 0)
                    if issue:
                        fill = fill[:3] + dma_list(buf) [:4] + fill[3:] + dma_list(buf)[4:]
                step(p, False, fill)

    for b in range(c.nbuf):
        for g in dma_list(b):
            A(g)
    A(f's_waitcnt vmcnt({ndma*(c.nbuf-1)})')
    A('s_barrier')
    for g in reads(0, 0):
        A(g)
    nb = c.nbuf
    if c.nstages % nb == 0 and c.nstages > 3 * nb:
        for i in range(16 * NI * NJ):
            A(f'v_accvgpr_write_b32 a{i}, 0')
        ngroups = c.nstages // nb
        A(f's_mov_b32 s{S_LOOP}, {ngroups - 1}')
        A.label(label + '_loop')
        for q in range(nb):
            stage(q, q, False, True, ndma * (nb - 2), False)
        assert cur[0] == 0
        A(f'''
        s_sub_u32 s{S_LOOP}, s{S_LOOP}, 1
        s_cmp_lg_u32 s{S_LOOP}, 0
        s_cbranch_scc1 {label}_loop
        ''')
        for q in range(nb):
            rem = nb - 1 - q
            stage(q, q, False, False, ndma * max(rem - 1, 0), rem == 0)
    else:
        for k in range(c.nstages):
            rem = c.nstages - 1 - k
            issue = k + nb < c.nstages
            infl = max(0, min(k + nb - 1, c.nstages - 1) - (k + 1))
            stage(k, k % nb, k == 0, issue, ndma * infl, rem == 0)
    point(0)
    A('s_barrier')


def GELU_consts():
    k0 = -2.0 * 0.7978845608028654 * 1.4426950408889634
    k1 = k0 * 0.044715
    return f2u(k0), f2u(k1)


def emit_epi_bf16(A, c, swap, gelu, label):
    NI, NJ = c.NI, c.NJ
    lane = V_LANE
    WS = f's[{SRD_WS}:{SRD_WS+3}]'
    sc = ' sc1' if c.sc1 else ''
    t0, t1 = V_T, V_T + 1
    VO = V_T + 2
    nN, nM = (NI, NJ) if swap else (NJ, NI)
    wn = f's_and_b32 s{S_T1}, s{S_WAVE}, 1' if swap else f's_lshr_b32 s{S_T1}, s{S_WAVE}, 1'
    wm = f's_lshr_b32 s{S_T2}, s{S_WAVE}, 1' if swap else f's_and_b32 s{S_T2}, s{S_WAVE}, 1'
    VO2 = EP + 77
    A(f'''
    {wn}
    {wm}
    s_mul_i32 s{S_T1}, s{S_T1}, {nN*32}
    s_mul_i32 s{S_T2}, s{S_T2}, {nM*262144 if swap else nM*32*2}
    v_and_b32 v{t0}, 15, v{lane}
    v_add_u32 v{t0}, s{S_T1}, v{t0}
    v_mul_lo_u32 v{t0}, v{t0}, s{S_LDO}
    v_bfe_u32 v{t1}, v{lane}, 4, 1
    v_lshl_add_u32 v{t0}, v{t1}, 5, v{t0}
    v_lshrrev_b32 v{t1}, 5, v{lane}
    v_lshl_add_u32 v{t0}, v{t1}, 4, v{t0}
    v_add_u32 v{VO}, s{S_T2}, v{t0}
    s_lshl_b32 s{S_T2}, s{S_LDO}, 4
    v_add_u32 v{VO2}, s{S_T2}, v{VO}
    s_lshl_b32 s{S_T2}, s{S_LDO}, 5
    ''')
    BI = EP + 40
    if gelu:
        k0, k1 = GELU_consts()
        A(f'''
        s_and_b32 s{S_T1}, s{S_WAVE}, 1
        s_mul_i32 s{S_T1}, s{S_T1}, {NI*32}
        s_add_u32 s{S_T1}, s{S_T1}, s{S_C0}
        s_lshl_b32 s{S_T1}, s{S_T1}, 1
        v_lshrrev_b32 v{t1}, 5, v{lane}
        v_lshlrev_b32 v{t1}, 3, v{t1}
        v_mov_b32 v{EP+76}, {k0:#x}
        s_mov_b32 s{S_K1}, {k1:#x}
        ''')
    for i in range(NI):
        if gelu:
            for q in range(4):
                A(f'buffer_load_dwordx2 {v(BI+16+2*q,2)}, v{t1}, s[{SRD_B}:{SRD_B+3}], s{S_T1} offen offset:{64*i+16*q}')
            for q in range(4):
                for e2 in range(2):
                    src = BI + 16 + 2 * q + e2
                    A(f'v_lshlrev_b32 v{BI+4*q+2*e2}, 16, v{src}')
                    A(f'v_and_b32 v{BI+4*q+2*e2+1}, 0xffff0000, v{src}')
        for j in range(NJ):
            ab = 16 * (i * NJ + j)
            E = EP + 20 * (j & 1)
            for e in range(16):
                A(f'v_accvgpr_read_b32 v{E+e}, a{ab+e}')
            if gelu:
                G = EP + 72
                for e0 in range(0, 16, 4):
                    xs = [E + e0 + e for e in range(4)]
                    gs = [G + e for e in range(4)]
                    for e in range(4):
                        A(f'v_add_f32 v{xs[e]}, v{xs[e]}, v{BI+e0+e}')
                    for e in range(4):
                        A(f'v_mul_f32 v{gs[e]}, v{xs[e]}, v{xs[e]}')
                    for e in range(4):
                        A(f'v_fma_f32 v{gs[e]}, v{gs[e]}, s{S_K1}, v{G+4}')
                    for e in range(4):
                        A(f'v_mul_f32 v{gs[e]}, v{gs[e]}, v{xs[e]}')
                    for e in range(4):
                        A(f'v_exp_f32 v{gs[e]}, v{gs[e]}')
                    for e in range(4):
                        A(f'v_add_f32 v{gs[e]}, 1.0, v{gs[e]}')
                    for e in range(4):
                        A(f'v_rcp_f32 v{gs[e]}, v{gs[e]}')
                    for e in range(4):
                        A(f'v_mul_f32 v{xs[e]}, v{xs[e]}, v{gs[e]}')
            for u in range(2):
                R = E + 8 * u
                A(f'''
                v_cvt_pk_bf16_f32 v{R}, v{E+8*u}, v{E+8*u+1}
                v_cvt_pk_bf16_f32 v{R+1}, v{E+8*u+2}, v{E+8*u+3}
                v_cvt_pk_bf16_f32 v{R+2}, v{E+8*u+4}, v{E+8*u+5}
                v_cvt_pk_bf16_f32 v{R+3}, v{E+8*u+6}, v{E+8*u+7}
                v_permlane32_swap_b32 v{R}, v{R+2}
                v_permlane32_swap_b32 v{R+1}, v{R+3}
                ''')
            for k in range(4):
                A(f'v_permlane16_swap_b32 v{E+k}, v{E+8+k}')
            fn, fm = (i, j) if swap else (j, i)
            if fn == 0:
                A(f's_mov_b32 s{S_LOOP}, s{S_OUT}')
            else:
                A(f's_mul_i32 s{S_LOOP}, s{S_T2}, {fn}')
                A(f's_add_u32 s{S_LOOP}, s{S_LOOP}, s{S_OUT}')
            if swap and fm:
                A(f's_add_u32 s{S_LOOP}, s{S_LOOP}, {fm*262144}')
            imm = 0 if swap else fm * 64
            A(f'buffer_store_dwordx4 {v(E,4)}, v{VO}, {WS}, s{S_LOOP} offen offset:{imm}{sc}')
            A(f'buffer_store_dwordx4 {v(E+8,4)}, v{VO2}, {WS}, s{S_LOOP} offen offset:{imm}{sc}')


def emit_epi_base(A, c):
    NI, NJ = c.NI, c.NJ
    lane = V_LANE
    WS = f's[{SRD_WS}:{SRD_WS+3}]'
    sc = ' sc1' if c.sc1 else ''
    t0, t1 = V_T, V_T + 1
    VO, VX = V_T + 2, EP + 60
    A(f'''
    s_lshr_b32 s{S_T1}, s{S_WAVE}, 1
    s_and_b32 s{S_T2}, s{S_WAVE}, 1
    s_mul_i32 s{S_T1}, s{S_T1}, {NJ*32}
    s_add_u32 s{S_T1}, s{S_T1}, s{S_T0}
    s_mul_i32 s{S_T2}, s{S_T2}, {NI*32}
    s_add_u32 s{S_T2}, s{S_T2}, s{S_C0}
    v_and_b32 v{t0}, 31, v{lane}
    v_add_u32 v{t0}, s{S_T1}, v{t0}
    v_lshrrev_b32 v{t1}, 5, v{lane}
    v_lshlrev_b32 v{t1}, 2, v{t1}
    v_add_u32 v{t1}, s{S_T2}, v{t1}
    v_mul_u32_u24 v{VO}, 2304, v{t0}
    v_lshl_add_u32 v{VO}, v{t1}, 2, v{VO}
    v_mul_u32_u24 v{VX}, 1152, v{t0}
    v_lshl_add_u32 v{VX}, v{t1}, 1, v{VX}
    v_lshlrev_b32 v{t1}, 1, v{t1}
    ''')
    BI = EP + 40
    for i in range(NI):
        for q in range(4):
            A(f'buffer_load_dwordx2 {v(BI+2*q,2)}, v{t1}, s[{SRD_B}:{SRD_B+3}], 0 offen offset:{64*i+16*q}')
        for j in range(NJ):
            ab = 16 * (i * NJ + j)
            E = EP + 20 * (j & 1)
            XV = EP + 48
            A(f's_mov_b32 s{S_LOOP}, {j*32*1152}')
            for q in range(4):
                A(f'buffer_load_dwordx2 {v(XV+2*q,2)}, v{VX}, s[{SRD_X}:{SRD_X+3}], s{S_LOOP} offen offset:{64*i+16*q}')
            for e in range(16):
                A(f'v_accvgpr_read_b32 v{E+e}, a{ab+e}')
            T1 = EP + 56
            for q in range(4):
                for e2 in range(2):
                    for hi in range(2):
                        e = 4 * q + 2 * e2 + hi
                        for src in (BI + 2 * q + e2, XV + 2 * q + e2):
                            if hi == 0:
                                A(f'v_lshlrev_b32 v{T1}, 16, v{src}')
                            else:
                                A(f'v_and_b32 v{T1}, 0xffff0000, v{src}')
                            A(f'v_add_f32 v{E+e}, v{E+e}, v{T1}')
            A(f's_mov_b32 s{S_LOOP}, {WS_BASE + j*32*2304}')
            for q in range(4):
                A(f'buffer_store_dwordx4 {v(E+4*q,4)}, v{VO}, {WS}, s{S_LOOP} offen offset:{128*i+32*q}{sc}')


SRD_O = 44


def emit_epi_out(A, c):
    NI, NJ = c.NI, c.NJ
    lane = V_LANE
    WS = f's[{SRD_WS}:{SRD_WS+3}]'
    t0, t1 = V_T, V_T + 1
    VO, VX = V_T + 2, EP + 60
    A(f'''
    s_lshr_b32 s{S_T1}, s{S_WAVE}, 1
    s_and_b32 s{S_T2}, s{S_WAVE}, 1
    s_mul_i32 s{S_T1}, s{S_T1}, {NJ*32}
    s_add_u32 s{S_T1}, s{S_T1}, s{S_T0}
    s_mul_i32 s{S_T2}, s{S_T2}, {NI*32}
    s_add_u32 s{S_T2}, s{S_T2}, s{S_C0}
    v_and_b32 v{t0}, 31, v{lane}
    v_add_u32 v{t0}, s{S_T1}, v{t0}
    v_lshrrev_b32 v{t1}, 5, v{lane}
    v_lshlrev_b32 v{t1}, 2, v{t1}
    v_add_u32 v{VO}, s{S_T2}, v{t1}
    v_mul_u32_u24 v{VX}, 2304, v{t0}
    v_lshl_add_u32 v{VX}, v{VO}, 2, v{VX}
    v_add_u32 v{VO}, v{VO}, v{t1}
    v_lshlrev_b32 v{VO}, 1, v{VO}
    v_mul_u32_u24 v{t0}, 1152, v{t0}
    v_add_u32 v{VO}, v{VO}, v{t0}
    ''')
    for i in range(NI):
        for j in range(NJ):
            ab = 16 * (i * NJ + j)
            E = EP + 20 * (j & 1)
            XV = EP + 40
            A(f's_mov_b32 s{S_LOOP}, {WS_BASE + j*32*2304}')
            for q in range(4):
                A(f'buffer_load_dwordx4 {v(XV+4*q,4)}, v{VX}, {WS}, s{S_LOOP} offen offset:{128*i+32*q}')
            for e in range(16):
                A(f'v_accvgpr_read_b32 v{E+e}, a{ab+e}')
            for e in range(16):
                A(f'v_add_f32 v{E+e}, v{E+e}, v{XV+e}')
            for u in range(2):
                R = E + 8 * u
                A(f'''
                v_cvt_pk_bf16_f32 v{R}, v{E+8*u}, v{E+8*u+1}
                v_cvt_pk_bf16_f32 v{R+1}, v{E+8*u+2}, v{E+8*u+3}
                v_cvt_pk_bf16_f32 v{R+2}, v{E+8*u+4}, v{E+8*u+5}
                v_cvt_pk_bf16_f32 v{R+3}, v{E+8*u+6}, v{E+8*u+7}
                v_permlane32_swap_b32 v{R}, v{R+2}
                v_permlane32_swap_b32 v{R+1}, v{R+3}
                ''')
            A(f's_mov_b32 s{S_LOOP}, {j*32*1152}')
            for u in range(2):
                A(f'buffer_store_dwordx4 {v(E+8*u,4)}, v{VO}, s[{SRD_O}:{SRD_O+3}], s{S_LOOP} offen offset:{64*i+32*u}')
```

```python
import sys
from gen import *
from kernels import *
from chain2 import emit_chain, ChainCfg
cfg = ChainCfg()
txt, n = build([('prep_kernel', emit_prep, 256, 256), ('gemm1_kernel', emit_gemm1, 512, 256),
                ('chain_kernel', lambda A, name: emit_chain(A, cfg, name), 512, 256),
                ('ffn2_kernel', emit_ffn2, 512, 256), ('attn_kernel', emit_attn, 256, 256), ('outp_kernel', emit_outp, 512, 256)],
               [('prep_kernel', 64, 256, 0), ('gemm1_kernel', 528, 256, 131072), ('chain_kernel', 256, 256, 163840),
                ('ffn2_kernel', 48, 256, 3*40960), ('attn_kernel', 512, 256, 32768), ('outp_kernel', 48, 256, 3*40960)])
out = sys.argv[1] if len(sys.argv) > 1 else 'full2.s'
open(out, 'w').write(txt)
print('instrs', n, 'bytes', len(txt))
```

```python
from asmlib import Asm, v, a, s, r
from layout import *

RS = 21792
R_S, R_M, R_W = 0, 1024, 3328
L_SM = 4 * RS
L_W = 16384
HALF = 73728
L_R1 = L_W + HALF
LDS_BYTES = 163840

SCALE_LOG2E = 0x3E0293EE
import struct, math
def f2u(x):
    return struct.unpack('<I', struct.pack('<f', x))[0]
SCALE_LOG2E = f2u(128 ** -0.5 * math.log2(math.e))

QK = [('qk', t, kb) for kb in range(18) for t in range(2)]
VV = [('v', t, blk) for blk in range(9) for t in range(2)]
WO = [('of', 0, blk) for blk in range(2)] + [('o', p, kb) for p in range(4) for kb in range(4)]


class ChainCfg:
    def __init__(self):
        self.lds_ops = [('qk', 1, kb) for kb in (0, 1, 2, 5, 7, 9, 11, 13, 15)] + \
                       [('v', 1, blk) for blk in (1, 5, 8)] + \
                       [('o', 0, 0), ('o', 0, 3), ('o', 1, 2), ('o', 2, 1), ('o', 3, 0), ('o', 3, 3)]
        self.na = 5
        self.nwb = 2
        self.nqb = 3
        self.stamps = False
        self.norearm = False
        self.nsteps = 64
        self.kv_sc1 = False
        self.x_nokv = False
        self.x_bar = True
        self.x_nost = False
        self.x_nowarm = False
        self.warm3 = True
        self.wdist = 0
        self.x_lat = False
        self.warm0 = True
        self.pts = ('m', 'b1', 'b2', 'wo', 'red')
        self.epoch = True
        self.mrepoll = True
        self.rearm_sm = False
        self.pp_r = False
        self.pp_m = False
        self.pp_rw = 3
        self.pp_mw = 2
        self.fused = False


S_H, S_W, S_STEP, S_BUD, S_T0 = 3, 4, 5, 6, 7
SRD_WS, SRD_X = 8, 12
S_P0, S_P1 = 16, 18
S_MCUR, S_MNXT, S_MTHD = 20, 21, 22
S_PART, S_KOFF, S_VOFF, S_KMOFF, S_VMOFF = 23, 24, 25, 26, 27
S_T1, S_T2, S_T3, S_T4 = 28, 29, 30, 31
S_MLO, S_MHI, S_MSM = 32, 34, 36
S_SC = 38
S_TILE = 39
S_ISRED = 40
S_FAST = 41
S_DBG = 44
S_TS = 48
S_STAMP = 50
S_T5, S_T6 = 52, 53
S_WOFF, S_MP, S_PDELTA = 42, 43, 54
S_EPO = 55
S_MK = 76
S_RDY, S_NEED = 85, 86
DBG_KV, DBG_H = 16, 48

V_TID = 0
V_IDX, V_MA0, V_MAF, V_WL, V_L16, V_SMW, V_SMR, V_OW = 1, 2, 3, 4, 5, 6, 7, 8
V_KA, V_VA, V_PUBD, V_PUBF, V_RL, V_RP, V_KM, V_VM, V_R1 = 9, 10, 11, 12, 13, 14, 15, 16, 17
V_SEL = 18
KS = 20
VS = 20
V_DUM = 0
T = 40
POOL = list(range(28, 80))
NWORK = 80
OOB = 0x80000000


def kvpoll(A, cfg, name, tmp):
    ok = A.new_label(f'{name}_kvok')
    pl = A.new_label(f'{name}_kvp')
    A(f'''
    s_cmp_lt_u32 s{S_NEED}, s{S_RDY}
    s_cbranch_scc1 {ok}
    ''')
    A.label(pl)
    A(f'''
    v_lshrrev_b32 {tmp}, 2, v{V_L16}
    buffer_load_dword {tmp}, {tmp}, s[{S_DBG}:{S_DBG+3}], 0 offen offset:{DBG_KV} sc1
    s_waitcnt vmcnt(0)
    v_cmp_le_u32 vcc, 32, {tmp}
    s_and_b32 s{S_RDY}, vcc_lo, 0xff
    s_not_b32 s{S_RDY}, s{S_RDY}
    s_ff1_i32_b32 s{S_RDY}, s{S_RDY}
    s_sub_u32 s{S_BUD}, s{S_BUD}, 1
    s_cbranch_scc1 {name}_exit
    s_cmp_lt_u32 s{S_NEED}, s{S_RDY}
    s_cbranch_scc1 {ok}
    s_sleep 8
    s_branch {pl}
    ''')
    A.label(ok)


def slot_reg(i):
    return NWORK + 8 * i


def emit_chain(A: Asm, cfg: ChainCfg, name='chain_kernel'):
    L = lambda x: f'{name}_{x}'
    lds_ops = list(cfg.lds_ops)
    assert len(lds_ops) == 18
    A.label(name)
    A(f'''
    s_and_b32 s{S_T0}, s2, 7
    s_cmp_lg_u32 s{S_T0}, 0
    s_cbranch_scc1 {L('worker') if cfg.fused else L('exit')}
    s_lshr_b32 s{S_H}, s2, 3
    s_cmp_ge_u32 s{S_H}, 32
    s_cbranch_scc1 {L('exit')}
    s_load_dwordx2 s[{SRD_WS}:{SRD_WS+1}], s[0:1], {KA_WS}
    s_load_dwordx2 s[{S_DBG}:{S_DBG+1}], s[0:1], {KA_DBG}
    v_lshrrev_b32 v1, 6, v0
    v_readfirstlane_b32 s{S_W}, v1
    v_and_b32 v{V_TID}, 63, v0
    s_mov_b32 s{SRD_WS+2}, {WS_SIZE}
    s_mov_b32 s{SRD_WS+3}, 0x20000
    s_mov_b32 s{S_DBG+2}, 256
    s_mov_b32 s{S_DBG+3}, 0x20000
    s_mov_b32 s{SRD_X+3}, 0x20000
    s_mov_b32 s{S_BUD}, 400000
    s_mov_b32 s{S_MLO}, 0x00ff00ff
    s_mov_b32 s{S_MLO+1}, 0x00ff00ff
    s_mov_b32 s{S_MHI}, 0xff00ff00
    s_mov_b32 s{S_MHI+1}, 0xff00ff00
    s_mov_b32 s{S_MSM}, 0
    s_mov_b32 s{S_MSM+1}, 0x00ff00ff
    s_mov_b32 s{S_SC}, {SCALE_LOG2E:#x}
    ''')
    A(f'''
    s_getreg_b32 s{S_T0}, hwreg(HW_REG_XCC_ID, 0, 4)
    s_lshl_b32 s{S_T0}, 1, s{S_T0}
    s_waitcnt lgkmcnt(0)
    s_cmp_lg_u32 s{S_W}, 0
    s_cbranch_scc1 {L('noatom')}
    s_mov_b64 exec, 1
    v_mov_b32 v2, s{S_T0}
    v_mov_b32 v3, 0
    buffer_atomic_or v2, v3, s[{S_DBG}:{S_DBG+3}], 0 offen sc1
    s_mov_b64 exec, -1
    ''')
    A.label(L('noatom'))
    A(f'''
    s_mul_i32 s{S_T1}, s{S_W}, 2304
    v_lshlrev_b32 v1, 4, v{V_TID}
    v_add_u32 v1, s{S_T1}, v1
    v_lshlrev_b32 v2, 2, v{V_TID}
    v_add_u32 v2, s{S_T1}, v2
    v_mov_b32 v4, -1
    v_mov_b32 v5, -1
    v_mov_b32 v6, -1
    v_mov_b32 v7, -1
    s_mul_i32 s{S_T1}, s{S_H}, 9216
    s_add_u32 s{S_T1}, s{S_T1}, {WS_PART}
    s_add_u32 s{S_T2}, s{S_T1}, {PART_SLOT}
    ''')
    WSB = f's[{SRD_WS}:{SRD_WS+3}]'
    for sr in (S_T1, S_T2):
        A(f'''
        buffer_store_dwordx4 v[4:7], v1, {WSB}, s{sr} offen sc1
        buffer_store_dwordx4 v[4:7], v1, {WSB}, s{sr} offen offset:1024 sc1
        buffer_store_dword v4, v2, {WSB}, s{sr} offen offset:2048 sc1
        ''')
    A(f'''
    s_cmp_ge_u32 s{S_H}, 3
    s_cbranch_scc1 {L('noarm')}
    s_lshl_b32 s{S_T1}, s{S_H}, 14
    s_add_u32 s{S_T1}, s{S_T1}, {WS_MEM}
    buffer_store_dwordx4 v[4:7], v1, {WSB}, s{S_T1} offen sc1
    buffer_store_dwordx4 v[4:7], v1, {WSB}, s{S_T1} offen offset:1024 sc1
    buffer_store_dword v4, v2, {WSB}, s{S_T1} offen offset:2048 sc1
    ''')
    A.label(L('noarm'))

    lane = V_TID
    G, C = T + 0, T + 1
    X0, X1, X2, X3 = T + 2, T + 3, T + 4, T + 5
    A(f'''
    v_lshrrev_b32 v{G}, 4, v{lane}
    v_and_b32 v{C}, 15, v{lane}
    ''')

    free_final = list(range(54))
    work_slots = [8 + 8 * i for i in range(9)]
    loc = {}
    early = [op for op in lds_ops if op[0] in ('qk', 'v')]
    n_early = len(early)
    res_early = [op for op in QK + VV if op not in lds_ops]
    for op in res_early:
        loc[op] = slot_reg(free_final.pop(0))
    wo_final = free_final[:]
    assert len(wo_final) == n_early
    park_free = list(work_slots) + [slot_reg(i) for i in wo_final]
    for op in early:
        loc[op] = park_free.pop(0)
    assert len(park_free) == 9
    PA, PB, PC, PD, PE, PF, PG = 1, 2, 3, 4, 5, 6, 7

    def stage_qkv(ka_off, lds_base, row0, nrows, fmode, mat):
        A(f'''
        s_load_dwordx2 s[{SRD_X}:{SRD_X+1}], s[0:1], {ka_off}
        s_mov_b32 s{SRD_X+2}, {576*8192}
        v_lshrrev_b32 v{PA}, 4, v{lane}
        v_lshlrev_b32 v{PA}, 13, v{PA}
        v_and_b32 v{PB}, 15, v{lane}
        s_lshl_b32 s{S_T1}, s{S_H}, 8
        s_waitcnt lgkmcnt(0)
        ''')
        fs = sorted(set(fmode(k, mat) for k in range(nrows // 4)))
        regs = {}
        for i, f in enumerate(fs):
            reg = [PC, PD, PE, PF][i]
            regs[f] = reg
            A(f'''
            v_xor_b32 v{reg}, {f}, v{PB}
            v_lshlrev_b32 v{reg}, 4, v{reg}
            v_add_u32 v{reg}, v{reg}, v{PA}
            ''')
        ninst = nrows // 4
        assert ninst % 4 == 0 or True
        nm = ninst // 4
        assert ninst % 4 == 0
        for j in range((nm + 3) // 4):
            guard = (4 * j + 3 >= nm)
            if guard:
                lab = A.new_label(L('stg'))
                A(f'''
                s_add_u32 s{S_T2}, s{S_W}, {4*j}
                s_cmp_ge_u32 s{S_T2}, {nm}
                s_cbranch_scc1 {lab}
                ''')
            A(f'''
            s_add_u32 s{S_T2}, s{S_W}, {4*j}
            s_lshl_b32 s{S_T3}, s{S_T2}, 17
            s_add_u32 s{S_T3}, s{S_T3}, s{S_T1}
            s_add_u32 s{S_T3}, s{S_T3}, {row0*8192}
            s_lshl_b32 s{S_T4}, s{S_T2}, 12
            s_add_u32 s{S_T4}, s{S_T4}, {lds_base}
            ''')
            for i in range(4):
                f = fmode(i, mat)
                A(f'''
                s_mov_b32 m0, s{S_T4}
                buffer_load_dwordx4 v{regs[f]}, s[{SRD_X}:{SRD_X+3}], s{S_T3} offen lds
                ''')
                if i < 3:
                    A(f'''
                    s_add_u32 s{S_T3}, s{S_T3}, {4*8192}
                    s_add_u32 s{S_T4}, s{S_T4}, 1024
                    ''')
            if guard:
                A.label(lab)

    def sync_stage():
        A('s_waitcnt vmcnt(0)')
        A('s_barrier')

    def done_reads():
        A('s_waitcnt lgkmcnt(0)')
        A('s_barrier')

    def tr_fields():
        pass

    fq = lambda k, mat: 8 * (k & 1) + 4 * mat
    for h2 in range(2):
        stage_qkv(KA_WQ, L_W, 288 * h2, 288, fq, 0)
        stage_qkv(KA_WK, L_W + HALF, 288 * h2, 288, fq, 1)
        sync_stage()
        if h2 == 0:
            A(f'''
            s_cmp_lg_u32 s{S_W}, 0
            s_cbranch_scc1 {L('nocnt')}
            s_mov_b64 exec, 1
            v_mov_b32 v2, 1
            v_mov_b32 v3, 0
            buffer_atomic_add v2, v3, s[{S_DBG}:{S_DBG+3}], 0 offen offset:4 sc1
            s_mov_b64 exec, -1
            ''')
            A.label(L('nocnt'))
        A(f'''
        v_lshrrev_b32 v{PA}, 4, v{lane}
        v_and_b32 v{PB}, 1, v{PA}
        v_lshrrev_b32 v{PA}, 1, v{PA}
        v_lshlrev_b32 v{PA}, 3, v{PA}
        v_lshl_add_u32 v{PA}, v{PB}, 2, v{PA}
        v_lshrrev_b32 v{PC}, 2, v{lane}
        v_and_b32 v{PD}, 1, v{PC}
        v_add_u32 v{PA}, v{PA}, v{PD}
        v_lshlrev_b32 v{PA}, 8, v{PA}
        v_bfe_u32 v{PC}, v{lane}, 3, 1
        v_mul_u32_u24 v{PD}, {HALF}, v{PC}
        v_add_u32 v{PA}, v{PA}, v{PD}
        v_lshlrev_b32 v{PB}, 3, v{PB}
        v_lshl_add_u32 v{PB}, v{PC}, 2, v{PB}
        v_and_b32 v{PC}, 3, v{lane}
        s_lshl_b32 s{S_T1}, s{S_W}, 2
        v_add_u32 v{PC}, s{S_T1}, v{PC}
        v_xor_b32 v{PC}, v{PC}, v{PB}
        v_lshl_add_u32 v{PA}, v{PC}, 4, v{PA}
        v_add_u32 v{PA}, {L_W}, v{PA}
        ''')
        for kbl in range(9):
            kb = 9 * h2 + kbl
            if kbl == 5:
                A(f'v_add_u32 v{PA}, {5*8192}, v{PA}')
            ob = (kbl - 5 if kbl >= 5 else kbl) * 8192
            for t in range(2):
                dst = loc[('qk', t, kb)]
                for k in range(4):
                    off = ob + (16 * (k >> 1) + 2 * (k & 1)) * 256 + 8 * t
                    A(f'ds_read_b64_tr_b16 {r(dst + 2*k, 2)}, v{PA} offset:{off}')
        done_reads()

    fv = lambda k, mat: 4 * (k & 3)
    stage_qkv(KA_WV, L_W, 0, 576, fv, 0)
    sync_stage()
    A(f'''
    v_lshrrev_b32 v{PA}, 4, v{lane}
    v_and_b32 v{PB}, 1, v{PA}
    v_lshrrev_b32 v{PA}, 1, v{PA}
    v_lshlrev_b32 v{PA}, 4, v{PA}
    v_lshl_add_u32 v{PA}, v{PB}, 2, v{PA}
    v_bfe_u32 v{PD}, v{lane}, 2, 1
    v_add_u32 v{PA}, v{PA}, v{PD}
    v_bfe_u32 v{PC}, v{lane}, 3, 1
    v_lshl_add_u32 v{PA}, v{PC}, 3, v{PA}
    v_lshlrev_b32 v{PA}, 8, v{PA}
    v_lshl_add_u32 v{PB}, v{PC}, 1, v{PB}
    v_lshlrev_b32 v{PB}, 2, v{PB}
    v_and_b32 v{PC}, 3, v{lane}
    s_lshl_b32 s{S_T1}, s{S_W}, 2
    v_add_u32 v{PC}, s{S_T1}, v{PC}
    v_xor_b32 v{PC}, v{PC}, v{PB}
    v_lshl_add_u32 v{PA}, v{PC}, 4, v{PA}
    v_add_u32 v{PA}, {L_W}, v{PA}
    ''')
    for blk in range(9):
        if blk in (3, 6):
            A(f'v_add_u32 v{PA}, {3*16384}, v{PA}')
        ob = (blk % 3) * 16384
        for t in range(2):
            dst = loc[('v', t, blk)]
            for k in range(4):
                off = ob + (32 * (k >> 1) + 2 * (k & 1)) * 256 + 8 * t
                A(f'ds_read_b64_tr_b16 {r(dst + 2*k, 2)}, v{PA} offset:{off}')
    done_reads()

    A(f'''
    s_load_dwordx2 s[{SRD_X}:{SRD_X+1}], s[0:1], {KA_WO}
    s_mov_b32 s{SRD_X+2}, {32*147456}
    s_mul_i32 s{S_T1}, s{S_H}, 147456
    s_waitcnt lgkmcnt(0)
    ''')
    for j in range(36):
        A(f'''
        s_add_u32 s{S_T2}, s{S_W}, {4*j}
        s_lshl_b32 s{S_T3}, s{S_T2}, 6
        v_add_u32 v{PA}, s{S_T3}, v{lane}
        v_mul_u32_u24 v{PB}, 58255, v{PA}
        v_lshrrev_b32 v{PB}, 22, v{PB}
        v_and_b32 v{PC}, 4, v{PB}
        v_and_b32 v{PB}, 8, v{PB}
        v_lshrrev_b32 v{PB}, 2, v{PB}
        v_or_b32 v{PB}, v{PB}, v{PC}
        v_xor_b32 v{PA}, v{PA}, v{PB}
        v_lshlrev_b32 v{PA}, 4, v{PA}
        s_lshl_b32 s{S_T4}, s{S_T2}, 10
        s_add_u32 s{S_T4}, s{S_T4}, {L_W}
        s_mov_b32 m0, s{S_T4}
        buffer_load_dwordx4 v{PA}, s[{SRD_X}:{SRD_X+3}], s{S_T1} offen lds
        ''')
    sync_stage()
    def wo_addr_dup(p):
        A(f'''
        v_lshrrev_b32 v{PA}, 4, v{lane}
        v_and_b32 v{PB}, 1, v{PA}
        v_lshrrev_b32 v{PA}, 1, v{PA}
        v_lshlrev_b32 v{PC}, 1, v{PA}
        v_lshl_add_u32 v{PC}, v{PB}, 2, v{PC}
        v_lshlrev_b32 v{PA}, 3, v{PA}
        v_lshl_add_u32 v{PA}, v{PB}, 2, v{PA}
        v_bfe_u32 v{PD}, v{lane}, 2, 1
        v_add_u32 v{PA}, v{PA}, v{PD}
        v_mul_u32_u24 v{PA}, 1152, v{PA}
        s_mul_i32 s{S_T1}, s{S_W}, 18
        s_add_u32 s{S_T1}, s{S_T1}, {2 + 4*p}
        v_bfe_u32 v{PD}, v{lane}, 3, 1
        v_lshlrev_b32 v{PD}, 1, v{PD}
        v_bfe_u32 v{PB}, v{lane}, 1, 1
        v_add3_u32 v{PD}, v{PD}, v{PB}, s{S_T1}
        v_xor_b32 v{PD}, v{PD}, v{PC}
        v_lshl_add_u32 v{PA}, v{PD}, 4, v{PA}
        v_and_b32 v{PB}, 1, v{lane}
        v_lshl_add_u32 v{PA}, v{PB}, 3, v{PA}
        v_add_u32 v{PA}, {L_W}, v{PA}
        ''')
    def wo_addr_fold():
        A(f'''
        v_lshrrev_b32 v{PA}, 4, v{lane}
        v_and_b32 v{PB}, 1, v{PA}
        v_lshrrev_b32 v{PA}, 1, v{PA}
        v_lshlrev_b32 v{PA}, 4, v{PA}
        v_lshl_add_u32 v{PA}, v{PB}, 2, v{PA}
        v_bfe_u32 v{PD}, v{lane}, 2, 1
        v_add_u32 v{PA}, v{PA}, v{PD}
        v_bfe_u32 v{PD}, v{lane}, 3, 1
        v_lshl_add_u32 v{PA}, v{PD}, 3, v{PA}
        v_mul_u32_u24 v{PA}, 1152, v{PA}
        v_lshlrev_b32 v{PC}, 1, v{PD}
        v_lshl_add_u32 v{PC}, v{PB}, 2, v{PC}
        s_mul_i32 s{S_T1}, s{S_W}, 18
        v_bfe_u32 v{PB}, v{lane}, 1, 1
        v_add_u32 v{PD}, s{S_T1}, v{PB}
        v_xor_b32 v{PD}, v{PD}, v{PC}
        v_lshl_add_u32 v{PA}, v{PD}, 4, v{PA}
        v_and_b32 v{PB}, 1, v{lane}
        v_lshl_add_u32 v{PA}, v{PB}, 3, v{PA}
        v_add_u32 v{PA}, {L_W}, v{PA}
        ''')

    def wo_read(op):
        dst = loc[op]
        if op[0] == 'o':
            _, p, kb = op
            for k in range(4):
                e = 32 * kb + 16 * (k >> 1) + 2 * (k & 1)
                off = e * 1152
                reg = PA
                if off > 65535:
                    A(f'v_add_u32 v{PE}, {64*1152}, v{PA}')
                    off -= 64 * 1152
                    reg = PE
                A(f'ds_read_b64_tr_b16 {r(dst + 2*k, 2)}, v{reg} offset:{off}')
        else:
            _, _, blk = op
            for k in range(4):
                e = 64 * blk + 32 * (k >> 1) + 2 * (k & 1)
                off = e * 1152
                reg = PA
                if off > 65535:
                    A(f'v_add_u32 v{PE}, {64*1152}, v{PA}')
                    off -= 64 * 1152
                    reg = PE
                A(f'ds_read_b64_tr_b16 {r(dst + 2*k, 2)}, v{reg} offset:{off}')

    D1 = [('of', 0, 1)] + [('o', p, kb) for p in range(4) for kb in (2, 3)]
    D0 = [('of', 0, 0)] + [('o', p, kb) for p in range(4) for kb in (0, 1)]
    wo_final_regs = [slot_reg(i) for i in wo_final]
    free = list(park_free)
    def take(op):
        if op in lds_ops:
            cand = [x for x in free if x not in wo_final_regs] or free
        else:
            cand = [x for x in free if x in wo_final_regs]
        x = cand[0]
        free.remove(x)
        loc[op] = x
    for op in sorted(D1, key=lambda o: o in lds_ops):
        take(op)
    def read_group(ops):
        cur = None
        for op in ops:
            key = ('o', op[1]) if op[0] == 'o' else ('of',)
            if key != cur:
                if op[0] == 'o':
                    wo_addr_dup(op[1])
                else:
                    wo_addr_fold()
                cur = key
            wo_read(op)
    read_group(D1)
    done_reads()
    parked = [op for op in lds_ops if op in loc]
    parked.sort(key=lambda o: (loc[o] not in wo_final_regs))
    first = parked[:9]
    ldsloc = {}
    A(f'''
    s_mul_i32 s{S_T1}, s{S_W}, 18432
    s_add_u32 s{S_T1}, s{S_T1}, {L_W}
    v_lshlrev_b32 v{PG}, 4, v{lane}
    v_add_u32 v{PG}, s{S_T1}, v{PG}
    v_add_u32 v{PF}, {HALF}, v{PG}
    ''')
    def flush(ops, half):
        for i, op in enumerate(ops):
            ldsloc[op] = (half, i * 2048)
            reg = PF if half else PG
            src = loc[op]
            for q in range(2):
                A(f'ds_write_b128 v{reg}, {r(src + 4*q, 4)} offset:{i*2048 + q*1024}')
            free.append(src)
    flush(first, 1)
    for op in sorted(D0, key=lambda o: o in lds_ops):
        take(op)
    A('s_waitcnt lgkmcnt(0)')
    read_group(D0)
    done_reads()
    rest = [op for op in lds_ops if op not in ldsloc]
    assert len(rest) == 9
    A(f'''
    s_mul_i32 s{S_T1}, s{S_W}, {RS}
    s_add_u32 s{S_T1}, s{S_T1}, {R_W}
    v_lshlrev_b32 v{PG}, 4, v{lane}
    v_add_u32 v{PG}, s{S_T1}, v{PG}
    ''')
    flush(rest, 0)
    A('s_waitcnt lgkmcnt(0)')
    for op in QK + VV + WO:
        if op not in lds_ops:
            assert loc[op] >= NWORK, op


    g_, c_, x0, x1, x2, mb = T, T + 1, T + 2, T + 3, T + 4, T + 5
    A(f'''
    v_lshrrev_b32 v{g_}, 4, v{lane}
    v_and_b32 v{c_}, 15, v{lane}
    v_lshlrev_b32 v{V_L16}, 4, v{lane}
    s_mul_i32 s{S_T1}, s{S_W}, {RS}
    v_add_u32 v{V_WL}, s{S_T1}, v{V_L16}
    s_mul_i32 s{S_T1}, s{S_W}, 18432
    s_add_u32 s{S_T1}, s{S_T1}, {L_R1}
    v_add_u32 v{V_R1}, s{S_T1}, v{V_L16}
    v_mov_b32 v{x0}, 0x44444444
    v_mov_b32 v{x1}, 0xeeeeeeee
    v_cmp_gt_u32 vcc, 8, v{c_}
    v_cndmask_b32 v{V_IDX}, v{x1}, v{x0}, vcc
    v_bfe_u32 v{x0}, v{c_}, 1, 2
    v_mul_u32_u24 v{mb}, {RS}, v{x0}
    v_and_b32 v{x0}, 1, v{c_}
    v_mul_u32_u24 v{x0}, 1152, v{x0}
    v_add_u32 v{mb}, v{mb}, v{x0}
    v_add_u32 v{mb}, {R_M}, v{mb}
    v_lshl_add_u32 v{V_MA0}, v{g_}, 4, v{mb}
    v_lshrrev_b32 v{x2}, 3, v{c_}
    v_lshl_add_u32 v{x2}, v{g_}, 1, v{x2}
    v_lshl_add_u32 v{V_MAF}, v{x2}, 4, v{mb}
    s_lshl_b32 s{S_T1}, s{S_W}, 6
    v_add_u32 v{V_OW}, s{S_T1}, v{V_MA0}
    v_and_b32 v{x2}, 1, v{g_}
    v_lshlrev_b32 v{x2}, 5, v{x2}
    v_add_u32 v{x2}, v{x2}, v{c_}
    v_lshlrev_b32 v{x2}, 4, v{x2}
    s_lshl_b32 s{S_T1}, s{S_W}, 2
    s_add_u32 s{S_T1}, s{S_T1}, {L_SM}
    v_add_u32 v{V_SMW}, s{S_T1}, v{x2}
    v_and_b32 v{x2}, 1, v{g_}
    v_lshlrev_b32 v{x2}, 2, v{x2}
    v_lshrrev_b32 v{x1}, 1, v{g_}
    v_lshl_add_u32 v{x2}, v{x1}, 1, v{x2}
    v_lshrrev_b32 v{x1}, 3, v{c_}
    v_add_u32 v{x2}, v{x2}, v{x1}
    v_and_b32 v{x1}, 7, v{c_}
    v_lshl_add_u32 v{x2}, v{x2}, 3, v{x1}
    v_lshlrev_b32 v{x2}, 4, v{x2}
    v_add_u32 v{V_SMR}, {L_SM}, v{x2}
    v_lshrrev_b32 v{x0}, 2, v{c_}
    v_lshlrev_b32 v{x0}, 3, v{x0}
    v_and_b32 v{x1}, 3, v{c_}
    v_add_u32 v{x0}, v{x0}, v{x1}
    v_lshlrev_b32 v{x1}, 4, v{g_}
    v_lshl_add_u32 v{V_KA}, v{x0}, 13, v{x1}
    v_lshl_add_u32 v{V_VA}, v{x0}, 6, v{x1}
    v_lshlrev_b32 v{x1}, 3, v{g_}
    v_lshl_add_u32 v{V_VM}, v{x0}, 5, v{x1}
    v_and_b32 v{x0}, 7, v{c_}
    v_lshlrev_b32 v{x1}, 4, v{g_}
    v_lshl_add_u32 v{V_KM}, v{x0}, 8, v{x1}
    v_mov_b32 v{x1}, {OOB:#x}
    v_cmp_gt_u32 vcc, 8, v{c_}
    v_cndmask_b32 v{V_KM}, v{V_KM}, v{x1}, vcc
    v_and_b32 v{x0}, 1, v{g_}
    v_lshlrev_b32 v{x0}, 3, v{x0}
    v_lshl_add_u32 v{x0}, v{c_}, 4, v{x0}
    v_lshrrev_b32 v{x1}, 1, v{g_}
    v_lshl_add_u32 v{V_PUBF}, v{x1}, {31 if cfg.epoch else 2}, v{x0}
    v_lshl_add_u32 v{V_PUBD}, v{x1}, 8, v{x0}
    v_add_u32 v{V_PUBD}, 256, v{V_PUBD}
    v_lshlrev_b32 v{x0}, 2, v{g_}
    v_sub_u32 v{x0}, v{c_}, v{x0}
    v_mov_b32 v{x1}, 0x3f80
    v_mov_b32 v{x2}, 0x3f800000
    v_cmp_eq_u32 vcc, 0, v{x0}
    v_cndmask_b32 v{V_SEL}, 0, v{x1}, vcc
    v_cmp_eq_u32 vcc, 1, v{x0}
    v_cndmask_b32 v{V_SEL}, v{V_SEL}, v{x2}, vcc
    v_cmp_eq_u32 vcc, 2, v{x0}
    v_cndmask_b32 v{V_SEL+1}, 0, v{x1}, vcc
    v_cmp_eq_u32 vcc, 3, v{x0}
    v_cndmask_b32 v{V_SEL+1}, v{V_SEL+1}, v{x2}, vcc
    ''')
    A(f'''
    s_lshl_b32 s{S_TILE}, s{S_H}, 1
    s_add_u32 s{S_TILE}, s{S_TILE}, s{S_W}
    s_mov_b32 s{S_ISRED}, 1
    s_cmp_lt_u32 s{S_W}, 2
    s_cbranch_scc1 {L('role_done')}
    s_add_u32 s{S_TILE}, s{S_H}, 64
    s_cmp_eq_u32 s{S_W}, 2
    s_cselect_b32 s{S_ISRED}, 1, 0
    s_cmp_lt_u32 s{S_H}, 8
    s_cselect_b32 s{S_ISRED}, s{S_ISRED}, 0
    s_cmp_eq_u32 s{S_ISRED}, 0
    s_cselect_b32 s{S_TILE}, 0, s{S_TILE}
    ''')
    A.label(L('role_done'))
    A(f'''
    v_lshrrev_b32 v{x0}, 3, v{c_}
    v_lshl_add_u32 v{x0}, v{x0}, 4, v{g_}
    v_mul_u32_u24 v{x0}, 9216, v{x0}
    v_and_b32 v{x1}, 7, v{c_}
    v_lshl_add_u32 v{x0}, v{x1}, 4, v{x0}
    s_lshl_b32 s{S_T1}, s{S_TILE}, 7
    v_add_u32 v{V_RL}, s{S_T1}, v{x0}
    v_mul_u32_u24 v{x1}, 1152, v{x1}
    s_lshl_b32 s{S_T1}, s{S_TILE}, 4
    v_add_u32 v{x0}, s{S_T1}, v{x1}
    v_and_b32 v{x1}, 1, v{g_}
    v_lshl_add_u32 v{x0}, v{x1}, 3, v{x0}
    v_lshrrev_b32 v{x1}, 1, v{g_}
    v_lshl_add_u32 v{V_RP}, v{x1}, 2, v{x0}
    v_mov_b32 v{x1}, {OOB:#x}
    v_cmp_lt_u32 vcc, 7, v{c_}
    v_cndmask_b32 v{V_RP}, v{V_RP}, v{x1}, vcc
    s_cmp_eq_u32 s{S_ISRED}, 0
    s_cselect_b32 s{S_T1}, {OOB:#x}, 0
    v_or_b32 v{V_RP}, s{S_T1}, v{V_RP}
    v_or_b32 v{V_RL}, s{S_T1}, v{V_RL}
    ''')
    A(f'''
    s_mov_b32 s{S_STEP}, 0
    s_mov_b32 s{S_EPO}, 0
    s_mov_b32 s{S_MCUR}, {WS_MEM}
    s_mov_b32 s{S_MNXT}, {WS_MEM + MEM_SLOT}
    s_mov_b32 s{S_MTHD}, {WS_MEM + 2*MEM_SLOT}
    s_mul_i32 s{S_WOFF}, s{S_W}, {(2304 - RS) & 0xffffffff:#x}
    s_mul_i32 s{S_PART}, s{S_H}, 9216
    s_mul_i32 s{S_T1}, s{S_W}, 2304
    s_add_u32 s{S_PART}, s{S_PART}, s{S_T1}
    s_add_u32 s{S_PART}, s{S_PART}, {WS_PART}
    s_mov_b32 s{S_T5}, {WS_PART}
    s_mov_b32 s{S_PDELTA}, {PART_SLOT}
    s_lshl_b32 s{S_KOFF}, s{S_H}, 8
    s_lshl_b32 s{S_T1}, s{S_W}, 6
    s_add_u32 s{S_KOFF}, s{S_KOFF}, s{S_T1}
    s_add_u32 s{S_KOFF}, s{S_KOFF}, {WS_K}
    s_lshl_b32 s{S_VOFF}, s{S_H}, 13
    s_lshl_b32 s{S_T1}, s{S_W}, 11
    s_add_u32 s{S_VOFF}, s{S_VOFF}, s{S_T1}
    s_add_u32 s{S_VOFF}, s{S_VOFF}, {WS_VT}
    s_lshl_b32 s{S_KMOFF}, s{S_H}, 11
    s_lshl_b32 s{S_T1}, s{S_W}, 6
    s_add_u32 s{S_KMOFF}, s{S_KMOFF}, s{S_T1}
    s_add_u32 s{S_KMOFF}, s{S_KMOFF}, {WS_KM}
    s_lshl_b32 s{S_VMOFF}, s{S_H}, 12
    s_lshl_b32 s{S_T1}, s{S_W}, 10
    s_add_u32 s{S_VMOFF}, s{S_VMOFF}, s{S_T1}
    s_add_u32 s{S_VMOFF}, s{S_VMOFF}, {WS_VM}
    ''')

    SKV = ' sc1' if cfg.fused else ''

    def k_prefetch():
        A(f'''
        s_add_u32 s{S_T1}, s{S_KOFF}, {4*8192}
        buffer_load_dwordx4 {v(KS,4)}, v{V_KA}, s[{SRD_WS}:{SRD_WS+3}], s{S_KOFF} offen{SKV}
        buffer_load_dwordx4 {v(KS+4,4)}, v{V_KA}, s[{SRD_WS}:{SRD_WS+3}], s{S_T1} offen{SKV}
        s_add_u32 s{S_KOFF}, s{S_KOFF}, {32*8192}
        ''')

    def v_load():
        A(f'''
        buffer_load_dwordx4 {v(VS,4)}, v{V_VA}, s[{SRD_WS}:{SRD_WS+3}], s{S_VOFF} offen{SKV}
        buffer_load_dwordx4 {v(VS+4,4)}, v{V_VA}, s[{SRD_WS}:{SRD_WS+3}], s{S_VOFF} offen offset:256{SKV}
        s_add_u32 s{S_VOFF}, s{S_VOFF}, 262144
        ''')

    def v_warm():
        A(f'''
        buffer_load_dword v{V_DUM}, v{V_VA}, s[{SRD_WS}:{SRD_WS+3}], s{S_VOFF} offen
        buffer_load_dword v{V_DUM}, v{V_VA}, s[{SRD_WS}:{SRD_WS+3}], s{S_VOFF} offen offset:256
        ''', tag='dummy')
    if cfg.fused:
        A(f's_mov_b32 s{S_RDY}, 0')
        A(f's_mov_b32 s{S_NEED}, 0')
        kvpoll(A, cfg, name, f'v{T+2}')
    k_prefetch()
    A(f'''
    s_load_dwordx2 s[{SRD_X}:{SRD_X+1}], s[0:1], {KA_MEM0}
    s_mov_b32 s{SRD_X+2}, 9216
    ''')
    lab = L('xcc_poll')
    A.label(lab)
    A(f'''
    v_mov_b32 v{T+2}, 0
    buffer_load_dwordx2 {v(T+14,2)}, v{T+2}, s[{S_DBG}:{S_DBG+3}], 0 offen sc1
    s_waitcnt vmcnt(0) lgkmcnt(0)
    v_readfirstlane_b32 s{S_T1}, v{T+15}
    v_readfirstlane_b32 s{S_T2}, v{T+14}
    s_sub_u32 s{S_BUD}, s{S_BUD}, 1
    s_cmp_eq_u32 s{S_BUD}, 0
    s_cbranch_scc1 {L('exit')}
    s_cmp_lt_u32 s{S_T1}, 32
    s_cbranch_scc1 {lab}
    s_bcnt1_i32_b32 s{S_T2}, s{S_T2}
    s_cmp_eq_u32 s{S_T2}, 1
    s_cbranch_scc0 {name}_slow_pre
    ''')
    env = dict(loc=loc, ldsloc=ldsloc, lds_ops=lds_ops, k_prefetch=k_prefetch, v_load=v_load, v_warm=v_warm)
    for variant in ('fast', 'slow'):
        emit_loop(A, cfg, name, variant, env)
    A.label(L('exit'))
    A('s_endpgm')
    return env


def emit_loop(A, cfg, name, variant, env):
    L = lambda x: f'{name}_{variant}_{x}'
    SC = '' if variant == 'fast' else ' sc1'
    SCKV = ' sc1' if cfg.kv_sc1 else ''
    loc, ldsloc, lds_ops = env['loc'], env['ldsloc'], env['lds_ops']
    WS = f's[{SRD_WS}:{SRD_WS+3}]'
    idx = v(V_IDX)
    stamp_i = [0]
    ED = 1

    def stamp(nm='x'):
        if not cfg.stamps or variant != 'fast':
            return
        if nm not in cfg.pts:
            return
        i = stamp_i[0]
        stamp_i[0] += 1
        assert i < 7
        A(f's_memtime s[{56+2*i}:{57+2*i}]', tag='stamp')

    def lds_read(op, nm):
        reg, off = ldsloc[op]
        base = V_R1 if reg else V_WL
        if not reg:
            off += R_W
        A(f'ds_read_b128 %{nm}:4, v{base} offset:{off}')
        A(f'ds_read_b128 %{nm}+4:4, v{base} offset:{off+1024}')

    def zero(nm, n):
        for i in range(0, n, 2):
            A(f'v_mov_b64 %{nm}+{i}:2, 0')

    class Stream:
        def __init__(self, ops, pre):
            self.ops = ops
            self.lds = [o[0] for o in ops if o[0] in lds_ops]
            self.pre = pre
            self.issued = 0
            self.pos = 0

        def bname(self, op):
            return f'{self.pre}{self.lds.index(op)}'

        def read_next(self):
            if self.issued < len(self.lds):
                op = self.lds[self.issued]
                lds_read(op, self.bname(op))
                self.issued += 1

        def mf(self, after=None):
            op, acc, an = self.ops[self.pos]
            self.pos += 1
            if op in lds_ops:
                b = f'%{self.bname(op)}:8'
            else:
                b = r(loc[op], 8)
            A(f'v_smfmac_f32_16x16x64_bf16 %{acc}:4, %{an}:4, {b}, {idx}')
            if op in lds_ops:
                self.read_next()

        def done(self):
            return self.pos >= len(self.ops)

    qk = Stream([(('qk', t, kb), f'qk{t}', f'qa{kb}') for kb in range(18) for t in range(2)], 'qb')
    vv = Stream([(('v', t, blk), f'vc{t}', f'va{blk}') for blk in range(9) for t in range(2)], 'vb')

    def qk_pre():
        qk.issued = 0
        for i in range(cfg.nqb):
            qk.read_next()

    def warm(kadd, vadd):
        if cfg.fused:
            A(f'''
            s_add_u32 s{S_NEED}, s{S_STEP}, 1
            s_lshr_b32 s{S_NEED}, s{S_NEED}, 3
            s_min_u32 s{S_NEED}, s{S_NEED}, 7
            ''')
            kvpoll(A, cfg, name, '%wk')
        A(f'''
        s_cmp_eq_u32 s{S_W}, 3
        s_cselect_b32 s{S_T4}, 0, {OOB:#x}
        {f's_cmp_eq_u32 s{S_STEP}, {cfg.nsteps-1}' if cfg.fused else ''}
        {f's_cselect_b32 s{S_T4}, {OOB:#x}, s{S_T4}' if cfg.fused else ''}
        v_lshrrev_b32 %wk, 5, v{V_L16}
        v_lshlrev_b32 %wk, 13, %wk
        v_and_b32 %wk2, 16, v{V_L16}
        v_lshl_add_u32 %wk, %wk2, 3, %wk
        v_lshlrev_b32 %wv, 3, v{V_L16}
        v_or_b32 %wk, s{S_T4}, %wk
        v_or_b32 %wv, s{S_T4}, %wv
        s_add_u32 s{S_T1}, s{S_KOFF}, {(kadd - 192) & 0xffffffff:#x}
        s_add_u32 s{S_T2}, s{S_VOFF}, {((vadd - 3*2048) & 0xffffffff):#x}
        ''')
        A(f'''
        buffer_load_dword v{V_DUM}, %wk, {WS}, s{S_T1} offen
        buffer_load_dword v{V_DUM}, %wv, {WS}, s{S_T2} offen
        ''', tag='dummy')
        if cfg.x_lat:
            A('s_waitcnt vmcnt(0)')
            stamp('l2')

    A.label(L('pre'))
    A(f'''
    s_mul_i32 s{S_T2}, s{S_W}, {RS}
    s_add_u32 s{S_T2}, s{S_T2}, {R_M}
    s_mov_b32 m0, s{S_T2}
    s_mul_i32 s{S_T2}, s{S_W}, 2304
    v_add_u32 %i0, s{S_T2}, v{V_L16}
    v_lshrrev_b32 %i1, 2, v{V_L16}
    v_add_u32 %i1, s{S_T2}, %i1
    buffer_load_dwordx4 %ip:4, %i0, s[{SRD_X}:{SRD_X+3}], 0 offen
    buffer_load_dwordx4 %ip+4:4, %i0, s[{SRD_X}:{SRD_X+3}], 0 offen offset:1024
    buffer_load_dword %ip+8, %i1, s[{SRD_X}:{SRD_X+3}], 0 offen offset:2048
    v_lshrrev_b32 %i0, 2, v{V_L16}
    v_sub_u32 %i1, v{V_WL}, v{V_L16}
    v_add_u32 %i1, %i1, %i0
    ds_write_b128 v{V_WL}, %ip:4 offset:{R_M}
    ds_write_b128 v{V_WL}, %ip+4:4 offset:{R_M+1024}
    ds_write_b32 %i1, %ip+8 offset:{R_M+2048}
    ''')
    qk_pre()
    A(f's_branch {L("mem_ready")}')

    A.label(L('top'))
    qk_pre()
    A(f'''
    v_lshrrev_b32 %w4t, 2, v{V_L16}
    v_sub_u32 %w4, v{V_WL}, v{V_L16}
    v_add_u32 %w4, %w4, %w4t
    s_add_u32 s{S_MP}, s{S_MCUR}, s{S_WOFF}
    ''')
    def mloads(masked=False):
        if masked:
            A(f's_mov_b64 exec, s[{S_MK}:{S_MK+1}]')
        A(f'buffer_load_dwordx4 %mp:4, v{V_WL}, {WS}, s{S_MP} offen sc1')
        if masked:
            A(f's_mov_b64 exec, s[{S_MK+2}:{S_MK+3}]')
        A(f'buffer_load_dwordx4 %mp+4:4, v{V_WL}, {WS}, s{S_MP} offen offset:1024 sc1')
        if masked:
            A(f's_mov_b64 exec, s[{S_MK+4}:{S_MK+5}]')
        A(f'buffer_load_dword %mp+8, %w4, {WS}, s{S_MP} offen offset:2048 sc1')
        if masked:
            A('s_mov_b64 exec, -1')
    if not cfg.mrepoll:
        A.label(L('mpoll'))
        mloads()
        A(f'''
        s_sub_u32 s{S_BUD}, s{S_BUD}, 1
        s_cbranch_scc1 {name}_exit
        v_max3_u32 %mc, %mp+0, %mp+1, %mp+2
        v_max3_u32 %mc1, %mp+3, %mp+4, %mp+5
        v_max3_u32 %mc, %mc, %mp+6, %mp+7
        v_max3_u32 %mc, %mc, %mc1, %mp+8
        v_cmp_eq_u32 vcc, -1, %mc
        s_cbranch_vccnz {L('mpoll')}
        ''')
    elif cfg.pp_m:
        assert cfg.x_bar
        stamp('m0')

        def dma(masked):
            if masked:
                A(f's_mov_b64 exec, s[{S_MK}:{S_MK+1}]')
            A(f'buffer_load_dwordx4 v{V_WL}, {WS}, s{S_MP} offen sc1 lds')
            if masked:
                A(f's_mov_b64 exec, s[{S_MK+2}:{S_MK+3}]')
            A(f'buffer_load_dwordx4 v{V_WL}, {WS}, s{S_MP} offen offset:1024 sc1 lds')
            if masked:
                A(f's_mov_b64 exec, s[{S_MK+4}:{S_MK+5}]')
            A(f'buffer_load_dword %w4, {WS}, s{S_MP} offen offset:2048 sc1 lds')
            if masked:
                A('s_mov_b64 exec, -1')
        dma(False)
        for i in range(3):
            A(f's_mov_b64 s[{S_MK+2*i}:{S_MK+2*i+1}], -1')
        A.label(L('mchk'))
        A(f'''
        s_sub_u32 s{S_BUD}, s{S_BUD}, 1
        s_cbranch_scc1 {name}_exit
        s_waitcnt vmcnt({cfg.pp_mw})
        ''')
        dma(True)
        A(f'''
        s_waitcnt vmcnt(3)
        ds_read_b128 %mp:4, v{V_WL} offset:{R_M}
        ds_read_b128 %mp+4:4, v{V_WL} offset:{R_M+1024}
        ds_read_b32 %mp+8, %w4 offset:{R_M+2048}
        v_max3_u32 %mc, %mp+0, %mp+1, %mp+2
        v_max_u32 %mc, %mc, %mp+3
        v_max3_u32 %mc1, %mp+4, %mp+5, %mp+6
        v_max_u32 %mc1, %mc1, %mp+7
        v_max3_u32 %mc2, %mc, %mc1, %mp+8
        v_cmp_eq_u32 vcc, -1, %mc2
        s_cbranch_vccz {L('mok')}
        v_cmp_eq_u32 s[{S_MK}:{S_MK+1}], -1, %mc
        v_cmp_eq_u32 s[{S_MK+2}:{S_MK+3}], -1, %mc1
        v_cmp_eq_u32 s[{S_MK+4}:{S_MK+5}], -1, %mp+8
        s_branch {L('mchk')}
        ''')
        A.label(L('mok'))
        stamp('m2')
        if cfg.pp_r:
            A('_keep %rd:16')
    else:
        stamp('m0')
        A('s_mov_b32 s84, 0')
        mloads()
        A.label(L('mchk'))
        A(f'''
        s_sub_u32 s{S_BUD}, s{S_BUD}, 1
        s_cbranch_scc1 {name}_exit
        v_max3_u32 %mc, %mp+0, %mp+1, %mp+2
        v_max3_u32 %mc1, %mp+4, %mp+5, %mp+6
        v_max_u32 %mc, %mc, %mp+3
        v_max_u32 %mc1, %mc1, %mp+7
        v_max3_u32 %mc2, %mc, %mc1, %mp+8
        v_cmp_eq_u32 vcc, -1, %mc2
        ''')
        if 'm1' in cfg.pts and variant == 'fast' and cfg.stamps:
            lab1 = L('m1skip')
            A(f's_cmp_lg_u32 s84, 0')
            A(f's_cbranch_scc1 {lab1}')
            stamp('m1')
            A('s_mov_b32 s84, 1')
            A.label(lab1)
        A(f'''
        s_cbranch_vccz {L('mok')}
        v_cmp_eq_u32 s[{S_MK}:{S_MK+1}], -1, %mc
        v_cmp_eq_u32 s[{S_MK+2}:{S_MK+3}], -1, %mc1
        v_cmp_eq_u32 s[{S_MK+4}:{S_MK+5}], -1, %mp+8
        ''')
        mloads(True)
        A(f's_branch {L("mchk")}')
        A.label(L('mok'))
        stamp('m2')
    if not cfg.pp_m:
        A(f'''
        ds_write_b128 v{V_WL}, %mp:4 offset:{R_M}
        ds_write_b128 v{V_WL}, %mp+4:4 offset:{R_M+1024}
        ds_write_b32 %w4, %mp+8 offset:{R_M+2048}
        ''')
        if cfg.pp_r:
            A('_keep %rd:16')
    A.label(L('mem_ready'))
    zero('qk0', 4)
    zero('qk1', 4)
    A('s_waitcnt lgkmcnt(0)')
    A('s_barrier')
    if cfg.stamps and variant == 'fast':
        A('s_mov_b64 s[70:71], s[56:57]')
        A(f's_sub_u32 s72, s74, s{S_BUD}')
    stamp('m')
    if cfg.warm0:
        warm(cfg.wdist*262144, (cfg.wdist+1)*262144)
    def rdA(kb):
        A(f'ds_read_b128 %qa{kb}:4, v{V_MA0} offset:{64*kb}')

    def rdV(blk):
        A(f'ds_read_b128 %va{blk}:4, v{V_MAF} offset:{128*blk}')
    NA = cfg.na
    for kb in range(NA):
        rdA(kb)
    NVA = 3
    vq = 0
    for kb in range(18):
        qk.mf()
        qk.mf()
        if kb + NA < 18:
            rdA(kb + NA)
        elif vq < NVA:
            rdV(vq)
            vq += 1
        if kb == 13:
            zero('vc0', 4)
        if kb == 14:
            zero('vc1', 4)
        if kb == 16:
            vv.read_next()

    def vm(n):
        for _ in range(n):
            if vv.done():
                return
            (o_, t, blk) = vv.ops[vv.pos][0]
            vv.mf()
            if t == 1 and blk + NVA < 9:
                rdV(blk + NVA)
    sch = cfg.vsched if hasattr(cfg, 'vsched') else (2, 2, 2, 4, 8)
    stamp('qk')
    vm(sch[0])
    A(f'''
    v_cvt_pk_bf16_f32 %ta+0, %qk0+0, %qk0+1
    v_cvt_pk_bf16_f32 %ta+1, %qk0+2, %qk0+3
    v_cvt_pk_bf16_f32 %ta+2, %qk1+0, %qk1+1
    v_cvt_pk_bf16_f32 %ta+3, %qk1+2, %qk1+3
    v_mfma_f32_16x16x16_bf16 %t0:4, %ta+0:2, {v(V_SEL,2)}, 0
    v_mfma_f32_16x16x16_bf16 %t1:4, %ta+2:2, {v(V_SEL,2)}, 0
    ''')
    stamp('t1')
    vm(sch[1])
    A(f'''
    v_cvt_pk_bf16_f32 %x+0, %t0+0, %t0+1
    v_cvt_pk_bf16_f32 %x+1, %t0+2, %t0+3
    v_cvt_pk_bf16_f32 %x+2, %t1+0, %t1+1
    v_cvt_pk_bf16_f32 %x+3, %t1+2, %t1+3
    v_mfma_f32_16x16x32_bf16 %s0:4, {v(KS,4)}, %x:4, 0
    v_mfma_f32_16x16x32_bf16 %s1:4, {v(KS+4,4)}, %x:4, 0
    v_mfma_f32_16x16x32_bf16 %smm:4, %x:4, %x:4, 0
    {'; ' if cfg.x_nost else ''}buffer_store_dwordx4 %x:4, v{V_KM}, {WS}, s{S_KMOFF} offen{SCKV}
    s_add_u32 s{S_KMOFF}, s{S_KMOFF}, 65536
    ''')
    stamp('t2')
    vm(sch[2])
    A(f'''
    s_mov_b64 exec, s[{S_MLO}:{S_MLO+1}]
    ds_write_b128 v{V_WL}, %s0:4
    ds_write_b128 v{V_WL}, %s1:4 offset:128
    s_mov_b64 exec, s[{S_MSM}:{S_MSM+1}]
    ds_write2_b32 v{V_SMW}, %smm+0, %smm+1 offset0:0 offset1:32
    ds_write2_b32 v{V_SMW}, %smm+2, %smm+3 offset0:64 offset1:96
    s_mov_b64 exec, -1
    ''')
    if cfg.x_lat:
        A('s_waitcnt vmcnt(0)')
        stamp('l0')
        env['v_load']()
        A('s_waitcnt vmcnt(0)')
        stamp('l1')
    if not cfg.x_nokv:
        if not cfg.x_lat:
            env['v_load']()
        if cfg.warm3 and not cfg.warm0:
            warm(cfg.wdist*262144, cfg.wdist*262144)
    stamp('t3')
    vm(sch[3])
    stamp('t4')
    A('s_waitcnt lgkmcnt(0)')
    A('s_barrier')
    stamp('b1')
    for wq in range(4):
        A(f'ds_read_b128 %r{wq}:4, v{V_L16} offset:{R_S + wq*RS}')
    A(f'ds_read_b128 %rm:4, v{V_SMR}')
    if cfg.rearm_sm:
        A(f'''
        v_mov_b64 %ng+0:2, -1
        v_mov_b64 %ng+2:2, -1
        s_add_u32 s{S_T4}, s{S_T5}, s{S_PDELTA}
        s_add_u32 s{S_T1}, s{S_T4}, {1*4*9216}
        s_add_u32 s{S_T2}, s{S_T4}, {2*4*9216}
        s_add_u32 s{S_T3}, s{S_T4}, {3*4*9216}
        buffer_store_dwordx4 %ng:4, v{V_RL}, {WS}, s{S_T4} offen{SC}
        buffer_store_dwordx4 %ng:4, v{V_RL}, {WS}, s{S_T1} offen{SC}
        buffer_store_dwordx4 %ng:4, v{V_RL}, {WS}, s{S_T2} offen{SC}
        buffer_store_dwordx4 %ng:4, v{V_RL}, {WS}, s{S_T3} offen{SC}
        buffer_store_dword %ng+0, v{V_RP}, {WS}, s{S_MTHD} offen{SC}
        ''')
    vm(sch[4])
    vm(18)
    stamp('s1')
    for i in range(4):
        A(f'v_add_f32 %r0+{i}, %r0+{i}, %r1+{i}')
        A(f'v_add_f32 %r2+{i}, %r2+{i}, %r3+{i}')
    for i in range(4):
        A(f'v_add_f32 %r0+{i}, %r0+{i}, %r2+{i}')
    A(f'''
    v_add_f32 %sm, %rm+0, %rm+1
    v_add_f32 %rm+2, %rm+2, %rm+3
    v_add_f32 %sm, %sm, %rm+2
    v_max3_f32 %m, %r0+0, %r0+1, %r0+2
    v_max3_f32 %m, %m, %r0+3, %sm
    v_max_f32_dpp %m, %m, %m row_ror:8 row_mask:0xf bank_mask:0xf
    v_mov_b32 %m2, %m
    v_permlane16_swap_b32 %m, %m2
    v_max_f32 %m, %m, %m2
    v_mov_b32 %m2, %m
    v_permlane32_swap_b32 %m, %m2
    v_max_f32 %m, %m, %m2
    v_mul_f32 %m, s{S_SC}, %m
    ''')
    stamp('s2')
    wo_ops = []
    for blk in range(2):
        wo_ops.append((('of', 0, blk), 'wc4', f'af{blk}'))
    for p in range(4):
        for kb in range(4):
            wo_ops.append((('o', p, kb), f'wc{p}', f'ad{kb}'))
    wo = Stream(wo_ops, 'wb')
    for i in range(4):
        A(f'v_fma_f32 %r0+{i}, %r0+{i}, s{S_SC}, -%m')
    A(f'v_fma_f32 %sm, %sm, s{S_SC}, -%m')
    for i in range(4):
        A(f'v_exp_f32 %r0+{i}, %r0+{i}')
    A(f'v_exp_f32 %sm, %sm')
    A(f'''
    v_cvt_pk_bf16_f32 %cv+0, %vc0+0, %vc0+1
    v_cvt_pk_bf16_f32 %cv+1, %vc0+2, %vc0+3
    v_cvt_pk_bf16_f32 %cv+2, %vc1+0, %vc1+1
    v_cvt_pk_bf16_f32 %cv+3, %vc1+2, %vc1+3
    v_cvt_pk_bf16_f32 %ps+0, %r0+0, %r0+1
    v_cvt_pk_bf16_f32 %ps+1, %r0+2, %r0+3
    v_mov_b32_dpp %u, %sm row_ror:8 row_mask:0xf bank_mask:0xf
    v_mov_b32_dpp %ps+2, %ps+0 row_ror:8 row_mask:0xf bank_mask:0xf
    v_mov_b32_dpp %ps+3, %ps+1 row_ror:8 row_mask:0xf bank_mask:0xf
    v_cvt_pk_bf16_f32 %pm+0, %sm, %u
    v_mfma_f32_16x16x32_bf16 %o0:4, {v(VS,4)}, %ps:4, 0
    v_mfma_f32_16x16x32_bf16 %o1:4, {v(VS+4,4)}, %ps:4, 0
    v_mov_b32 %pm+1, %pm+0
    v_permlane32_swap_b32 %pm+0, %pm+1
    v_mfma_f32_16x16x16_bf16 %o0:4, %cv+0:2, %pm:2, %o0:4
    v_mfma_f32_16x16x16_bf16 %o1:4, %cv+2:2, %pm:2, %o1:4
    ''')
    stamp('s3')
    for i in range(cfg.nwb):
        wo.read_next()
    A(f'''
    v_add_f32 %l, %r0+0, %r0+1
    v_add_f32 %l2, %r0+2, %r0+3
    v_add_f32 %l, %l, %sm
    v_add_f32 %l, %l, %l2
    v_add_f32_dpp %l, %l, %l row_ror:8 row_mask:0xf bank_mask:0xf
    v_mov_b32 %l2, %l
    v_permlane16_swap_b32 %l, %l2
    v_add_f32 %l, %l, %l2
    v_mov_b32 %l2, %l
    v_permlane32_swap_b32 %l, %l2
    v_add_f32 %l, %l, %l2
    v_rcp_f32 %l, %l
    {'; ' if cfg.x_nost else ''}buffer_store_dwordx2 %cv+0:2, v{V_VM}, {WS}, s{S_VMOFF} offen{SCKV}
    {'; ' if cfg.x_nost else ''}buffer_store_dwordx2 %cv+2:2, v{V_VM}, {WS}, s{S_VMOFF} offen offset:128{SCKV}
    s_add_u32 s{S_VMOFF}, s{S_VMOFF}, 131072
    s_cmp_eq_u32 s{S_STEP}, {cfg.nsteps-1}
    s_cbranch_scc1 {name}_exit
    ''')
    stamp('s4')
    for o in ('o0', 'o1'):
        for i in range(4):
            A(f'v_mul_f32 %{o}+{i}, %{o}+{i}, %l')
    A(f'''
    v_cvt_pk_bf16_f32 %op+0, %o0+0, %o0+1
    v_cvt_pk_bf16_f32 %op+1, %o0+2, %o0+3
    v_cvt_pk_bf16_f32 %op+2, %o1+0, %o1+1
    v_cvt_pk_bf16_f32 %op+3, %o1+2, %o1+3
    s_mov_b64 exec, s[{S_MLO}:{S_MLO+1}]
    ds_write_b128 v{V_OW}, %op:4
    s_mov_b64 exec, -1
    ''')
    if not cfg.x_nokv:
        env['k_prefetch']()
        if not cfg.x_nowarm and not cfg.warm3:
            env['v_warm']()
    zero('wc4', 4)
    zero('wc0', 4)
    zero('wc1', 4)
    A('s_waitcnt lgkmcnt(0)')
    A('s_barrier')
    stamp('b2')
    for blk in range(2):
        A(f'ds_read_b128 %af{blk}:4, v{V_MAF} offset:{128*blk}')
    for kb in range(4):
        A(f'ds_read_b128 %ad{kb}:4, v{V_MA0} offset:{64*kb}')

    def pub(p):
        A(f'''
        v_cvt_pk_bf16_f32 %pu{p}+0, %wc{p}+0, %wc{p}+1
        v_cvt_pk_bf16_f32 %pu{p}+1, %wc{p}+2, %wc{p}+3
        {f'v_bfi_b32 %pu{p}+{ED}, 1, s{S_EPO}, %pu{p}+{ED}' if cfg.epoch else ''}
        buffer_store_dwordx2 %pu{p}:2, v{V_PUBD}, {WS}, s{S_PART} offen offset:{512*p}{SC}
        ''')
    wo.mf()
    wo.mf()
    stamp('w1')
    for p in range(4):
        for kb in range(4):
            wo.mf()
            if p == 0 and kb == 3:
                A(f'''
                v_permlane32_swap_b32 %wc4+0, %wc4+2
                v_permlane32_swap_b32 %wc4+1, %wc4+3
                ''')
            if p == 1 and kb == 0:
                A(f'''
                v_add_f32 %wc4+0, %wc4+0, %wc4+2
                v_add_f32 %wc4+1, %wc4+1, %wc4+3
                ''')
            if p == 1 and kb == 1:
                if cfg.epoch:
                    A(f'''
                    v_cvt_pk_bf16_f32 %puf+0, %wc4+0, %wc4+1
                    v_mov_b32 %puf+1, %puf+0
                    v_permlane32_swap_b32 %puf+0, %puf+1
                    v_bfi_b32 %puf+{ED}, 1, s{S_EPO}, %puf+{ED}
                    buffer_store_dwordx2 %puf:2, v{V_PUBF}, {WS}, s{S_PART} offen{SC}
                    ''')
                else:
                    A(f'''
                    v_cvt_pk_bf16_f32 %puf, %wc4+0, %wc4+1
                    buffer_store_dword %puf, v{V_PUBF}, {WS}, s{S_PART} offen{SC}
                    ''')
            if p == 1 and kb == 2:
                zero('wc2', 4)
            if kb == 3 and p >= 1:
                pub(p - 1)
            if kb == 1 and p == 2:
                zero('wc3', 4)
    pub(3)
    stamp('wo')
    if cfg.stamps and variant == 'fast':
        A(f's_mov_b32 s75, s{S_BUD}')
    A(f'''
    s_cmp_eq_u32 s{S_ISRED}, 0
    s_cbranch_scc1 {L('nored')}
    s_add_u32 s{S_T1}, s{S_T5}, {1*4*9216}
    s_add_u32 s{S_T2}, s{S_T5}, {2*4*9216}
    s_add_u32 s{S_T3}, s{S_T5}, {3*4*9216}
    ''')
    so = [S_T5, S_T1, S_T2, S_T3]

    def rloads():
        for i in range(4):
            A(f'buffer_load_dwordx4 %rd+{4*i}:4, v{V_RL}, {WS}, s{so[i]} offen sc1')
    stamp('r0')
    A('s_mov_b32 s84, 0')
    rloads()
    A(f'''
    v_bfe_u32 %q0, v{V_L16}, 4, 1
    v_bfe_u32 %q1, v{V_L16}, 5, 2
    v_lshlrev_b32 %q0, 4, %q0
    v_mov_b32 %q2, 0x3f80
    v_lshlrev_b32 %q2, %q0, %q2
    ''')
    for i in range(4):
        A(f'v_cmp_eq_u32 vcc, {i}, %q1')
        A(f'v_cndmask_b32 %sr+{i}, 0, %q2, vcc')
    if not cfg.mrepoll:
        assert not cfg.epoch
        A(f's_branch {L("rchk")}')
        A.label(L('rpoll'))
        rloads()
        A.label(L('rchk'))
        A(f'''
        s_sub_u32 s{S_BUD}, s{S_BUD}, 1
        s_cbranch_scc1 {name}_exit
        v_max3_u32 %c0, %rd+0, %rd+1, %rd+2
        v_max3_u32 %c1, %rd+3, %rd+4, %rd+5
        v_max3_u32 %c0, %c0, %rd+6, %rd+7
        v_max3_u32 %c1, %c1, %rd+8, %rd+9
        v_max3_u32 %c0, %c0, %rd+10, %rd+11
        v_max3_u32 %c1, %c1, %rd+12, %rd+13
        v_max3_u32 %c0, %c0, %rd+14, %rd+15
        v_max_u32 %c0, %c0, %c1
        v_cmp_eq_u32 vcc, -1, %c0
        s_cbranch_vccnz {L('rpoll')}
        ''')
    elif cfg.pp_r:
        assert cfg.epoch
        for i in range(4):
            A(f's_mov_b64 s[{S_MK+2*i}:{S_MK+2*i+1}], -1')
        A.label(L('rchk'))
        A(f'''
        s_sub_u32 s{S_BUD}, s{S_BUD}, 1
        s_cbranch_scc1 {name}_exit
        s_waitcnt vmcnt({cfg.pp_rw})
        ''')
        for i in range(4):
            A(f's_mov_b64 exec, s[{S_MK+2*i}:{S_MK+2*i+1}]')
            A(f'buffer_load_dwordx4 %rd+{4*i}:4, v{V_RL}, {WS}, s{so[i]} offen sc1', tag='nowait')
        A('s_mov_b64 exec, -1')
        A('s_waitcnt vmcnt(4)')
        for i in range(4):
            A(f'v_bitop3_b32 %ck+{i}, %rd+{4*i+1}, %rd+{4*i+3}, s{S_EPO} bitop3:0x7e', tag='nowait')
        A(f'''
        v_or3_b32 %c0, %ck+0, %ck+1, %ck+2
        v_or_b32 %c0, %c0, %ck+3
        v_and_b32 %c0, 1, %c0
        v_cmp_ne_u32 vcc, 0, %c0
        s_cbranch_vccz {L("rok")}
        ''')
        for i in range(4):
            A(f'v_and_b32 %ck+{i}, 1, %ck+{i}')
            A(f'v_cmp_ne_u32 s[{S_MK+2*i}:{S_MK+2*i+1}], 0, %ck+{i}')
        A(f's_branch {L("rchk")}')
        A.label(L('rok'))
        stamp('r2')
    else:
        A.label(L('rchk'))
        A(f'''
        s_sub_u32 s{S_BUD}, s{S_BUD}, 1
        s_cbranch_scc1 {name}_exit
        ''')
        for i in range(4):
            if cfg.epoch:
                A(f'v_bitop3_b32 %ck+{i}, %rd+{4*i+1}, %rd+{4*i+3}, s{S_EPO} bitop3:0x7e')
            else:
                A(f'v_max3_u32 %ck+{i}, %rd+{4*i}, %rd+{4*i+1}, %rd+{4*i+2}')
                A(f'v_max_u32 %ck+{i}, %ck+{i}, %rd+{4*i+3}')
        if cfg.epoch:
            A(f'''
            v_or3_b32 %c0, %ck+0, %ck+1, %ck+2
            v_or_b32 %c0, %c0, %ck+3
            v_and_b32 %c0, 1, %c0
            v_cmp_ne_u32 vcc, 0, %c0
            ''')
        else:
            A(f'''
            v_max3_u32 %c0, %ck+0, %ck+1, %ck+2
            v_max_u32 %c0, %c0, %ck+3
            v_cmp_eq_u32 vcc, -1, %c0
            ''')
        if 'r1' in cfg.pts and variant == 'fast' and cfg.stamps:
            lab1 = L('r1skip')
            A(f's_cmp_lg_u32 s84, 0')
            A(f's_cbranch_scc1 {lab1}')
            stamp('r1')
            A('s_mov_b32 s84, 1')
            A.label(lab1)
        A(f's_cbranch_vccz {L("rok")}')
        for i in range(4):
            if cfg.epoch:
                A(f'v_and_b32 %ck+{i}, 1, %ck+{i}')
                A(f'v_cmp_ne_u32 s[{S_MK+2*i}:{S_MK+2*i+1}], 0, %ck+{i}')
            else:
                A(f'v_cmp_eq_u32 s[{S_MK+2*i}:{S_MK+2*i+1}], -1, %ck+{i}')
        for i in range(4):
            A(f's_mov_b64 exec, s[{S_MK+2*i}:{S_MK+2*i+1}]')
            A(f'buffer_load_dwordx4 %rd+{4*i}:4, v{V_RL}, {WS}, s{so[i]} offen sc1')
        A('s_mov_b64 exec, -1')
        A(f's_branch {L("rchk")}')
        A.label(L('rok'))
        stamp('r2')
    A(f'''
    v_mfma_f32_16x16x32_bf16 %ra:4, %rd+0:4, %sr:4, 0
    v_mfma_f32_16x16x32_bf16 %ra:4, %rd+4:4, %sr:4, %ra:4
    v_mfma_f32_16x16x32_bf16 %ra:4, %rd+8:4, %sr:4, %ra:4
    v_mfma_f32_16x16x32_bf16 %ra:4, %rd+12:4, %sr:4, %ra:4
    ''', tag='nowait' if cfg.pp_r else None)
    A(f'''
    v_mov_b64 %neg+0:2, -1
    v_mov_b64 %neg+2:2, -1
    v_permlane32_swap_b32 %ra+0, %ra+2
    v_permlane32_swap_b32 %ra+1, %ra+3
    v_add_f32 %ra+0, %ra+0, %ra+2
    v_add_f32 %ra+1, %ra+1, %ra+3
    v_cvt_pk_bf16_f32 %c0, %ra+0, %ra+1
    buffer_store_dword %c0, v{V_RP}, {WS}, s{S_MNXT} offen{SC}
    ''')
    stamp('r3')
    if not cfg.rearm_sm:
        A(f'buffer_store_dword %neg+0, v{V_RP}, {WS}, s{S_MCUR} offen{SC}')
    if not cfg.norearm and not cfg.rearm_sm and not cfg.epoch:
        for i in range(4):
            A(f'buffer_store_dwordx4 %neg:4, v{V_RL}, {WS}, s{so[i]} offen{SC}')
    A.label(L('nored'))
    if cfg.x_bar:
        A('s_barrier')
    stamp('red')
    if cfg.stamps and variant == 'fast':
        A(f's_sub_u32 s73, s75, s{S_BUD}')
        A(f's_mov_b32 s74, s{S_BUD}')
    A(f'''
    s_mov_b32 s{S_T1}, s{S_MCUR}
    s_mov_b32 s{S_MCUR}, s{S_MNXT}
    s_mov_b32 s{S_MNXT}, s{S_MTHD}
    s_mov_b32 s{S_MTHD}, s{S_T1}
    s_add_u32 s{S_PART}, s{S_PART}, s{S_PDELTA}
    s_add_u32 s{S_T5}, s{S_T5}, s{S_PDELTA}
    s_sub_u32 s{S_PDELTA}, 0, s{S_PDELTA}
    s_add_u32 s{S_STEP}, s{S_STEP}, 1
    s_bfe_u32 s{S_EPO}, s{S_STEP}, 0x10001
    ''')
    if cfg.stamps and variant == 'fast':
        lab = L('nost')
        A(f'''
        s_cmp_lg_u32 s{S_STEP}, 20
        s_cbranch_scc1 {lab}
        s_waitcnt lgkmcnt(0)
        s_lshl_b32 s{S_T1}, s{S_H}, 2
        s_add_u32 s{S_T1}, s{S_T1}, s{S_W}
        s_lshl_b32 s{S_T1}, s{S_T1}, 7
        s_add_u32 s{S_T1}, s{S_T1}, {WS_STAMP}
        v_mov_b32 %z0, 0
        ''')
        for i in range(9):
            A(f'v_mov_b32 %z1+0, s{56+2*i}')
            A(f'v_mov_b32 %z1+1, s{57+2*i}')
            A(f'buffer_store_dwordx2 %z1:2, %z0, {WS}, s{S_T1} offen offset:{8*i}')
            A('s_waitcnt vmcnt(0)')
        A.label(lab)
    A(f's_branch {L("top")}')
    A.label(L('end'))
    A.regalloc(L('pre'), L('end'), POOL, verbose=True, outer=(L('top'),), wrap=(('rd',) if cfg.pp_r else ()))
```

```python
from asmlib import Asm, v, a, s, r
from layout import *
import gemm as G
from gemm import GemmCfg, f2u
import kernels as K
import chain2
from chain2 import emit_chain, ChainCfg, DBG_KV, DBG_H

W_G, W_I, W_R, W_CB, W_RB, W_SIG, W_BUD, W_T = 60, 61, 62, 63, 64, 65, 66, 67
SRD_D = 68

C1S = GemmCfg(4, 4, 9, 2, 1152, 'rm', sc1=True)
C2S = GemmCfg(3, 2, 72, 3, 9216, 'base')


def signal(A, lab):
    A(f'''
    s_waitcnt vmcnt(0)
    s_barrier
    s_cmp_lg_u32 s{G.S_WAVE}, 0
    s_cbranch_scc1 {lab}
    s_mov_b64 exec, 1
    v_mov_b32 v13, 1
    v_mov_b32 v14, s{W_SIG}
    buffer_atomic_add v13, v14, s[{SRD_D}:{SRD_D+3}], 0 offen sc1
    s_mov_b64 exec, -1
    ''')
    A.label(lab)


def acquire(A, lab, s_off, count):
    A(f'''
    s_cmp_lg_u32 s{G.S_WAVE}, 0
    s_cbranch_scc1 {lab}_go
    v_mov_b32 v14, s{s_off}
    ''')
    A.label(lab + '_poll')
    A(f'''
    buffer_load_dword v13, v14, s[{SRD_D}:{SRD_D+3}], 0 offen sc1
    s_waitcnt vmcnt(0)
    v_readfirstlane_b32 s{W_T}, v13
    s_sub_u32 s{W_BUD}, s{W_BUD}, 1
    s_cbranch_scc1 {lab}_got
    s_cmp_ge_u32 s{W_T}, {count}
    s_cbranch_scc1 {lab}_got
    s_sleep 32
    s_branch {lab}_poll
    ''')
    A.label(lab + '_got')
    A(f'''
    buffer_inv sc1
    s_waitcnt vmcnt(0)
    ''')
    A.label(lab + '_go')
    A('s_barrier')


def emit_worker(A, name):
    L = lambda x: f'{name}_{x}'
    A.label(L('worker'))
    K.common_entry(A, 256, L('wexit'))
    A(f'''
    s_load_dwordx2 s[{SRD_D}:{SRD_D+1}], s[0:1], {KA_DBG}
    s_mov_b32 s{SRD_D+2}, 256
    s_mov_b32 s{SRD_D+3}, 0x20000
    s_and_b32 s{W_G}, s2, 7
    s_sub_u32 s{W_G}, s{W_G}, 1
    s_lshr_b32 s{W_I}, s2, 3
    s_mov_b32 s{W_R}, 0
    s_mov_b32 s{W_BUD}, 200000
    s_add_u32 s{W_CB}, s{W_I}, 16
    s_mov_b32 s{W_RB}, s{W_G}
    s_waitcnt lgkmcnt(0)
    ''')
    A.label(L('task'))
    A(f'''
    s_lshl_b32 s{W_SIG}, s{W_RB}, 2
    s_add_u32 s{W_T}, s{W_SIG}, {DBG_H}
    s_add_u32 s{W_SIG}, s{W_SIG}, {DBG_KV}
    s_cmp_ge_u32 s{W_CB}, 48
    s_cselect_b32 s{W_SIG}, s{W_T}, s{W_SIG}
    s_cmp_lt_u32 s{W_CB}, 16
    s_cselect_b32 s{W_SIG}, 256, s{W_SIG}
    ''')
    K.emit_gemm1_task(A, L('g1'), W_CB, W_RB, C1S)
    signal(A, L('sig1'))
    A(f'''
    s_lshl_b32 s{W_T}, s{W_R}, 5
    s_add_u32 s{W_T}, s{W_T}, s{W_I}
    s_add_u32 s{W_R}, s{W_R}, 1
    s_cmp_eq_u32 s{W_R}, 3
    s_cbranch_scc1 {L('g1done')}
    s_and_b32 s{W_RB}, s{W_T}, 7
    s_cmp_eq_u32 s{W_G}, 6
    s_cbranch_scc1 {L('g6')}
    s_cmp_ge_u32 s{W_T}, 40
    s_cbranch_scc1 {L('g1done')}
    s_lshr_b32 s{W_T}, s{W_T}, 3
    s_mul_i32 s{W_CB}, s{W_G}, 5
    s_add_u32 s{W_T}, s{W_T}, s{W_CB}
    s_branch {L('cmap')}
    ''')
    A.label(L('g6'))
    A(f'''
    s_cmp_ge_u32 s{W_T}, 32
    s_cbranch_scc1 {L('g6b')}
    s_add_u32 s{W_CB}, s{W_T}, 16
    s_mov_b32 s{W_RB}, 7
    s_branch {L('task')}
    ''')
    A.label(L('g6b'))
    A(f'''
    s_lshr_b32 s{W_T}, s{W_T}, 3
    s_add_u32 s{W_T}, s{W_T}, {30 - 4}
    ''')
    A.label(L('cmap'))
    A(f'''
    s_add_u32 s{W_CB}, s{W_T}, 48
    s_cmp_lt_u32 s{W_T}, 18
    s_cbranch_scc1 {L('task')}
    s_sub_u32 s{W_CB}, s{W_T}, 18
    s_branch {L('task')}
    ''')
    A.label(L('g1done'))
    A(f'''
    s_cmp_ge_u32 s{W_G}, 6
    s_cbranch_scc1 {L('wexit')}
    s_sub_u32 s{W_T}, s{W_I}, 8
    s_cmp_ge_u32 s{W_T}, 8
    s_cbranch_scc1 {L('wexit')}
    s_lshr_b32 s{W_CB}, s{W_G}, 1
    s_and_b32 s{W_RB}, s{W_G}, 1
    s_lshl_b32 s{W_RB}, s{W_RB}, 3
    s_add_u32 s{W_RB}, s{W_RB}, s{W_T}
    s_lshr_b32 s{W_SIG}, s{W_RB}, 1
    s_lshl_b32 s{W_SIG}, s{W_SIG}, 2
    s_add_u32 s{W_SIG}, s{W_SIG}, {DBG_H}
    ''')
    acquire(A, L('acq2'), W_SIG, 18)
    K.emit_ffn2_task(A, L('f2'), W_CB, W_RB, C2S)
    A.label(L('wexit'))
    A('s_endpgm')


def emit_main(A, name, cfg=None):
    cfg = cfg or ChainCfg()
    cfg.fused = True
    emit_chain(A, cfg, name)
    emit_worker(A, name)
```

```python
import sys
from gen import *
from kernels import *
import kernels
from fused import *
C3b = GemmCfg(3, 2, 64, 3, 8192, 'out')
txt, n = build([('prep_kernel', emit_prep, 256, 256), ('main_kernel', emit_main, 512, 256),
                ('attn_kernel', emit_attn, 256, 256), ('outp_kernel', emit_outp, 512, 256)],
               [('prep_kernel', 64, 256, 0), ('main_kernel', 256, 256, 163840),
                ('attn_kernel', 512, 256, 32768), ('outp_kernel', 48, 256, 3*40960)])
out = sys.argv[1] if len(sys.argv) > 1 else 'fused.s'
open(out, 'w').write(txt)
print('instrs', n, 'bytes', len(txt))
```

```python
from asmlib import Asm, v, a, s, r
from layout import *
import struct, math


def f2u(x):
    return struct.unpack('<I', struct.pack('<f', x))[0]


SC_L2E = f2u(128 ** -0.5 * math.log2(math.e))
NEG_RAW = f2u(-1e9 * math.sqrt(128.0))

SRD_WS = 8
S_MASK = 56
S_A1, S_A2, S_A3, S_A4, S_A5 = 16, 17, 18, 19, 20
S_SC = 21

V_LANE = 0
V_QA = 1
V_KMA = 2
V_VTA = 3
V_VMA = 4
V_LW = 5
V_LR = 6
V_OA = 10
V_T = 11
QF = 16
KF = 48
KMF = 80
VTF = 112
VMF = 144
SS = 160
SM = 176
OA = 192


def emit_attn_setup(A, s_wave, lds_base=0):
    t0, t1, t2 = V_T, V_T + 1, V_T + 2
    A(f'''
    v_and_b32 v{t0}, 31, v{V_LANE}
    v_lshrrev_b32 v{t1}, 5, v{V_LANE}
    v_lshlrev_b32 v{t2}, 4, v{t1}
    v_lshl_add_u32 v{V_QA}, v{t0}, 13, v{t2}
    v_lshl_add_u32 v{V_VTA}, v{t0}, 6, v{t2}
    v_lshl_add_u32 v{V_VMA}, v{t0}, 5, v{t2}
    v_and_b32 v{V_KMA}, 7, v{t0}
    v_lshl_add_u32 v{V_KMA}, v{V_KMA}, 8, v{t2}
    s_lshl_b32 s{S_A1}, s{s_wave}, 13
    s_add_u32 s{S_A1}, s{S_A1}, {lds_base}
    v_and_b32 v{t2}, 15, v{t0}
    v_xor_b32 v{t2}, v{t2}, v{t1}
    v_lshlrev_b32 v{t2}, 4, v{t2}
    v_lshl_add_u32 v{t2}, v{t0}, 8, v{t2}
    v_add_u32 v{V_LW}, s{S_A1}, v{t2}
    v_lshlrev_b32 v{t1}, 2, v{t1}
    v_sub_u32 v{t2}, v{t0}, v{t1}
    ''')
    for i in range(16):
        A(f'v_cmp_le_i32 s[{S_MASK+2*i}:{S_MASK+2*i+1}], {8*(i>>2)+(i&3)}, v{t2}')
    A(f'''
    v_lshrrev_b32 v{t0}, 4, v{V_LANE}
    v_and_b32 v{t1}, 15, v{V_LANE}
    v_xor_b32 v{t2}, v{t0}, v{t1}
    v_lshlrev_b32 v{t2}, 4, v{t2}
    v_lshl_add_u32 v{t2}, v{t0}, 8, v{t2}
    v_add_u32 v{V_LR}, s{S_A1}, v{t2}
    v_xor_b32 v{V_LR+1}, 64, v{V_LR}
    v_xor_b32 v{V_LR+2}, 128, v{V_LR}
    v_xor_b32 v{V_LR+3}, 192, v{V_LR}
    v_lshlrev_b32 v{t1}, 4, v{t1}
    v_lshl_add_u32 v{V_OA}, v{t0}, 13, v{t1}
    s_mov_b32 s{S_SC}, {SC_L2E:#x}
    ''')


def emit_attn_task(A, s_seg, s_head, sc1_in=False, sc1_out=False, poll=None):
    WS = f's[{SRD_WS}:{SRD_WS+3}]'
    si = ' sc1' if sc1_in else ''
    so = ' sc1' if sc1_out else ''
    t0, t1, t2, t3 = V_T, V_T + 1, V_T + 2, V_T + 3
    A(f'''
    s_lshl_b32 s{S_A1}, s{s_seg}, 18
    s_lshl_b32 s{S_A2}, s{s_head}, 8
    s_add_u32 s{S_A1}, s{S_A1}, s{S_A2}
    s_add_u32 s{S_A2}, s{S_A1}, {WS_K}
    s_add_u32 s{S_A5}, s{S_A1}, {WS_O}
    s_add_u32 s{S_A1}, s{S_A1}, {WS_Q}
    s_lshl_b32 s{S_A3}, s{s_head}, 13
    s_lshl_b32 s{S_A4}, s{s_seg}, 18
    s_add_u32 s{S_A3}, s{S_A3}, s{S_A4}
    s_add_u32 s{S_A3}, s{S_A3}, {WS_VT}
    ''')
    for ks in range(8):
        A(f'buffer_load_dwordx4 {v(KF+4*ks,4)}, v{V_QA}, {WS}, s{S_A2} offen offset:{32*ks}{si}')
        A(f'buffer_load_dwordx4 {v(QF+4*ks,4)}, v{V_QA}, {WS}, s{S_A1} offen offset:{32*ks}{si}')
    for eb in range(4):
        for kb in range(2):
            A(f'buffer_load_dwordx4 {v(VTF+8*eb+4*kb,4)}, v{V_VTA}, {WS}, s{S_A3} offen offset:{32*kb}{si}')
        if eb < 3:
            A(f's_add_u32 s{S_A3}, s{S_A3}, {32*64}')
    for ks in range(8):
        cin = '0' if ks == 0 else v(SS, 16)
        A(f'v_mfma_f32_32x32x16_bf16 {v(SS,16)}, {v(KF+4*ks,4)}, {v(QF+4*ks,4)}, {cin}')
    if poll:
        poll()
    A(f'''
    s_lshl_b32 s{S_A1}, s{s_seg}, 16
    s_lshl_b32 s{S_A2}, s{s_head}, 11
    s_add_u32 s{S_A1}, s{S_A1}, s{S_A2}
    s_lshl_b32 s{S_A2}, s{S_A1}, 1
    s_add_u32 s{S_A1}, s{S_A1}, {WS_KM}
    s_add_u32 s{S_A2}, s{S_A2}, {WS_VM}
    ''')
    for ks in range(8):
        A(f'buffer_load_dwordx4 {v(KMF+4*ks,4)}, v{V_KMA}, {WS}, s{S_A1} offen offset:{32*ks}{si}')
    for eb in range(4):
        A(f'buffer_load_dwordx4 {v(VMF+4*eb,4)}, v{V_VMA}, {WS}, s{S_A2} offen offset:{1024*eb}{si}')
    A(f'v_mov_b32 v{t0}, {NEG_RAW:#x}')
    for i in range(16):
        A(f'v_cndmask_b32 v{SS+i}, v{t0}, v{SS+i}, s[{S_MASK+2*i}:{S_MASK+2*i+1}]')
    m = t1
    A(f'v_max3_f32 v{m}, v{SS}, v{SS+1}, v{SS+2}')
    for i in range(3, 15, 2):
        A(f'v_max3_f32 v{m}, v{m}, v{SS+i}, v{SS+i+1}')
    A(f'v_max_f32 v{m}, v{m}, v{SS+15}')
    for ks in range(8):
        cin = '0' if ks == 0 else v(SM, 16)
        A(f'v_mfma_f32_32x32x16_bf16 {v(SM,16)}, {v(KMF+4*ks,4)}, {v(QF+4*ks,4)}, {cin}')
    A(f'''
    v_max3_f32 v{m}, v{m}, v{SM}, v{SM+1}
    v_max3_f32 v{m}, v{m}, v{SM+2}, v{SM+3}
    v_mov_b32 v{t2}, v{m}
    v_permlane32_swap_b32 v{m}, v{t2}
    v_max_f32 v{m}, v{m}, v{t2}
    v_mul_f32 v{m}, s{S_SC}, v{m}
    ''')
    vals = [SM + i for i in range(4)] + [SS + i for i in range(16)]
    for x in vals:
        A(f'v_fma_f32 v{x}, v{x}, s{S_SC}, -v{m}')
    for x in vals:
        A(f'v_exp_f32 v{x}, v{x}')
    l = t1
    A(f'v_add_f32 v{l}, v{vals[0]}, v{vals[1]}')
    A(f'v_add_f32 v{t2}, v{vals[2]}, v{vals[3]}')
    for i in range(4, 20, 2):
        A(f'v_add_f32 v{l}, v{l}, v{vals[i]}')
        A(f'v_add_f32 v{t2}, v{t2}, v{vals[i+1]}')
    A(f'''
    v_add_f32 v{l}, v{l}, v{t2}
    v_mov_b32 v{t2}, v{l}
    v_permlane32_swap_b32 v{l}, v{t2}
    v_add_f32 v{l}, v{l}, v{t2}
    v_rcp_f32 v{l}, v{l}
    ''')
    PM = KF
    PS = KF + 4
    A(f'''
    v_cvt_pk_bf16_f32 v{PM}, v{SM}, v{SM+1}
    v_cvt_pk_bf16_f32 v{PM+1}, v{SM+2}, v{SM+3}
    v_mov_b32 v{PM+2}, v{PM}
    v_mov_b32 v{PM+3}, v{PM+1}
    v_permlane32_swap_b32 v{PM}, v{PM+2}
    v_permlane32_swap_b32 v{PM+1}, v{PM+3}
    ''')
    for kb in range(2):
        R = PS + 4 * kb
        b = SS + 8 * kb
        A(f'''
        v_cvt_pk_bf16_f32 v{R}, v{b}, v{b+1}
        v_cvt_pk_bf16_f32 v{R+1}, v{b+2}, v{b+3}
        v_cvt_pk_bf16_f32 v{R+2}, v{b+4}, v{b+5}
        v_cvt_pk_bf16_f32 v{R+3}, v{b+6}, v{b+7}
        v_permlane32_swap_b32 v{R}, v{R+2}
        v_permlane32_swap_b32 v{R+1}, v{R+3}
        ''')
    for eb in range(4):
        acc = v(OA + 16 * eb, 16)
        A(f'v_mfma_f32_32x32x16_bf16 {acc}, {v(VTF+8*eb,4)}, {v(PS,4)}, 0')
        A(f'v_mfma_f32_32x32x16_bf16 {acc}, {v(VTF+8*eb+4,4)}, {v(PS+4,4)}, {acc}')
        A(f'v_mfma_f32_32x32x16_bf16 {acc}, {v(VMF+4*eb,4)}, {v(PM,4)}, {acc}')
    for eb in range(4):
        b0 = OA + 16 * eb
        for i in range(16):
            A(f'v_mul_f32 v{b0+i}, v{b0+i}, v{l}')
        for u in range(2):
            b = b0 + 8 * u
            A(f'''
            v_cvt_pk_bf16_f32 v{b}, v{b}, v{b+1}
            v_cvt_pk_bf16_f32 v{b+1}, v{b+2}, v{b+3}
            v_cvt_pk_bf16_f32 v{b+2}, v{b+4}, v{b+5}
            v_cvt_pk_bf16_f32 v{b+3}, v{b+6}, v{b+7}
            v_permlane32_swap_b32 v{b}, v{b+2}
            v_permlane32_swap_b32 v{b+1}, v{b+3}
            v_xor_b32 v{t2}, {(4*eb+2*u)*16}, v{V_LW}
            ds_write_b128 v{t2}, {v(b,4)}
            ''')
    A('s_waitcnt lgkmcnt(0)')
    for j in range(8):
        A(f'ds_read_b128 {v(QF+4*j,4)}, v{V_LR+(j&3)} offset:{1024*j}')
    for j in range(8):
        A(f'buffer_store_dwordx4 {v(QF+4*j,4)}, v{V_OA}, {WS}, s{S_A5} offen{so}')
        if j < 7:
            A(f's_add_u32 s{S_A5}, s{S_A5}, {4*8192}')


def emit_attn_setup2(A):
    t0, t1, t2 = V_T, V_T + 1, V_T + 2
    A(f'''
    v_and_b32 v{t0}, 31, v{V_LANE}
    v_lshrrev_b32 v{t1}, 5, v{V_LANE}
    v_lshlrev_b32 v{t2}, 4, v{t1}
    v_lshl_add_u32 v{V_QA}, v{t0}, 13, v{t2}
    v_lshl_add_u32 v{V_VTA}, v{t0}, 6, v{t2}
    v_lshl_add_u32 v{V_VMA}, v{t0}, 5, v{t2}
    v_and_b32 v{V_KMA}, 7, v{t0}
    v_lshl_add_u32 v{V_KMA}, v{V_KMA}, 8, v{t2}
    v_lshlrev_b32 v{V_OA}, 4, v{V_LANE}
    v_lshlrev_b32 v{t1}, 2, v{t1}
    v_sub_u32 v{t2}, v{t0}, v{t1}
    ''')
    for i in range(16):
        A(f'v_cmp_le_i32 s[{S_MASK+2*i}:{S_MASK+2*i+1}], {8*(i>>2)+(i&3)}, v{t2}')
    A(f's_mov_b32 s{S_SC}, {SC_L2E:#x}')


def emit_attn_task2(A, s_seg, s_head, poll):
    WS = f's[{SRD_WS}:{SRD_WS+3}]'
    si = ' sc1'
    t0, t1, t2, t3 = V_T, V_T + 1, V_T + 2, V_T + 3
    A(f'''
    s_lshl_b32 s{S_A1}, s{s_seg}, 18
    s_lshl_b32 s{S_A2}, s{s_head}, 8
    s_add_u32 s{S_A1}, s{S_A1}, s{S_A2}
    s_add_u32 s{S_A2}, s{S_A1}, {WS_K}
    s_add_u32 s{S_A1}, s{S_A1}, {WS_Q}
    s_lshl_b32 s{S_A3}, s{s_head}, 13
    s_lshl_b32 s{S_A4}, s{s_seg}, 18
    s_add_u32 s{S_A3}, s{S_A3}, s{S_A4}
    s_add_u32 s{S_A5}, s{S_A3}, {WS_O}
    s_add_u32 s{S_A3}, s{S_A3}, {WS_VT}
    ''')
    for ks in range(8):
        A(f'buffer_load_dwordx4 {v(KF+4*ks,4)}, v{V_QA}, {WS}, s{S_A2} offen offset:{32*ks}{si}')
        A(f'buffer_load_dwordx4 {v(QF+4*ks,4)}, v{V_QA}, {WS}, s{S_A1} offen offset:{32*ks}{si}')
    for eb in range(4):
        for kb in range(2):
            A(f'buffer_load_dwordx4 {v(VTF+8*eb+4*kb,4)}, v{V_VTA}, {WS}, s{S_A3} offen offset:{32*kb}{si}')
        if eb < 3:
            A(f's_add_u32 s{S_A3}, s{S_A3}, {32*64}')
    for ks in range(8):
        cin = '0' if ks == 0 else v(SS, 16)
        A(f'v_mfma_f32_32x32x16_bf16 {v(SS,16)}, {v(KF+4*ks,4)}, {v(QF+4*ks,4)}, {cin}')
    A(f'v_mov_b32 v{t0}, {NEG_RAW:#x}')
    for i in range(16):
        A(f'v_cndmask_b32 v{SS+i}, v{t0}, v{SS+i}, s[{S_MASK+2*i}:{S_MASK+2*i+1}]')
    m = V_LW
    A(f'v_max3_f32 v{m}, v{SS}, v{SS+1}, v{SS+2}')
    for i in range(3, 15, 2):
        A(f'v_max3_f32 v{m}, v{m}, v{SS+i}, v{SS+i+1}')
    A(f'v_max_f32 v{m}, v{m}, v{SS+15}')
    A('s_waitcnt vmcnt(0)')
    poll()
    A(f'''
    s_lshl_b32 s{S_A1}, s{s_seg}, 16
    s_lshl_b32 s{S_A2}, s{s_head}, 11
    s_add_u32 s{S_A1}, s{S_A1}, s{S_A2}
    s_lshl_b32 s{S_A2}, s{S_A1}, 1
    s_add_u32 s{S_A1}, s{S_A1}, {WS_KM}
    s_add_u32 s{S_A2}, s{S_A2}, {WS_VM}
    ''')
    for ks in range(8):
        A(f'buffer_load_dwordx4 {v(KMF+4*ks,4)}, v{V_KMA}, {WS}, s{S_A1} offen offset:{32*ks}{si}')
    for eb in range(4):
        A(f'buffer_load_dwordx4 {v(VMF+4*eb,4)}, v{V_VMA}, {WS}, s{S_A2} offen offset:{1024*eb}{si}')
    for ks in range(8):
        cin = '0' if ks == 0 else v(SM, 16)
        A(f'v_mfma_f32_32x32x16_bf16 {v(SM,16)}, {v(KMF+4*ks,4)}, {v(QF+4*ks,4)}, {cin}')
    A(f'''
    v_max3_f32 v{m}, v{m}, v{SM}, v{SM+1}
    v_max3_f32 v{m}, v{m}, v{SM+2}, v{SM+3}
    v_mov_b32 v{t2}, v{m}
    v_permlane32_swap_b32 v{m}, v{t2}
    v_max_f32 v{m}, v{m}, v{t2}
    v_mul_f32 v{m}, s{S_SC}, v{m}
    ''')
    vals = [SM + i for i in range(4)] + [SS + i for i in range(16)]
    for x in vals:
        A(f'v_fma_f32 v{x}, v{x}, s{S_SC}, -v{m}')
    for x in vals:
        A(f'v_exp_f32 v{x}, v{x}')
    l = t1
    A(f'v_add_f32 v{l}, v{vals[0]}, v{vals[1]}')
    A(f'v_add_f32 v{t2}, v{vals[2]}, v{vals[3]}')
    for i in range(4, 20, 2):
        A(f'v_add_f32 v{l}, v{l}, v{vals[i]}')
        A(f'v_add_f32 v{t2}, v{t2}, v{vals[i+1]}')
    A(f'''
    v_add_f32 v{l}, v{l}, v{t2}
    v_mov_b32 v{t2}, v{l}
    v_permlane32_swap_b32 v{l}, v{t2}
    v_add_f32 v{l}, v{l}, v{t2}
    v_rcp_f32 v{l}, v{l}
    ''')
    PM = KF
    PS = KF + 4
    A(f'''
    v_cvt_pk_bf16_f32 v{PM}, v{SM}, v{SM+1}
    v_cvt_pk_bf16_f32 v{PM+1}, v{SM+2}, v{SM+3}
    v_mov_b32 v{PM+2}, v{PM}
    v_mov_b32 v{PM+3}, v{PM+1}
    v_permlane32_swap_b32 v{PM}, v{PM+2}
    v_permlane32_swap_b32 v{PM+1}, v{PM+3}
    ''')
    for kb in range(2):
        R = PS + 4 * kb
        b = SS + 8 * kb
        A(f'''
        v_cvt_pk_bf16_f32 v{R}, v{b}, v{b+1}
        v_cvt_pk_bf16_f32 v{R+1}, v{b+2}, v{b+3}
        v_cvt_pk_bf16_f32 v{R+2}, v{b+4}, v{b+5}
        v_cvt_pk_bf16_f32 v{R+3}, v{b+6}, v{b+7}
        v_permlane32_swap_b32 v{R}, v{R+2}
        v_permlane32_swap_b32 v{R+1}, v{R+3}
        ''')
    for eb in range(4):
        acc = v(OA + 16 * eb, 16)
        A(f'v_mfma_f32_32x32x16_bf16 {acc}, {v(VTF+8*eb,4)}, {v(PS,4)}, 0')
        A(f'v_mfma_f32_32x32x16_bf16 {acc}, {v(VTF+8*eb+4,4)}, {v(PS+4,4)}, {acc}')
        A(f'v_mfma_f32_32x32x16_bf16 {acc}, {v(VMF+4*eb,4)}, {v(PM,4)}, {acc}')
    for eb in range(4):
        b0 = OA + 16 * eb
        for i in range(16):
            A(f'v_mul_f32 v{b0+i}, v{b0+i}, v{l}')
        for u in range(2):
            b = b0 + 8 * u
            ks = 2 * eb + u
            A(f'''
            v_cvt_pk_bf16_f32 v{b}, v{b}, v{b+1}
            v_cvt_pk_bf16_f32 v{b+1}, v{b+2}, v{b+3}
            v_cvt_pk_bf16_f32 v{b+2}, v{b+4}, v{b+5}
            v_cvt_pk_bf16_f32 v{b+3}, v{b+6}, v{b+7}
            v_permlane32_swap_b32 v{b}, v{b+2}
            v_permlane32_swap_b32 v{b+1}, v{b+3}
            ''')
            if ks == 4:
                A(f's_add_u32 s{S_A5}, s{S_A5}, 4096')
            A(f'buffer_store_dwordx4 {v(b,4)}, v{V_OA}, {WS}, s{S_A5} offen offset:{1024*(ks&3)} sc1')
```

```python
from asmlib import Asm, v, a, s, r
from layout import *

RS = 21792
R_S, R_M, R_W = 0, 1024, 3328
L_SM = 4 * RS
L_W = 16384
HALF = 73728
L_R1 = L_W + HALF
LDS_BYTES = 163840

SCALE_LOG2E = 0x3E0293EE
import struct, math
def f2u(x):
    return struct.unpack('<I', struct.pack('<f', x))[0]
SCALE_LOG2E = f2u(128 ** -0.5 * math.log2(math.e))

QK = [('qk', t, kb) for kb in range(18) for t in range(2)]
VV = [('v', t, blk) for blk in range(9) for t in range(2)]
WO = [('of', 0, blk) for blk in range(2)] + [('o', p, kb) for p in range(4) for kb in range(4)]


class ChainCfg:
    def __init__(self):
        self.lds_ops = [('qk', 1, kb) for kb in (0, 1, 2, 5, 7, 9, 11, 13, 15)] + \
                       [('v', 1, blk) for blk in (1, 5, 8)] + \
                       [('o', 0, 0), ('o', 0, 3), ('o', 1, 2), ('o', 2, 1), ('o', 3, 0), ('o', 3, 3)]
        self.na = 5
        self.nwb = 2
        self.nqb = 3
        self.stamps = False
        self.norearm = False
        self.nsteps = 64
        self.kv_sc1 = False
        self.x_nokv = False
        self.x_bar = True
        self.x_nost = False
        self.x_nowarm = False
        self.warm3 = True
        self.wdist = 0
        self.x_lat = False
        self.warm0 = True
        self.pts = ('m', 'b1', 'b2', 'wo', 'red')
        self.epoch = True
        self.mrepoll = True
        self.rearm_sm = False
        self.pp_r = False
        self.pp_m = False
        self.pp_rw = 3
        self.pp_mw = 2
        self.prog_late = False
        self.km_late = True
        self.vm_early = False
        self.prog = False
        self.fused = False


S_H, S_W, S_STEP, S_BUD, S_T0 = 3, 4, 5, 6, 7
SRD_WS, SRD_X = 8, 12
S_P0, S_P1 = 16, 18
S_MCUR, S_MNXT, S_MTHD = 20, 21, 22
S_PART, S_KOFF, S_VOFF, S_KMOFF, S_VMOFF = 23, 24, 25, 26, 27
S_T1, S_T2, S_T3, S_T4 = 28, 29, 30, 31
S_MLO, S_MHI, S_MSM = 32, 34, 36
S_SC = 38
S_TILE = 39
S_ISRED = 40
S_FAST = 41
S_DBG = 44
S_TS = 48
S_STAMP = 50
S_T5, S_T6 = 52, 53
S_WOFF, S_MP, S_PDELTA = 42, 43, 54
S_EPO = 55
S_MK = 76
S_RDY, S_NEED = 85, 86
DBG_KV, DBG_H = 16, 48
DBG_QB, DBG_PROG, DBG_ATT, DBG_LN = 80, 112, 176, 240

V_TID = 0
V_IDX, V_MA0, V_MAF, V_WL, V_L16, V_SMW, V_SMR, V_OW = 1, 2, 3, 4, 5, 6, 7, 8
V_KA, V_VA, V_PUBD, V_PUBF, V_RL, V_RP, V_KM, V_VM, V_R1 = 9, 10, 11, 12, 13, 14, 15, 16, 17
V_SEL = 18
KS = 20
VS = 20
V_DUM = 0
T = 40
POOL = list(range(28, 80))
NWORK = 80
OOB = 0x80000000


def kvpoll(A, cfg, name, tmp):
    ok = A.new_label(f'{name}_kvok')
    pl = A.new_label(f'{name}_kvp')
    A(f'''
    s_cmp_lt_u32 s{S_NEED}, s{S_RDY}
    s_cbranch_scc1 {ok}
    ''')
    A.label(pl)
    A(f'''
    v_lshrrev_b32 {tmp}, 2, v{V_L16}
    buffer_load_dword {tmp}, {tmp}, s[{S_DBG}:{S_DBG+3}], 0 offen offset:{DBG_KV} sc1
    s_waitcnt vmcnt(0)
    v_cmp_le_u32 vcc, 32, {tmp}
    s_and_b32 s{S_RDY}, vcc_lo, 0xff
    s_not_b32 s{S_RDY}, s{S_RDY}
    s_ff1_i32_b32 s{S_RDY}, s{S_RDY}
    s_sub_u32 s{S_BUD}, s{S_BUD}, 1
    s_cbranch_scc1 {name}_exit
    s_cmp_lt_u32 s{S_NEED}, s{S_RDY}
    s_cbranch_scc1 {ok}
    s_sleep 8
    s_branch {pl}
    ''')
    A.label(ok)


def slot_reg(i):
    return NWORK + 8 * i


def emit_chain(A: Asm, cfg: ChainCfg, name='chain_kernel'):
    L = lambda x: f'{name}_{x}'
    lds_ops = list(cfg.lds_ops)
    assert len(lds_ops) == 18
    A.label(name)
    A(f'''
    s_and_b32 s{S_T0}, s2, 7
    s_cmp_lg_u32 s{S_T0}, 0
    s_cbranch_scc1 {L('worker') if cfg.fused else L('exit')}
    s_lshr_b32 s{S_H}, s2, 3
    s_cmp_ge_u32 s{S_H}, 32
    s_cbranch_scc1 {L('exit')}
    s_load_dwordx2 s[{SRD_WS}:{SRD_WS+1}], s[0:1], {KA_WS}
    s_load_dwordx2 s[{S_DBG}:{S_DBG+1}], s[0:1], {KA_DBG}
    v_lshrrev_b32 v1, 6, v0
    v_readfirstlane_b32 s{S_W}, v1
    v_and_b32 v{V_TID}, 63, v0
    s_mov_b32 s{SRD_WS+2}, {WS_SIZE}
    s_mov_b32 s{SRD_WS+3}, 0x20000
    s_mov_b32 s{S_DBG+2}, 256
    s_mov_b32 s{S_DBG+3}, 0x20000
    s_mov_b32 s{SRD_X+3}, 0x20000
    s_mov_b32 s{S_BUD}, 400000
    s_mov_b32 s{S_MLO}, 0x00ff00ff
    s_mov_b32 s{S_MLO+1}, 0x00ff00ff
    s_mov_b32 s{S_MHI}, 0xff00ff00
    s_mov_b32 s{S_MHI+1}, 0xff00ff00
    s_mov_b32 s{S_MSM}, 0
    s_mov_b32 s{S_MSM+1}, 0x00ff00ff
    s_mov_b32 s{S_SC}, {SCALE_LOG2E:#x}
    ''')
    A(f'''
    s_getreg_b32 s{S_T0}, hwreg(HW_REG_XCC_ID, 0, 4)
    s_lshl_b32 s{S_T0}, 1, s{S_T0}
    s_waitcnt lgkmcnt(0)
    s_cmp_lg_u32 s{S_W}, 0
    s_cbranch_scc1 {L('noatom')}
    s_mov_b64 exec, 1
    v_mov_b32 v2, s{S_T0}
    v_mov_b32 v3, 0
    buffer_atomic_or v2, v3, s[{S_DBG}:{S_DBG+3}], 0 offen sc1
    s_mov_b64 exec, -1
    ''')
    A.label(L('noatom'))
    A(f'''
    s_mul_i32 s{S_T1}, s{S_W}, 2304
    v_lshlrev_b32 v1, 4, v{V_TID}
    v_add_u32 v1, s{S_T1}, v1
    v_lshlrev_b32 v2, 2, v{V_TID}
    v_add_u32 v2, s{S_T1}, v2
    v_mov_b32 v4, -1
    v_mov_b32 v5, -1
    v_mov_b32 v6, -1
    v_mov_b32 v7, -1
    s_mul_i32 s{S_T1}, s{S_H}, 9216
    s_add_u32 s{S_T1}, s{S_T1}, {WS_PART}
    s_add_u32 s{S_T2}, s{S_T1}, {PART_SLOT}
    ''')
    WSB = f's[{SRD_WS}:{SRD_WS+3}]'
    for sr in (S_T1, S_T2):
        A(f'''
        buffer_store_dwordx4 v[4:7], v1, {WSB}, s{sr} offen sc1
        buffer_store_dwordx4 v[4:7], v1, {WSB}, s{sr} offen offset:1024 sc1
        buffer_store_dword v4, v2, {WSB}, s{sr} offen offset:2048 sc1
        ''')
    A(f'''
    s_cmp_ge_u32 s{S_H}, 3
    s_cbranch_scc1 {L('noarm')}
    s_lshl_b32 s{S_T1}, s{S_H}, 14
    s_add_u32 s{S_T1}, s{S_T1}, {WS_MEM}
    buffer_store_dwordx4 v[4:7], v1, {WSB}, s{S_T1} offen sc1
    buffer_store_dwordx4 v[4:7], v1, {WSB}, s{S_T1} offen offset:1024 sc1
    buffer_store_dword v4, v2, {WSB}, s{S_T1} offen offset:2048 sc1
    ''')
    A.label(L('noarm'))

    lane = V_TID
    G, C = T + 0, T + 1
    X0, X1, X2, X3 = T + 2, T + 3, T + 4, T + 5
    A(f'''
    v_lshrrev_b32 v{G}, 4, v{lane}
    v_and_b32 v{C}, 15, v{lane}
    ''')

    free_final = list(range(54))
    work_slots = [8 + 8 * i for i in range(9)]
    loc = {}
    early = [op for op in lds_ops if op[0] in ('qk', 'v')]
    n_early = len(early)
    res_early = [op for op in QK + VV if op not in lds_ops]
    for op in res_early:
        loc[op] = slot_reg(free_final.pop(0))
    wo_final = free_final[:]
    assert len(wo_final) == n_early
    park_free = list(work_slots) + [slot_reg(i) for i in wo_final]
    for op in early:
        loc[op] = park_free.pop(0)
    assert len(park_free) == 9
    PA, PB, PC, PD, PE, PF, PG = 1, 2, 3, 4, 5, 6, 7

    def stage_qkv(ka_off, lds_base, row0, nrows, fmode, mat):
        A(f'''
        s_load_dwordx2 s[{SRD_X}:{SRD_X+1}], s[0:1], {ka_off}
        s_mov_b32 s{SRD_X+2}, {576*8192}
        v_lshrrev_b32 v{PA}, 4, v{lane}
        v_lshlrev_b32 v{PA}, 13, v{PA}
        v_and_b32 v{PB}, 15, v{lane}
        s_lshl_b32 s{S_T1}, s{S_H}, 8
        s_waitcnt lgkmcnt(0)
        ''')
        fs = sorted(set(fmode(k, mat) for k in range(nrows // 4)))
        regs = {}
        for i, f in enumerate(fs):
            reg = [PC, PD, PE, PF][i]
            regs[f] = reg
            A(f'''
            v_xor_b32 v{reg}, {f}, v{PB}
            v_lshlrev_b32 v{reg}, 4, v{reg}
            v_add_u32 v{reg}, v{reg}, v{PA}
            ''')
        ninst = nrows // 4
        assert ninst % 4 == 0 or True
        nm = ninst // 4
        assert ninst % 4 == 0
        for j in range((nm + 3) // 4):
            guard = (4 * j + 3 >= nm)
            if guard:
                lab = A.new_label(L('stg'))
                A(f'''
                s_add_u32 s{S_T2}, s{S_W}, {4*j}
                s_cmp_ge_u32 s{S_T2}, {nm}
                s_cbranch_scc1 {lab}
                ''')
            A(f'''
            s_add_u32 s{S_T2}, s{S_W}, {4*j}
            s_lshl_b32 s{S_T3}, s{S_T2}, 17
            s_add_u32 s{S_T3}, s{S_T3}, s{S_T1}
            s_add_u32 s{S_T3}, s{S_T3}, {row0*8192}
            s_lshl_b32 s{S_T4}, s{S_T2}, 12
            s_add_u32 s{S_T4}, s{S_T4}, {lds_base}
            ''')
            for i in range(4):
                f = fmode(i, mat)
                A(f'''
                s_mov_b32 m0, s{S_T4}
                buffer_load_dwordx4 v{regs[f]}, s[{SRD_X}:{SRD_X+3}], s{S_T3} offen lds
                ''')
                if i < 3:
                    A(f'''
                    s_add_u32 s{S_T3}, s{S_T3}, {4*8192}
                    s_add_u32 s{S_T4}, s{S_T4}, 1024
                    ''')
            if guard:
                A.label(lab)

    def sync_stage():
        A('s_waitcnt vmcnt(0)')
        A('s_barrier')

    def done_reads():
        A('s_waitcnt lgkmcnt(0)')
        A('s_barrier')

    def tr_fields():
        pass

    fq = lambda k, mat: 8 * (k & 1) + 4 * mat
    for h2 in range(2):
        stage_qkv(KA_WQ, L_W, 288 * h2, 288, fq, 0)
        stage_qkv(KA_WK, L_W + HALF, 288 * h2, 288, fq, 1)
        sync_stage()
        if h2 == 0:
            A(f'''
            s_cmp_lg_u32 s{S_W}, 0
            s_cbranch_scc1 {L('nocnt')}
            s_mov_b64 exec, 1
            v_mov_b32 v2, 1
            v_mov_b32 v3, 0
            buffer_atomic_add v2, v3, s[{S_DBG}:{S_DBG+3}], 0 offen offset:4 sc1
            s_mov_b64 exec, -1
            ''')
            A.label(L('nocnt'))
        A(f'''
        v_lshrrev_b32 v{PA}, 4, v{lane}
        v_and_b32 v{PB}, 1, v{PA}
        v_lshrrev_b32 v{PA}, 1, v{PA}
        v_lshlrev_b32 v{PA}, 3, v{PA}
        v_lshl_add_u32 v{PA}, v{PB}, 2, v{PA}
        v_lshrrev_b32 v{PC}, 2, v{lane}
        v_and_b32 v{PD}, 1, v{PC}
        v_add_u32 v{PA}, v{PA}, v{PD}
        v_lshlrev_b32 v{PA}, 8, v{PA}
        v_bfe_u32 v{PC}, v{lane}, 3, 1
        v_mul_u32_u24 v{PD}, {HALF}, v{PC}
        v_add_u32 v{PA}, v{PA}, v{PD}
        v_lshlrev_b32 v{PB}, 3, v{PB}
        v_lshl_add_u32 v{PB}, v{PC}, 2, v{PB}
        v_and_b32 v{PC}, 3, v{lane}
        s_lshl_b32 s{S_T1}, s{S_W}, 2
        v_add_u32 v{PC}, s{S_T1}, v{PC}
        v_xor_b32 v{PC}, v{PC}, v{PB}
        v_lshl_add_u32 v{PA}, v{PC}, 4, v{PA}
        v_add_u32 v{PA}, {L_W}, v{PA}
        ''')
        for kbl in range(9):
            kb = 9 * h2 + kbl
            if kbl == 5:
                A(f'v_add_u32 v{PA}, {5*8192}, v{PA}')
            ob = (kbl - 5 if kbl >= 5 else kbl) * 8192
            for t in range(2):
                dst = loc[('qk', t, kb)]
                for k in range(4):
                    off = ob + (16 * (k >> 1) + 2 * (k & 1)) * 256 + 8 * t
                    A(f'ds_read_b64_tr_b16 {r(dst + 2*k, 2)}, v{PA} offset:{off}')
        done_reads()

    fv = lambda k, mat: 4 * (k & 3)
    stage_qkv(KA_WV, L_W, 0, 576, fv, 0)
    sync_stage()
    A(f'''
    v_lshrrev_b32 v{PA}, 4, v{lane}
    v_and_b32 v{PB}, 1, v{PA}
    v_lshrrev_b32 v{PA}, 1, v{PA}
    v_lshlrev_b32 v{PA}, 4, v{PA}
    v_lshl_add_u32 v{PA}, v{PB}, 2, v{PA}
    v_bfe_u32 v{PD}, v{lane}, 2, 1
    v_add_u32 v{PA}, v{PA}, v{PD}
    v_bfe_u32 v{PC}, v{lane}, 3, 1
    v_lshl_add_u32 v{PA}, v{PC}, 3, v{PA}
    v_lshlrev_b32 v{PA}, 8, v{PA}
    v_lshl_add_u32 v{PB}, v{PC}, 1, v{PB}
    v_lshlrev_b32 v{PB}, 2, v{PB}
    v_and_b32 v{PC}, 3, v{lane}
    s_lshl_b32 s{S_T1}, s{S_W}, 2
    v_add_u32 v{PC}, s{S_T1}, v{PC}
    v_xor_b32 v{PC}, v{PC}, v{PB}
    v_lshl_add_u32 v{PA}, v{PC}, 4, v{PA}
    v_add_u32 v{PA}, {L_W}, v{PA}
    ''')
    for blk in range(9):
        if blk in (3, 6):
            A(f'v_add_u32 v{PA}, {3*16384}, v{PA}')
        ob = (blk % 3) * 16384
        for t in range(2):
            dst = loc[('v', t, blk)]
            for k in range(4):
                off = ob + (32 * (k >> 1) + 2 * (k & 1)) * 256 + 8 * t
                A(f'ds_read_b64_tr_b16 {r(dst + 2*k, 2)}, v{PA} offset:{off}')
    done_reads()

    A(f'''
    s_load_dwordx2 s[{SRD_X}:{SRD_X+1}], s[0:1], {KA_WO}
    s_mov_b32 s{SRD_X+2}, {32*147456}
    s_mul_i32 s{S_T1}, s{S_H}, 147456
    s_waitcnt lgkmcnt(0)
    ''')
    for j in range(36):
        A(f'''
        s_add_u32 s{S_T2}, s{S_W}, {4*j}
        s_lshl_b32 s{S_T3}, s{S_T2}, 6
        v_add_u32 v{PA}, s{S_T3}, v{lane}
        v_mul_u32_u24 v{PB}, 58255, v{PA}
        v_lshrrev_b32 v{PB}, 22, v{PB}
        v_and_b32 v{PC}, 4, v{PB}
        v_and_b32 v{PB}, 8, v{PB}
        v_lshrrev_b32 v{PB}, 2, v{PB}
        v_or_b32 v{PB}, v{PB}, v{PC}
        v_xor_b32 v{PA}, v{PA}, v{PB}
        v_lshlrev_b32 v{PA}, 4, v{PA}
        s_lshl_b32 s{S_T4}, s{S_T2}, 10
        s_add_u32 s{S_T4}, s{S_T4}, {L_W}
        s_mov_b32 m0, s{S_T4}
        buffer_load_dwordx4 v{PA}, s[{SRD_X}:{SRD_X+3}], s{S_T1} offen lds
        ''')
    sync_stage()
    def wo_addr_dup(p):
        A(f'''
        v_lshrrev_b32 v{PA}, 4, v{lane}
        v_and_b32 v{PB}, 1, v{PA}
        v_lshrrev_b32 v{PA}, 1, v{PA}
        v_lshlrev_b32 v{PC}, 1, v{PA}
        v_lshl_add_u32 v{PC}, v{PB}, 2, v{PC}
        v_lshlrev_b32 v{PA}, 3, v{PA}
        v_lshl_add_u32 v{PA}, v{PB}, 2, v{PA}
        v_bfe_u32 v{PD}, v{lane}, 2, 1
        v_add_u32 v{PA}, v{PA}, v{PD}
        v_mul_u32_u24 v{PA}, 1152, v{PA}
        s_mul_i32 s{S_T1}, s{S_W}, 18
        s_add_u32 s{S_T1}, s{S_T1}, {2 + 4*p}
        v_bfe_u32 v{PD}, v{lane}, 3, 1
        v_lshlrev_b32 v{PD}, 1, v{PD}
        v_bfe_u32 v{PB}, v{lane}, 1, 1
        v_add3_u32 v{PD}, v{PD}, v{PB}, s{S_T1}
        v_xor_b32 v{PD}, v{PD}, v{PC}
        v_lshl_add_u32 v{PA}, v{PD}, 4, v{PA}
        v_and_b32 v{PB}, 1, v{lane}
        v_lshl_add_u32 v{PA}, v{PB}, 3, v{PA}
        v_add_u32 v{PA}, {L_W}, v{PA}
        ''')
    def wo_addr_fold():
        A(f'''
        v_lshrrev_b32 v{PA}, 4, v{lane}
        v_and_b32 v{PB}, 1, v{PA}
        v_lshrrev_b32 v{PA}, 1, v{PA}
        v_lshlrev_b32 v{PA}, 4, v{PA}
        v_lshl_add_u32 v{PA}, v{PB}, 2, v{PA}
        v_bfe_u32 v{PD}, v{lane}, 2, 1
        v_add_u32 v{PA}, v{PA}, v{PD}
        v_bfe_u32 v{PD}, v{lane}, 3, 1
        v_lshl_add_u32 v{PA}, v{PD}, 3, v{PA}
        v_mul_u32_u24 v{PA}, 1152, v{PA}
        v_lshlrev_b32 v{PC}, 1, v{PD}
        v_lshl_add_u32 v{PC}, v{PB}, 2, v{PC}
        s_mul_i32 s{S_T1}, s{S_W}, 18
        v_bfe_u32 v{PB}, v{lane}, 1, 1
        v_add_u32 v{PD}, s{S_T1}, v{PB}
        v_xor_b32 v{PD}, v{PD}, v{PC}
        v_lshl_add_u32 v{PA}, v{PD}, 4, v{PA}
        v_and_b32 v{PB}, 1, v{lane}
        v_lshl_add_u32 v{PA}, v{PB}, 3, v{PA}
        v_add_u32 v{PA}, {L_W}, v{PA}
        ''')

    def wo_read(op):
        dst = loc[op]
        if op[0] == 'o':
            _, p, kb = op
            for k in range(4):
                e = 32 * kb + 16 * (k >> 1) + 2 * (k & 1)
                off = e * 1152
                reg = PA
                if off > 65535:
                    A(f'v_add_u32 v{PE}, {64*1152}, v{PA}')
                    off -= 64 * 1152
                    reg = PE
                A(f'ds_read_b64_tr_b16 {r(dst + 2*k, 2)}, v{reg} offset:{off}')
        else:
            _, _, blk = op
            for k in range(4):
                e = 64 * blk + 32 * (k >> 1) + 2 * (k & 1)
                off = e * 1152
                reg = PA
                if off > 65535:
                    A(f'v_add_u32 v{PE}, {64*1152}, v{PA}')
                    off -= 64 * 1152
                    reg = PE
                A(f'ds_read_b64_tr_b16 {r(dst + 2*k, 2)}, v{reg} offset:{off}')

    D1 = [('of', 0, 1)] + [('o', p, kb) for p in range(4) for kb in (2, 3)]
    D0 = [('of', 0, 0)] + [('o', p, kb) for p in range(4) for kb in (0, 1)]
    wo_final_regs = [slot_reg(i) for i in wo_final]
    free = list(park_free)
    def take(op):
        if op in lds_ops:
            cand = [x for x in free if x not in wo_final_regs] or free
        else:
            cand = [x for x in free if x in wo_final_regs]
        x = cand[0]
        free.remove(x)
        loc[op] = x
    for op in sorted(D1, key=lambda o: o in lds_ops):
        take(op)
    def read_group(ops):
        cur = None
        for op in ops:
            key = ('o', op[1]) if op[0] == 'o' else ('of',)
            if key != cur:
                if op[0] == 'o':
                    wo_addr_dup(op[1])
                else:
                    wo_addr_fold()
                cur = key
            wo_read(op)
    read_group(D1)
    done_reads()
    parked = [op for op in lds_ops if op in loc]
    parked.sort(key=lambda o: (loc[o] not in wo_final_regs))
    first = parked[:9]
    ldsloc = {}
    A(f'''
    s_mul_i32 s{S_T1}, s{S_W}, 18432
    s_add_u32 s{S_T1}, s{S_T1}, {L_W}
    v_lshlrev_b32 v{PG}, 4, v{lane}
    v_add_u32 v{PG}, s{S_T1}, v{PG}
    v_add_u32 v{PF}, {HALF}, v{PG}
    ''')
    def flush(ops, half):
        for i, op in enumerate(ops):
            ldsloc[op] = (half, i * 2048)
            reg = PF if half else PG
            src = loc[op]
            for q in range(2):
                A(f'ds_write_b128 v{reg}, {r(src + 4*q, 4)} offset:{i*2048 + q*1024}')
            free.append(src)
    flush(first, 1)
    for op in sorted(D0, key=lambda o: o in lds_ops):
        take(op)
    A('s_waitcnt lgkmcnt(0)')
    read_group(D0)
    done_reads()
    rest = [op for op in lds_ops if op not in ldsloc]
    assert len(rest) == 9
    A(f'''
    s_mul_i32 s{S_T1}, s{S_W}, {RS}
    s_add_u32 s{S_T1}, s{S_T1}, {R_W}
    v_lshlrev_b32 v{PG}, 4, v{lane}
    v_add_u32 v{PG}, s{S_T1}, v{PG}
    ''')
    flush(rest, 0)
    A('s_waitcnt lgkmcnt(0)')
    for op in QK + VV + WO:
        if op not in lds_ops:
            assert loc[op] >= NWORK, op


    g_, c_, x0, x1, x2, mb = T, T + 1, T + 2, T + 3, T + 4, T + 5
    A(f'''
    v_lshrrev_b32 v{g_}, 4, v{lane}
    v_and_b32 v{c_}, 15, v{lane}
    v_lshlrev_b32 v{V_L16}, 4, v{lane}
    s_mul_i32 s{S_T1}, s{S_W}, {RS}
    v_add_u32 v{V_WL}, s{S_T1}, v{V_L16}
    s_mul_i32 s{S_T1}, s{S_W}, 18432
    s_add_u32 s{S_T1}, s{S_T1}, {L_R1}
    v_add_u32 v{V_R1}, s{S_T1}, v{V_L16}
    v_mov_b32 v{x0}, 0x44444444
    v_mov_b32 v{x1}, 0xeeeeeeee
    v_cmp_gt_u32 vcc, 8, v{c_}
    v_cndmask_b32 v{V_IDX}, v{x1}, v{x0}, vcc
    v_bfe_u32 v{x0}, v{c_}, 1, 2
    v_mul_u32_u24 v{mb}, {RS}, v{x0}
    v_and_b32 v{x0}, 1, v{c_}
    v_mul_u32_u24 v{x0}, 1152, v{x0}
    v_add_u32 v{mb}, v{mb}, v{x0}
    v_add_u32 v{mb}, {R_M}, v{mb}
    v_lshl_add_u32 v{V_MA0}, v{g_}, 4, v{mb}
    v_lshrrev_b32 v{x2}, 3, v{c_}
    v_lshl_add_u32 v{x2}, v{g_}, 1, v{x2}
    v_lshl_add_u32 v{V_MAF}, v{x2}, 4, v{mb}
    s_lshl_b32 s{S_T1}, s{S_W}, 6
    v_add_u32 v{V_OW}, s{S_T1}, v{V_MA0}
    v_and_b32 v{x2}, 1, v{g_}
    v_lshlrev_b32 v{x2}, 5, v{x2}
    v_add_u32 v{x2}, v{x2}, v{c_}
    v_lshlrev_b32 v{x2}, 4, v{x2}
    s_lshl_b32 s{S_T1}, s{S_W}, 2
    s_add_u32 s{S_T1}, s{S_T1}, {L_SM}
    v_add_u32 v{V_SMW}, s{S_T1}, v{x2}
    v_and_b32 v{x2}, 1, v{g_}
    v_lshlrev_b32 v{x2}, 2, v{x2}
    v_lshrrev_b32 v{x1}, 1, v{g_}
    v_lshl_add_u32 v{x2}, v{x1}, 1, v{x2}
    v_lshrrev_b32 v{x1}, 3, v{c_}
    v_add_u32 v{x2}, v{x2}, v{x1}
    v_and_b32 v{x1}, 7, v{c_}
    v_lshl_add_u32 v{x2}, v{x2}, 3, v{x1}
    v_lshlrev_b32 v{x2}, 4, v{x2}
    v_add_u32 v{V_SMR}, {L_SM}, v{x2}
    v_lshrrev_b32 v{x0}, 2, v{c_}
    v_lshlrev_b32 v{x0}, 3, v{x0}
    v_and_b32 v{x1}, 3, v{c_}
    v_add_u32 v{x0}, v{x0}, v{x1}
    v_lshlrev_b32 v{x1}, 4, v{g_}
    v_lshl_add_u32 v{V_KA}, v{x0}, 13, v{x1}
    v_lshl_add_u32 v{V_VA}, v{x0}, 6, v{x1}
    v_lshlrev_b32 v{x1}, 3, v{g_}
    v_lshl_add_u32 v{V_VM}, v{x0}, 5, v{x1}
    v_and_b32 v{x0}, 7, v{c_}
    v_lshlrev_b32 v{x1}, 4, v{g_}
    v_lshl_add_u32 v{V_KM}, v{x0}, 8, v{x1}
    v_mov_b32 v{x1}, {OOB:#x}
    v_cmp_gt_u32 vcc, 8, v{c_}
    v_cndmask_b32 v{V_KM}, v{V_KM}, v{x1}, vcc
    v_and_b32 v{x0}, 1, v{g_}
    v_lshlrev_b32 v{x0}, 3, v{x0}
    v_lshl_add_u32 v{x0}, v{c_}, 4, v{x0}
    v_lshrrev_b32 v{x1}, 1, v{g_}
    v_lshl_add_u32 v{V_PUBF}, v{x1}, {31 if cfg.epoch else 2}, v{x0}
    v_lshl_add_u32 v{V_PUBD}, v{x1}, 8, v{x0}
    v_add_u32 v{V_PUBD}, 256, v{V_PUBD}
    v_lshlrev_b32 v{x0}, 2, v{g_}
    v_sub_u32 v{x0}, v{c_}, v{x0}
    v_mov_b32 v{x1}, 0x3f80
    v_mov_b32 v{x2}, 0x3f800000
    v_cmp_eq_u32 vcc, 0, v{x0}
    v_cndmask_b32 v{V_SEL}, 0, v{x1}, vcc
    v_cmp_eq_u32 vcc, 1, v{x0}
    v_cndmask_b32 v{V_SEL}, v{V_SEL}, v{x2}, vcc
    v_cmp_eq_u32 vcc, 2, v{x0}
    v_cndmask_b32 v{V_SEL+1}, 0, v{x1}, vcc
    v_cmp_eq_u32 vcc, 3, v{x0}
    v_cndmask_b32 v{V_SEL+1}, v{V_SEL+1}, v{x2}, vcc
    ''')
    A(f'''
    s_lshl_b32 s{S_TILE}, s{S_H}, 1
    s_add_u32 s{S_TILE}, s{S_TILE}, s{S_W}
    s_mov_b32 s{S_ISRED}, 1
    s_cmp_lt_u32 s{S_W}, 2
    s_cbranch_scc1 {L('role_done')}
    s_add_u32 s{S_TILE}, s{S_H}, 64
    s_cmp_eq_u32 s{S_W}, 2
    s_cselect_b32 s{S_ISRED}, 1, 0
    s_cmp_lt_u32 s{S_H}, 8
    s_cselect_b32 s{S_ISRED}, s{S_ISRED}, 0
    s_cmp_eq_u32 s{S_ISRED}, 0
    s_cselect_b32 s{S_TILE}, 0, s{S_TILE}
    ''')
    A.label(L('role_done'))
    A(f'''
    v_lshrrev_b32 v{x0}, 3, v{c_}
    v_lshl_add_u32 v{x0}, v{x0}, 4, v{g_}
    v_mul_u32_u24 v{x0}, 9216, v{x0}
    v_and_b32 v{x1}, 7, v{c_}
    v_lshl_add_u32 v{x0}, v{x1}, 4, v{x0}
    s_lshl_b32 s{S_T1}, s{S_TILE}, 7
    v_add_u32 v{V_RL}, s{S_T1}, v{x0}
    v_mul_u32_u24 v{x1}, 1152, v{x1}
    s_lshl_b32 s{S_T1}, s{S_TILE}, 4
    v_add_u32 v{x0}, s{S_T1}, v{x1}
    v_and_b32 v{x1}, 1, v{g_}
    v_lshl_add_u32 v{x0}, v{x1}, 3, v{x0}
    v_lshrrev_b32 v{x1}, 1, v{g_}
    v_lshl_add_u32 v{V_RP}, v{x1}, 2, v{x0}
    v_mov_b32 v{x1}, {OOB:#x}
    v_cmp_lt_u32 vcc, 7, v{c_}
    v_cndmask_b32 v{V_RP}, v{V_RP}, v{x1}, vcc
    s_cmp_eq_u32 s{S_ISRED}, 0
    s_cselect_b32 s{S_T1}, {OOB:#x}, 0
    v_or_b32 v{V_RP}, s{S_T1}, v{V_RP}
    v_or_b32 v{V_RL}, s{S_T1}, v{V_RL}
    ''')
    A(f'''
    s_mov_b32 s{S_STEP}, 0
    s_mov_b32 s{S_EPO}, 0
    s_mov_b32 s{S_MCUR}, {WS_MEM}
    s_mov_b32 s{S_MNXT}, {WS_MEM + MEM_SLOT}
    s_mov_b32 s{S_MTHD}, {WS_MEM + 2*MEM_SLOT}
    s_mul_i32 s{S_WOFF}, s{S_W}, {(2304 - RS) & 0xffffffff:#x}
    s_mul_i32 s{S_PART}, s{S_H}, 9216
    s_mul_i32 s{S_T1}, s{S_W}, 2304
    s_add_u32 s{S_PART}, s{S_PART}, s{S_T1}
    s_add_u32 s{S_PART}, s{S_PART}, {WS_PART}
    s_mov_b32 s{S_T5}, {WS_PART}
    s_mov_b32 s{S_PDELTA}, {PART_SLOT}
    s_lshl_b32 s{S_KOFF}, s{S_H}, 8
    s_lshl_b32 s{S_T1}, s{S_W}, 6
    s_add_u32 s{S_KOFF}, s{S_KOFF}, s{S_T1}
    s_add_u32 s{S_KOFF}, s{S_KOFF}, {WS_K}
    s_lshl_b32 s{S_VOFF}, s{S_H}, 13
    s_lshl_b32 s{S_T1}, s{S_W}, 11
    s_add_u32 s{S_VOFF}, s{S_VOFF}, s{S_T1}
    s_add_u32 s{S_VOFF}, s{S_VOFF}, {WS_VT}
    s_lshl_b32 s{S_KMOFF}, s{S_H}, 11
    s_lshl_b32 s{S_T1}, s{S_W}, 6
    s_add_u32 s{S_KMOFF}, s{S_KMOFF}, s{S_T1}
    s_add_u32 s{S_KMOFF}, s{S_KMOFF}, {WS_KM}
    s_lshl_b32 s{S_VMOFF}, s{S_H}, 12
    s_lshl_b32 s{S_T1}, s{S_W}, 10
    s_add_u32 s{S_VMOFF}, s{S_VMOFF}, s{S_T1}
    s_add_u32 s{S_VMOFF}, s{S_VMOFF}, {WS_VM}
    ''')

    SKV = ' sc1' if cfg.fused else ''

    def k_prefetch():
        A(f'''
        s_add_u32 s{S_T1}, s{S_KOFF}, {4*8192}
        buffer_load_dwordx4 {v(KS,4)}, v{V_KA}, s[{SRD_WS}:{SRD_WS+3}], s{S_KOFF} offen{SKV}
        buffer_load_dwordx4 {v(KS+4,4)}, v{V_KA}, s[{SRD_WS}:{SRD_WS+3}], s{S_T1} offen{SKV}
        s_add_u32 s{S_KOFF}, s{S_KOFF}, {32*8192}
        ''')

    def v_load():
        A(f'''
        buffer_load_dwordx4 {v(VS,4)}, v{V_VA}, s[{SRD_WS}:{SRD_WS+3}], s{S_VOFF} offen{SKV}
        buffer_load_dwordx4 {v(VS+4,4)}, v{V_VA}, s[{SRD_WS}:{SRD_WS+3}], s{S_VOFF} offen offset:256{SKV}
        s_add_u32 s{S_VOFF}, s{S_VOFF}, 262144
        ''')

    def v_warm():
        A(f'''
        buffer_load_dword v{V_DUM}, v{V_VA}, s[{SRD_WS}:{SRD_WS+3}], s{S_VOFF} offen
        buffer_load_dword v{V_DUM}, v{V_VA}, s[{SRD_WS}:{SRD_WS+3}], s{S_VOFF} offen offset:256
        ''', tag='dummy')
    if cfg.fused:
        A(f's_mov_b32 s{S_RDY}, 0')
        A(f's_mov_b32 s{S_NEED}, 0')
        kvpoll(A, cfg, name, f'v{T+2}')
    k_prefetch()
    A(f'''
    s_load_dwordx2 s[{SRD_X}:{SRD_X+1}], s[0:1], {KA_MEM0}
    s_mov_b32 s{SRD_X+2}, 9216
    ''')
    lab = L('xcc_poll')
    A.label(lab)
    A(f'''
    v_mov_b32 v{T+2}, 0
    buffer_load_dwordx2 {v(T+14,2)}, v{T+2}, s[{S_DBG}:{S_DBG+3}], 0 offen sc1
    s_waitcnt vmcnt(0) lgkmcnt(0)
    v_readfirstlane_b32 s{S_T1}, v{T+15}
    v_readfirstlane_b32 s{S_T2}, v{T+14}
    s_sub_u32 s{S_BUD}, s{S_BUD}, 1
    s_cmp_eq_u32 s{S_BUD}, 0
    s_cbranch_scc1 {L('exit')}
    s_cmp_lt_u32 s{S_T1}, 32
    s_cbranch_scc1 {lab}
    s_bcnt1_i32_b32 s{S_T2}, s{S_T2}
    s_cmp_eq_u32 s{S_T2}, 1
    s_cbranch_scc0 {name}_slow_pre
    ''')
    env = dict(loc=loc, ldsloc=ldsloc, lds_ops=lds_ops, k_prefetch=k_prefetch, v_load=v_load, v_warm=v_warm)
    for variant in ('fast', 'slow'):
        emit_loop(A, cfg, name, variant, env)
    A.label(L('exit'))
    A('s_endpgm')
    return env


def emit_loop(A, cfg, name, variant, env):
    L = lambda x: f'{name}_{variant}_{x}'
    SC = '' if variant == 'fast' else ' sc1'
    SCKV = ' sc1' if cfg.kv_sc1 else ''
    loc, ldsloc, lds_ops = env['loc'], env['ldsloc'], env['lds_ops']
    WS = f's[{SRD_WS}:{SRD_WS+3}]'
    idx = v(V_IDX)
    stamp_i = [0]
    ED = 1

    def stamp(nm='x'):
        if not cfg.stamps or variant != 'fast':
            return
        if nm not in cfg.pts:
            return
        i = stamp_i[0]
        stamp_i[0] += 1
        assert i < 7
        A(f's_memtime s[{56+2*i}:{57+2*i}]', tag='stamp')

    def lds_read(op, nm):
        reg, off = ldsloc[op]
        base = V_R1 if reg else V_WL
        if not reg:
            off += R_W
        A(f'ds_read_b128 %{nm}:4, v{base} offset:{off}')
        A(f'ds_read_b128 %{nm}+4:4, v{base} offset:{off+1024}')

    def zero(nm, n):
        for i in range(0, n, 2):
            A(f'v_mov_b64 %{nm}+{i}:2, 0')

    class Stream:
        def __init__(self, ops, pre):
            self.ops = ops
            self.lds = [o[0] for o in ops if o[0] in lds_ops]
            self.pre = pre
            self.issued = 0
            self.pos = 0

        def bname(self, op):
            return f'{self.pre}{self.lds.index(op)}'

        def read_next(self):
            if self.issued < len(self.lds):
                op = self.lds[self.issued]
                lds_read(op, self.bname(op))
                self.issued += 1

        def mf(self, after=None):
            op, acc, an = self.ops[self.pos]
            self.pos += 1
            if op in lds_ops:
                b = f'%{self.bname(op)}:8'
            else:
                b = r(loc[op], 8)
            A(f'v_smfmac_f32_16x16x64_bf16 %{acc}:4, %{an}:4, {b}, {idx}')
            if op in lds_ops:
                self.read_next()

        def done(self):
            return self.pos >= len(self.ops)

    qk = Stream([(('qk', t, kb), f'qk{t}', f'qa{kb}') for kb in range(18) for t in range(2)], 'qb')
    vv = Stream([(('v', t, blk), f'vc{t}', f'va{blk}') for blk in range(9) for t in range(2)], 'vb')

    def qk_pre():
        qk.issued = 0
        for i in range(cfg.nqb):
            qk.read_next()

    def warm(kadd, vadd):
        if cfg.fused:
            A(f'''
            s_add_u32 s{S_NEED}, s{S_STEP}, 1
            s_lshr_b32 s{S_NEED}, s{S_NEED}, 3
            s_min_u32 s{S_NEED}, s{S_NEED}, 7
            ''')
            kvpoll(A, cfg, name, '%wk')
        A(f'''
        s_cmp_eq_u32 s{S_W}, 3
        s_cselect_b32 s{S_T4}, 0, {OOB:#x}
        {f's_cmp_eq_u32 s{S_STEP}, {cfg.nsteps-1}' if cfg.fused else ''}
        {f's_cselect_b32 s{S_T4}, {OOB:#x}, s{S_T4}' if cfg.fused else ''}
        v_lshrrev_b32 %wk, 5, v{V_L16}
        v_lshlrev_b32 %wk, 13, %wk
        v_and_b32 %wk2, 16, v{V_L16}
        v_lshl_add_u32 %wk, %wk2, 3, %wk
        v_lshlrev_b32 %wv, 3, v{V_L16}
        v_or_b32 %wk, s{S_T4}, %wk
        v_or_b32 %wv, s{S_T4}, %wv
        s_add_u32 s{S_T1}, s{S_KOFF}, {(kadd - 192) & 0xffffffff:#x}
        s_add_u32 s{S_T2}, s{S_VOFF}, {((vadd - 3*2048) & 0xffffffff):#x}
        ''')
        A(f'''
        buffer_load_dword v{V_DUM}, %wk, {WS}, s{S_T1} offen
        buffer_load_dword v{V_DUM}, %wv, {WS}, s{S_T2} offen
        ''', tag='dummy')
        if cfg.x_lat:
            A('s_waitcnt vmcnt(0)')
            stamp('l2')

    def prog_prep(back, guard0):
        A(f'''
        s_sub_u32 s{S_T1}, s{S_STEP}, {back}
        s_and_b32 s{S_T2}, s{S_T1}, 3
        s_lshl_b32 s{S_T2}, s{S_T2}, 3
        s_lshl_b32 s{S_T2}, 1, s{S_T2}
        s_and_b32 s{S_T1}, s{S_T1}, 0xfc
        s_add_u32 s{S_T1}, s{S_T1}, {DBG_PROG}
        s_cmp_eq_u32 s{S_W}, 3
        s_cselect_b32 s{S_T1}, s{S_T1}, 256
        ''')
        if guard0:
            A(f'''
            s_cmp_eq_u32 s{S_STEP}, 0
            s_cselect_b32 s{S_T1}, 256, s{S_T1}
            ''')
        A(f'''
        v_mov_b32 %pg0, s{S_T2}
        v_mov_b32 %pg1, s{S_T1}
        ''')

    def prog_fire():
        A(f'''
        s_mov_b64 exec, 1
        buffer_atomic_add %pg0, %pg1, s[{S_DBG}:{S_DBG+3}], 0 offen sc1
        s_mov_b64 exec, -1
        ''')

    def prog_signal(back, guard0):
        prog_prep(back, guard0)
        prog_fire()

    A.label(L('pre'))
    A(f'''
    s_mul_i32 s{S_T2}, s{S_W}, {RS}
    s_add_u32 s{S_T2}, s{S_T2}, {R_M}
    s_mov_b32 m0, s{S_T2}
    s_mul_i32 s{S_T2}, s{S_W}, 2304
    v_add_u32 %i0, s{S_T2}, v{V_L16}
    v_lshrrev_b32 %i1, 2, v{V_L16}
    v_add_u32 %i1, s{S_T2}, %i1
    buffer_load_dwordx4 %ip:4, %i0, s[{SRD_X}:{SRD_X+3}], 0 offen
    buffer_load_dwordx4 %ip+4:4, %i0, s[{SRD_X}:{SRD_X+3}], 0 offen offset:1024
    buffer_load_dword %ip+8, %i1, s[{SRD_X}:{SRD_X+3}], 0 offen offset:2048
    v_lshrrev_b32 %i0, 2, v{V_L16}
    v_sub_u32 %i1, v{V_WL}, v{V_L16}
    v_add_u32 %i1, %i1, %i0
    ds_write_b128 v{V_WL}, %ip:4 offset:{R_M}
    ds_write_b128 v{V_WL}, %ip+4:4 offset:{R_M+1024}
    ds_write_b32 %i1, %ip+8 offset:{R_M+2048}
    ''')
    if cfg.prog and not cfg.prog_late:
        A('v_mov_b32 %pg0, 0')
        A('v_mov_b32 %pg1, 256')
    qk_pre()
    A(f's_branch {L("mem_ready")}')

    A.label(L('top'))
    qk_pre()
    if cfg.prog and not cfg.prog_late:
        prog_prep(1, False)
    A(f'''
    v_lshrrev_b32 %w4t, 2, v{V_L16}
    v_sub_u32 %w4, v{V_WL}, v{V_L16}
    v_add_u32 %w4, %w4, %w4t
    s_add_u32 s{S_MP}, s{S_MCUR}, s{S_WOFF}
    ''')
    def mloads(masked=False):
        if masked:
            A(f's_mov_b64 exec, s[{S_MK}:{S_MK+1}]')
        A(f'buffer_load_dwordx4 %mp:4, v{V_WL}, {WS}, s{S_MP} offen sc1')
        if masked:
            A(f's_mov_b64 exec, s[{S_MK+2}:{S_MK+3}]')
        A(f'buffer_load_dwordx4 %mp+4:4, v{V_WL}, {WS}, s{S_MP} offen offset:1024 sc1')
        if masked:
            A(f's_mov_b64 exec, s[{S_MK+4}:{S_MK+5}]')
        A(f'buffer_load_dword %mp+8, %w4, {WS}, s{S_MP} offen offset:2048 sc1')
        if masked:
            A('s_mov_b64 exec, -1')
    if not cfg.mrepoll:
        A.label(L('mpoll'))
        mloads()
        A(f'''
        s_sub_u32 s{S_BUD}, s{S_BUD}, 1
        s_cbranch_scc1 {name}_exit
        v_max3_u32 %mc, %mp+0, %mp+1, %mp+2
        v_max3_u32 %mc1, %mp+3, %mp+4, %mp+5
        v_max3_u32 %mc, %mc, %mp+6, %mp+7
        v_max3_u32 %mc, %mc, %mc1, %mp+8
        v_cmp_eq_u32 vcc, -1, %mc
        s_cbranch_vccnz {L('mpoll')}
        ''')
    elif cfg.pp_m:
        assert cfg.x_bar
        stamp('m0')

        def dma(masked):
            if masked:
                A(f's_mov_b64 exec, s[{S_MK}:{S_MK+1}]')
            A(f'buffer_load_dwordx4 v{V_WL}, {WS}, s{S_MP} offen sc1 lds')
            if masked:
                A(f's_mov_b64 exec, s[{S_MK+2}:{S_MK+3}]')
            A(f'buffer_load_dwordx4 v{V_WL}, {WS}, s{S_MP} offen offset:1024 sc1 lds')
            if masked:
                A(f's_mov_b64 exec, s[{S_MK+4}:{S_MK+5}]')
            A(f'buffer_load_dword %w4, {WS}, s{S_MP} offen offset:2048 sc1 lds')
            if masked:
                A('s_mov_b64 exec, -1')
        dma(False)
        for i in range(3):
            A(f's_mov_b64 s[{S_MK+2*i}:{S_MK+2*i+1}], -1')
        A.label(L('mchk'))
        A(f'''
        s_sub_u32 s{S_BUD}, s{S_BUD}, 1
        s_cbranch_scc1 {name}_exit
        s_waitcnt vmcnt({cfg.pp_mw})
        ''')
        dma(True)
        A(f'''
        s_waitcnt vmcnt(3)
        ds_read_b128 %mp:4, v{V_WL} offset:{R_M}
        ds_read_b128 %mp+4:4, v{V_WL} offset:{R_M+1024}
        ds_read_b32 %mp+8, %w4 offset:{R_M+2048}
        v_max3_u32 %mc, %mp+0, %mp+1, %mp+2
        v_max_u32 %mc, %mc, %mp+3
        v_max3_u32 %mc1, %mp+4, %mp+5, %mp+6
        v_max_u32 %mc1, %mc1, %mp+7
        v_max3_u32 %mc2, %mc, %mc1, %mp+8
        v_cmp_eq_u32 vcc, -1, %mc2
        s_cbranch_vccz {L('mok')}
        v_cmp_eq_u32 s[{S_MK}:{S_MK+1}], -1, %mc
        v_cmp_eq_u32 s[{S_MK+2}:{S_MK+3}], -1, %mc1
        v_cmp_eq_u32 s[{S_MK+4}:{S_MK+5}], -1, %mp+8
        s_branch {L('mchk')}
        ''')
        A.label(L('mok'))
        stamp('m2')
        if cfg.pp_r:
            A('_keep %rd:16')
    else:
        stamp('m0')
        A('s_mov_b32 s84, 0')
        mloads()
        A.label(L('mchk'))
        A(f'''
        s_sub_u32 s{S_BUD}, s{S_BUD}, 1
        s_cbranch_scc1 {name}_exit
        v_max3_u32 %mc, %mp+0, %mp+1, %mp+2
        v_max3_u32 %mc1, %mp+4, %mp+5, %mp+6
        v_max_u32 %mc, %mc, %mp+3
        v_max_u32 %mc1, %mc1, %mp+7
        v_max3_u32 %mc2, %mc, %mc1, %mp+8
        v_cmp_eq_u32 vcc, -1, %mc2
        ''')
        if 'm1' in cfg.pts and variant == 'fast' and cfg.stamps:
            lab1 = L('m1skip')
            A(f's_cmp_lg_u32 s84, 0')
            A(f's_cbranch_scc1 {lab1}')
            stamp('m1')
            A('s_mov_b32 s84, 1')
            A.label(lab1)
        A(f'''
        s_cbranch_vccz {L('mok')}
        v_cmp_eq_u32 s[{S_MK}:{S_MK+1}], -1, %mc
        v_cmp_eq_u32 s[{S_MK+2}:{S_MK+3}], -1, %mc1
        v_cmp_eq_u32 s[{S_MK+4}:{S_MK+5}], -1, %mp+8
        ''')
        mloads(True)
        A(f's_branch {L("mchk")}')
        A.label(L('mok'))
        stamp('m2')
    if not cfg.pp_m:
        A(f'''
        ds_write_b128 v{V_WL}, %mp:4 offset:{R_M}
        ds_write_b128 v{V_WL}, %mp+4:4 offset:{R_M+1024}
        ds_write_b32 %w4, %mp+8 offset:{R_M+2048}
        ''')
        if cfg.pp_r:
            A('_keep %rd:16')
    A.label(L('mem_ready'))
    zero('qk0', 4)
    zero('qk1', 4)
    A('s_waitcnt lgkmcnt(0)')
    A('s_barrier')
    if cfg.stamps and variant == 'fast':
        A('s_mov_b64 s[70:71], s[56:57]')
        A(f's_sub_u32 s72, s74, s{S_BUD}')
    stamp('m')
    if cfg.warm0:
        warm(cfg.wdist*262144, (cfg.wdist+1)*262144)
    if cfg.prog and not cfg.prog_late:
        prog_fire()
    def rdA(kb):
        A(f'ds_read_b128 %qa{kb}:4, v{V_MA0} offset:{64*kb}')

    def rdV(blk):
        A(f'ds_read_b128 %va{blk}:4, v{V_MAF} offset:{128*blk}')
    NA = cfg.na
    for kb in range(NA):
        rdA(kb)
    NVA = 3
    vq = 0
    for kb in range(18):
        qk.mf()
        qk.mf()
        if kb + NA < 18:
            rdA(kb + NA)
        elif vq < NVA:
            rdV(vq)
            vq += 1
        if kb == 13:
            zero('vc0', 4)
        if kb == 14:
            zero('vc1', 4)
        if kb == 16:
            vv.read_next()

    def vm(n):
        for _ in range(n):
            if vv.done():
                return
            (o_, t, blk) = vv.ops[vv.pos][0]
            vv.mf()
            if t == 1 and blk + NVA < 9:
                rdV(blk + NVA)
    sch = cfg.vsched if hasattr(cfg, 'vsched') else (2, 2, 2, 4, 8)
    stamp('qk')
    vm(sch[0])
    A(f'''
    v_cvt_pk_bf16_f32 %ta+0, %qk0+0, %qk0+1
    v_cvt_pk_bf16_f32 %ta+1, %qk0+2, %qk0+3
    v_cvt_pk_bf16_f32 %ta+2, %qk1+0, %qk1+1
    v_cvt_pk_bf16_f32 %ta+3, %qk1+2, %qk1+3
    v_mfma_f32_16x16x16_bf16 %t0:4, %ta+0:2, {v(V_SEL,2)}, 0
    v_mfma_f32_16x16x16_bf16 %t1:4, %ta+2:2, {v(V_SEL,2)}, 0
    ''')
    stamp('t1')
    vm(sch[1])
    A(f'''
    v_cvt_pk_bf16_f32 %x+0, %t0+0, %t0+1
    v_cvt_pk_bf16_f32 %x+1, %t0+2, %t0+3
    v_cvt_pk_bf16_f32 %x+2, %t1+0, %t1+1
    v_cvt_pk_bf16_f32 %x+3, %t1+2, %t1+3
    v_mfma_f32_16x16x32_bf16 %s0:4, {v(KS,4)}, %x:4, 0
    v_mfma_f32_16x16x32_bf16 %s1:4, {v(KS+4,4)}, %x:4, 0
    v_mfma_f32_16x16x32_bf16 %smm:4, %x:4, %x:4, 0
    ''')
    def km_store():
        A(f'''
        {'; ' if cfg.x_nost else ''}buffer_store_dwordx4 %x:4, v{V_KM}, {WS}, s{S_KMOFF} offen{SCKV}
        s_add_u32 s{S_KMOFF}, s{S_KMOFF}, 65536
        ''')
    if not cfg.km_late:
        km_store()
    stamp('t2')
    vm(sch[2])
    A(f'''
    s_mov_b64 exec, s[{S_MLO}:{S_MLO+1}]
    ds_write_b128 v{V_WL}, %s0:4
    ds_write_b128 v{V_WL}, %s1:4 offset:128
    s_mov_b64 exec, s[{S_MSM}:{S_MSM+1}]
    ds_write2_b32 v{V_SMW}, %smm+0, %smm+1 offset0:0 offset1:32
    ds_write2_b32 v{V_SMW}, %smm+2, %smm+3 offset0:64 offset1:96
    s_mov_b64 exec, -1
    ''')
    if cfg.x_lat:
        A('s_waitcnt vmcnt(0)')
        stamp('l0')
        env['v_load']()
        A('s_waitcnt vmcnt(0)')
        stamp('l1')
    if not cfg.x_nokv:
        if not cfg.x_lat:
            env['v_load']()
        if cfg.warm3 and not cfg.warm0:
            warm(cfg.wdist*262144, cfg.wdist*262144)
    if cfg.km_late:
        km_store()
    stamp('t3')
    vm(sch[3])
    stamp('t4')
    A('s_waitcnt lgkmcnt(0)')
    A('s_barrier')
    stamp('b1')
    for wq in range(4):
        A(f'ds_read_b128 %r{wq}:4, v{V_L16} offset:{R_S + wq*RS}')
    A(f'ds_read_b128 %rm:4, v{V_SMR}')
    if cfg.rearm_sm:
        A(f'''
        v_mov_b64 %ng+0:2, -1
        v_mov_b64 %ng+2:2, -1
        s_add_u32 s{S_T4}, s{S_T5}, s{S_PDELTA}
        s_add_u32 s{S_T1}, s{S_T4}, {1*4*9216}
        s_add_u32 s{S_T2}, s{S_T4}, {2*4*9216}
        s_add_u32 s{S_T3}, s{S_T4}, {3*4*9216}
        buffer_store_dwordx4 %ng:4, v{V_RL}, {WS}, s{S_T4} offen{SC}
        buffer_store_dwordx4 %ng:4, v{V_RL}, {WS}, s{S_T1} offen{SC}
        buffer_store_dwordx4 %ng:4, v{V_RL}, {WS}, s{S_T2} offen{SC}
        buffer_store_dwordx4 %ng:4, v{V_RL}, {WS}, s{S_T3} offen{SC}
        buffer_store_dword %ng+0, v{V_RP}, {WS}, s{S_MTHD} offen{SC}
        ''')
    vm(sch[4])
    vm(18)

    def vm_cvt():
        A(f'''
        v_cvt_pk_bf16_f32 %cv+0, %vc0+0, %vc0+1
        v_cvt_pk_bf16_f32 %cv+1, %vc0+2, %vc0+3
        v_cvt_pk_bf16_f32 %cv+2, %vc1+0, %vc1+1
        v_cvt_pk_bf16_f32 %cv+3, %vc1+2, %vc1+3
        ''')

    def vm_store():
        A(f'''
        {'; ' if cfg.x_nost else ''}buffer_store_dwordx2 %cv+0:2, v{V_VM}, {WS}, s{S_VMOFF} offen{SCKV}
        {'; ' if cfg.x_nost else ''}buffer_store_dwordx2 %cv+2:2, v{V_VM}, {WS}, s{S_VMOFF} offen offset:128{SCKV}
        s_add_u32 s{S_VMOFF}, s{S_VMOFF}, 131072
        ''')
    if cfg.vm_early:
        vm_cvt()
        vm_store()
    stamp('s1')
    for i in range(4):
        A(f'v_add_f32 %r0+{i}, %r0+{i}, %r1+{i}')
        A(f'v_add_f32 %r2+{i}, %r2+{i}, %r3+{i}')
    for i in range(4):
        A(f'v_add_f32 %r0+{i}, %r0+{i}, %r2+{i}')
    A(f'''
    v_add_f32 %sm, %rm+0, %rm+1
    v_add_f32 %rm+2, %rm+2, %rm+3
    v_add_f32 %sm, %sm, %rm+2
    v_max3_f32 %m, %r0+0, %r0+1, %r0+2
    v_max3_f32 %m, %m, %r0+3, %sm
    v_max_f32_dpp %m, %m, %m row_ror:8 row_mask:0xf bank_mask:0xf
    v_mov_b32 %m2, %m
    v_permlane16_swap_b32 %m, %m2
    v_max_f32 %m, %m, %m2
    v_mov_b32 %m2, %m
    v_permlane32_swap_b32 %m, %m2
    v_max_f32 %m, %m, %m2
    v_mul_f32 %m, s{S_SC}, %m
    ''')
    stamp('s2')
    wo_ops = []
    for blk in range(2):
        wo_ops.append((('of', 0, blk), 'wc4', f'af{blk}'))
    for p in range(4):
        for kb in range(4):
            wo_ops.append((('o', p, kb), f'wc{p}', f'ad{kb}'))
    wo = Stream(wo_ops, 'wb')
    for i in range(4):
        A(f'v_fma_f32 %r0+{i}, %r0+{i}, s{S_SC}, -%m')
    A(f'v_fma_f32 %sm, %sm, s{S_SC}, -%m')
    for i in range(4):
        A(f'v_exp_f32 %r0+{i}, %r0+{i}')
    A(f'v_exp_f32 %sm, %sm')
    if not cfg.vm_early:
        vm_cvt()
    A(f'''
    v_cvt_pk_bf16_f32 %ps+0, %r0+0, %r0+1
    v_cvt_pk_bf16_f32 %ps+1, %r0+2, %r0+3
    v_mov_b32_dpp %u, %sm row_ror:8 row_mask:0xf bank_mask:0xf
    v_mov_b32_dpp %ps+2, %ps+0 row_ror:8 row_mask:0xf bank_mask:0xf
    v_mov_b32_dpp %ps+3, %ps+1 row_ror:8 row_mask:0xf bank_mask:0xf
    v_cvt_pk_bf16_f32 %pm+0, %sm, %u
    v_mfma_f32_16x16x32_bf16 %o0:4, {v(VS,4)}, %ps:4, 0
    v_mfma_f32_16x16x32_bf16 %o1:4, {v(VS+4,4)}, %ps:4, 0
    v_mov_b32 %pm+1, %pm+0
    v_permlane32_swap_b32 %pm+0, %pm+1
    v_mfma_f32_16x16x16_bf16 %o0:4, %cv+0:2, %pm:2, %o0:4
    v_mfma_f32_16x16x16_bf16 %o1:4, %cv+2:2, %pm:2, %o1:4
    ''')
    stamp('s3')
    for i in range(cfg.nwb):
        wo.read_next()
    A(f'''
    v_add_f32 %l, %r0+0, %r0+1
    v_add_f32 %l2, %r0+2, %r0+3
    v_add_f32 %l, %l, %sm
    v_add_f32 %l, %l, %l2
    v_add_f32_dpp %l, %l, %l row_ror:8 row_mask:0xf bank_mask:0xf
    v_mov_b32 %l2, %l
    v_permlane16_swap_b32 %l, %l2
    v_add_f32 %l, %l, %l2
    v_mov_b32 %l2, %l
    v_permlane32_swap_b32 %l, %l2
    v_add_f32 %l, %l, %l2
    v_rcp_f32 %l, %l
    ''')
    if not cfg.vm_early:
        vm_store()
    A(f'''
    s_cmp_eq_u32 s{S_STEP}, {cfg.nsteps-1}
    s_cbranch_scc1 {L('fin') if cfg.prog else name + '_exit'}
    ''')
    stamp('s4')
    for o in ('o0', 'o1'):
        for i in range(4):
            A(f'v_mul_f32 %{o}+{i}, %{o}+{i}, %l')
    A(f'''
    v_cvt_pk_bf16_f32 %op+0, %o0+0, %o0+1
    v_cvt_pk_bf16_f32 %op+1, %o0+2, %o0+3
    v_cvt_pk_bf16_f32 %op+2, %o1+0, %o1+1
    v_cvt_pk_bf16_f32 %op+3, %o1+2, %o1+3
    s_mov_b64 exec, s[{S_MLO}:{S_MLO+1}]
    ds_write_b128 v{V_OW}, %op:4
    s_mov_b64 exec, -1
    ''')
    if not cfg.x_nokv:
        env['k_prefetch']()
        if not cfg.x_nowarm and not cfg.warm3:
            env['v_warm']()
    zero('wc4', 4)
    zero('wc0', 4)
    zero('wc1', 4)
    A('s_waitcnt lgkmcnt(0)')
    A('s_barrier')
    stamp('b2')
    for blk in range(2):
        A(f'ds_read_b128 %af{blk}:4, v{V_MAF} offset:{128*blk}')
    for kb in range(4):
        A(f'ds_read_b128 %ad{kb}:4, v{V_MA0} offset:{64*kb}')

    def pub(p):
        A(f'''
        v_cvt_pk_bf16_f32 %pu{p}+0, %wc{p}+0, %wc{p}+1
        v_cvt_pk_bf16_f32 %pu{p}+1, %wc{p}+2, %wc{p}+3
        {f'v_bfi_b32 %pu{p}+{ED}, 1, s{S_EPO}, %pu{p}+{ED}' if cfg.epoch else ''}
        buffer_store_dwordx2 %pu{p}:2, v{V_PUBD}, {WS}, s{S_PART} offen offset:{512*p}{SC}
        ''')
    wo.mf()
    wo.mf()
    stamp('w1')
    for p in range(4):
        for kb in range(4):
            wo.mf()
            if p == 0 and kb == 3:
                A(f'''
                v_permlane32_swap_b32 %wc4+0, %wc4+2
                v_permlane32_swap_b32 %wc4+1, %wc4+3
                ''')
            if p == 1 and kb == 0:
                A(f'''
                v_add_f32 %wc4+0, %wc4+0, %wc4+2
                v_add_f32 %wc4+1, %wc4+1, %wc4+3
                ''')
            if p == 1 and kb == 1:
                if cfg.epoch:
                    A(f'''
                    v_cvt_pk_bf16_f32 %puf+0, %wc4+0, %wc4+1
                    v_mov_b32 %puf+1, %puf+0
                    v_permlane32_swap_b32 %puf+0, %puf+1
                    v_bfi_b32 %puf+{ED}, 1, s{S_EPO}, %puf+{ED}
                    buffer_store_dwordx2 %puf:2, v{V_PUBF}, {WS}, s{S_PART} offen{SC}
                    ''')
                else:
                    A(f'''
                    v_cvt_pk_bf16_f32 %puf, %wc4+0, %wc4+1
                    buffer_store_dword %puf, v{V_PUBF}, {WS}, s{S_PART} offen{SC}
                    ''')
            if p == 1 and kb == 2:
                zero('wc2', 4)
            if kb == 3 and p >= 1:
                pub(p - 1)
            if kb == 1 and p == 2:
                zero('wc3', 4)
    pub(3)
    stamp('wo')
    if cfg.stamps and variant == 'fast':
        A(f's_mov_b32 s75, s{S_BUD}')
    if cfg.prog and cfg.prog_late:
        A(f'''
        s_cmp_eq_u32 s{S_W}, 3
        s_cbranch_scc0 {L('w012')}
        ''')
        prog_signal(1, True)
        A(f's_branch {L("nored")}')
        A.label(L('w012'))
    A(f'''
    s_cmp_eq_u32 s{S_ISRED}, 0
    s_cbranch_scc1 {L('nored')}
    s_add_u32 s{S_T1}, s{S_T5}, {1*4*9216}
    s_add_u32 s{S_T2}, s{S_T5}, {2*4*9216}
    s_add_u32 s{S_T3}, s{S_T5}, {3*4*9216}
    ''')
    so = [S_T5, S_T1, S_T2, S_T3]

    def rloads():
        for i in range(4):
            A(f'buffer_load_dwordx4 %rd+{4*i}:4, v{V_RL}, {WS}, s{so[i]} offen sc1')
    stamp('r0')
    A('s_mov_b32 s84, 0')
    rloads()
    A(f'''
    v_bfe_u32 %q0, v{V_L16}, 4, 1
    v_bfe_u32 %q1, v{V_L16}, 5, 2
    v_lshlrev_b32 %q0, 4, %q0
    v_mov_b32 %q2, 0x3f80
    v_lshlrev_b32 %q2, %q0, %q2
    ''')
    for i in range(4):
        A(f'v_cmp_eq_u32 vcc, {i}, %q1')
        A(f'v_cndmask_b32 %sr+{i}, 0, %q2, vcc')
    if not cfg.mrepoll:
        assert not cfg.epoch
        A(f's_branch {L("rchk")}')
        A.label(L('rpoll'))
        rloads()
        A.label(L('rchk'))
        A(f'''
        s_sub_u32 s{S_BUD}, s{S_BUD}, 1
        s_cbranch_scc1 {name}_exit
        v_max3_u32 %c0, %rd+0, %rd+1, %rd+2
        v_max3_u32 %c1, %rd+3, %rd+4, %rd+5
        v_max3_u32 %c0, %c0, %rd+6, %rd+7
        v_max3_u32 %c1, %c1, %rd+8, %rd+9
        v_max3_u32 %c0, %c0, %rd+10, %rd+11
        v_max3_u32 %c1, %c1, %rd+12, %rd+13
        v_max3_u32 %c0, %c0, %rd+14, %rd+15
        v_max_u32 %c0, %c0, %c1
        v_cmp_eq_u32 vcc, -1, %c0
        s_cbranch_vccnz {L('rpoll')}
        ''')
    elif cfg.pp_r:
        assert cfg.epoch
        for i in range(4):
            A(f's_mov_b64 s[{S_MK+2*i}:{S_MK+2*i+1}], -1')
        A.label(L('rchk'))
        A(f'''
        s_sub_u32 s{S_BUD}, s{S_BUD}, 1
        s_cbranch_scc1 {name}_exit
        s_waitcnt vmcnt({cfg.pp_rw})
        ''')
        for i in range(4):
            A(f's_mov_b64 exec, s[{S_MK+2*i}:{S_MK+2*i+1}]')
            A(f'buffer_load_dwordx4 %rd+{4*i}:4, v{V_RL}, {WS}, s{so[i]} offen sc1', tag='nowait')
        A('s_mov_b64 exec, -1')
        A('s_waitcnt vmcnt(4)')
        for i in range(4):
            A(f'v_bitop3_b32 %ck+{i}, %rd+{4*i+1}, %rd+{4*i+3}, s{S_EPO} bitop3:0x7e', tag='nowait')
        A(f'''
        v_or3_b32 %c0, %ck+0, %ck+1, %ck+2
        v_or_b32 %c0, %c0, %ck+3
        v_and_b32 %c0, 1, %c0
        v_cmp_ne_u32 vcc, 0, %c0
        s_cbranch_vccz {L("rok")}
        ''')
        for i in range(4):
            A(f'v_and_b32 %ck+{i}, 1, %ck+{i}')
            A(f'v_cmp_ne_u32 s[{S_MK+2*i}:{S_MK+2*i+1}], 0, %ck+{i}')
        A(f's_branch {L("rchk")}')
        A.label(L('rok'))
        stamp('r2')
    else:
        A.label(L('rchk'))
        A(f'''
        s_sub_u32 s{S_BUD}, s{S_BUD}, 1
        s_cbranch_scc1 {name}_exit
        ''')
        for i in range(4):
            if cfg.epoch:
                A(f'v_bitop3_b32 %ck+{i}, %rd+{4*i+1}, %rd+{4*i+3}, s{S_EPO} bitop3:0x7e')
            else:
                A(f'v_max3_u32 %ck+{i}, %rd+{4*i}, %rd+{4*i+1}, %rd+{4*i+2}')
                A(f'v_max_u32 %ck+{i}, %ck+{i}, %rd+{4*i+3}')
        if cfg.epoch:
            A(f'''
            v_or3_b32 %c0, %ck+0, %ck+1, %ck+2
            v_or_b32 %c0, %c0, %ck+3
            v_and_b32 %c0, 1, %c0
            v_cmp_ne_u32 vcc, 0, %c0
            ''')
        else:
            A(f'''
            v_max3_u32 %c0, %ck+0, %ck+1, %ck+2
            v_max_u32 %c0, %c0, %ck+3
            v_cmp_eq_u32 vcc, -1, %c0
            ''')
        if 'r1' in cfg.pts and variant == 'fast' and cfg.stamps:
            lab1 = L('r1skip')
            A(f's_cmp_lg_u32 s84, 0')
            A(f's_cbranch_scc1 {lab1}')
            stamp('r1')
            A('s_mov_b32 s84, 1')
            A.label(lab1)
        A(f's_cbranch_vccz {L("rok")}')
        for i in range(4):
            if cfg.epoch:
                A(f'v_and_b32 %ck+{i}, 1, %ck+{i}')
                A(f'v_cmp_ne_u32 s[{S_MK+2*i}:{S_MK+2*i+1}], 0, %ck+{i}')
            else:
                A(f'v_cmp_eq_u32 s[{S_MK+2*i}:{S_MK+2*i+1}], -1, %ck+{i}')
        for i in range(4):
            A(f's_mov_b64 exec, s[{S_MK+2*i}:{S_MK+2*i+1}]')
            A(f'buffer_load_dwordx4 %rd+{4*i}:4, v{V_RL}, {WS}, s{so[i]} offen sc1')
        A('s_mov_b64 exec, -1')
        A(f's_branch {L("rchk")}')
        A.label(L('rok'))
        stamp('r2')
    A(f'''
    v_mfma_f32_16x16x32_bf16 %ra:4, %rd+0:4, %sr:4, 0
    v_mfma_f32_16x16x32_bf16 %ra:4, %rd+4:4, %sr:4, %ra:4
    v_mfma_f32_16x16x32_bf16 %ra:4, %rd+8:4, %sr:4, %ra:4
    v_mfma_f32_16x16x32_bf16 %ra:4, %rd+12:4, %sr:4, %ra:4
    ''', tag='nowait' if cfg.pp_r else None)
    A(f'''
    v_mov_b64 %neg+0:2, -1
    v_mov_b64 %neg+2:2, -1
    v_permlane32_swap_b32 %ra+0, %ra+2
    v_permlane32_swap_b32 %ra+1, %ra+3
    v_add_f32 %ra+0, %ra+0, %ra+2
    v_add_f32 %ra+1, %ra+1, %ra+3
    v_cvt_pk_bf16_f32 %c0, %ra+0, %ra+1
    buffer_store_dword %c0, v{V_RP}, {WS}, s{S_MNXT} offen{SC}
    ''')
    stamp('r3')
    if not cfg.rearm_sm:
        A(f'buffer_store_dword %neg+0, v{V_RP}, {WS}, s{S_MCUR} offen{SC}')
    if not cfg.norearm and not cfg.rearm_sm and not cfg.epoch:
        for i in range(4):
            A(f'buffer_store_dwordx4 %neg:4, v{V_RL}, {WS}, s{so[i]} offen{SC}')
    A.label(L('nored'))
    if cfg.x_bar:
        A('s_barrier')
    stamp('red')
    if cfg.stamps and variant == 'fast':
        A(f's_sub_u32 s73, s75, s{S_BUD}')
        A(f's_mov_b32 s74, s{S_BUD}')
    A(f'''
    s_mov_b32 s{S_T1}, s{S_MCUR}
    s_mov_b32 s{S_MCUR}, s{S_MNXT}
    s_mov_b32 s{S_MNXT}, s{S_MTHD}
    s_mov_b32 s{S_MTHD}, s{S_T1}
    s_add_u32 s{S_PART}, s{S_PART}, s{S_PDELTA}
    s_add_u32 s{S_T5}, s{S_T5}, s{S_PDELTA}
    s_sub_u32 s{S_PDELTA}, 0, s{S_PDELTA}
    s_add_u32 s{S_STEP}, s{S_STEP}, 1
    s_bfe_u32 s{S_EPO}, s{S_STEP}, 0x10001
    ''')
    if cfg.stamps and variant == 'fast':
        lab = L('nost')
        A(f'''
        s_cmp_lg_u32 s{S_STEP}, 20
        s_cbranch_scc1 {lab}
        s_waitcnt lgkmcnt(0)
        s_lshl_b32 s{S_T1}, s{S_H}, 2
        s_add_u32 s{S_T1}, s{S_T1}, s{S_W}
        s_lshl_b32 s{S_T1}, s{S_T1}, 7
        s_add_u32 s{S_T1}, s{S_T1}, {WS_STAMP}
        v_mov_b32 %z0, 0
        ''')
        for i in range(9):
            A(f'v_mov_b32 %z1+0, s{56+2*i}')
            A(f'v_mov_b32 %z1+1, s{57+2*i}')
            A(f'buffer_store_dwordx2 %z1:2, %z0, {WS}, s{S_T1} offen offset:{8*i}')
            A('s_waitcnt vmcnt(0)')
        A.label(lab)
    A(f's_branch {L("top")}')
    if cfg.prog:
        A.label(L('fin'))
        A('s_waitcnt vmcnt(0)')
        A('s_barrier')
        A(f'''
        s_cmp_lg_u32 s{S_W}, 3
        s_cbranch_scc1 {name}_exit
        s_mov_b32 s{S_T2}, {(1 << (8 * ((cfg.nsteps-1) & 3))) + ((1 << (8 * ((cfg.nsteps-2) & 3))) if cfg.prog_late else 0):#x}
        s_mov_b32 s{S_T1}, {DBG_PROG + ((cfg.nsteps-1) & 0xfc)}
        v_mov_b32 %pf0, s{S_T2}
        v_mov_b32 %pf1, s{S_T1}
        s_mov_b64 exec, 1
        buffer_atomic_add %pf0, %pf1, s[{S_DBG}:{S_DBG+3}], 0 offen sc1
        s_mov_b64 exec, -1
        s_branch {name}_exit
        ''')
    A.label(L('end'))
    A.regalloc(L('pre'), L('end'), POOL, verbose=True, outer=(L('top'),), wrap=(('rd',) if cfg.pp_r else ()))
```

```python
from asmlib import Asm, v, a, s, r
from layout import *
import gemm as G
from gemm import GemmCfg, f2u
import kernels as K
import attn as AT
import chain2
from chain2 import emit_chain, ChainCfg, DBG_KV, DBG_H, DBG_QB, DBG_PROG, DBG_ATT

W_G, W_I, W_R, W_CB, W_RB, W_SIG, W_BUD, W_T = 88, 89, 90, 91, 92, 93, 94, 95
SRD_D = 96
W_VAL, W_T2 = 100, 101

C1S = GemmCfg(4, 4, 9, 2, 1152, 'rm', sc1=True)
C2S = GemmCfg(3, 1, 72, 4, 9216, 'base', sc1=True)
NSET = 7


class FCfg:
    def __init__(self):
        self.sleep_att = 8
        self.sleep_out = 8
        self.sleep_far = 32
        self.no_attn = False
        self.no_outp = False


def signal(A, lab):
    A(f'''
    s_waitcnt vmcnt(0)
    s_barrier
    s_cmp_lg_u32 s{G.S_WAVE}, 0
    s_cbranch_scc1 {lab}
    s_mov_b64 exec, 1
    v_mov_b32 v13, s{W_VAL}
    v_mov_b32 v14, s{W_SIG}
    buffer_atomic_add v13, v14, s[{SRD_D}:{SRD_D+3}], 0 offen sc1
    s_mov_b64 exec, -1
    ''')
    A.label(lab)


def acquire(A, lab, s_off, count, s_shift=None, mask=None, inv=False, sleep=32):
    A(f'''
    s_cmp_lg_u32 s{G.S_WAVE}, 0
    s_cbranch_scc1 {lab}_go
    v_mov_b32 v14, s{s_off}
    ''')
    A.label(lab + '_poll')
    A(f'''
    buffer_load_dword v13, v14, s[{SRD_D}:{SRD_D+3}], 0 offen sc1
    s_waitcnt vmcnt(0)
    v_readfirstlane_b32 s{W_T}, v13
    ''')
    if s_shift is not None:
        sh = str(s_shift[1]) if isinstance(s_shift, tuple) else f's{s_shift}'
        A(f's_lshr_b32 s{W_T}, s{W_T}, {sh}')
    if mask is not None:
        A(f's_and_b32 s{W_T}, s{W_T}, {mask:#x}')
    A(f'''
    s_sub_u32 s{W_BUD}, s{W_BUD}, 1
    s_cbranch_scc1 {lab}_got
    s_cmp_ge_u32 s{W_T}, {count}
    s_cbranch_scc1 {lab}_got
    s_sleep {sleep}
    s_branch {lab}_poll
    ''')
    A.label(lab + '_got')
    if inv:
        A(f'''
        buffer_inv sc1
        s_waitcnt vmcnt(0)
        ''')
    A.label(lab + '_go')
    A('s_barrier')


def emit_outp_set(A, name, fc):
    L = lambda x: f'{name}_{x}'
    SRD_W, SRD_O = G.SRD_W, G.SRD_O
    WS = f's[{G.SRD_WS}:{G.SRD_WS+3}]'
    S_C2, S_TASK, S_SEG, S_RBC, S_SO, S_T1, S_T2, S_PAR, S_SH, S_OFF, S_BO, S_OO = range(16, 28)
    V_O, V_B, V_OUT, V_LW, V_LR, V_DMA, V_TR = 1, 2, 3, 4, 5, 6, 7
    ACC, BS, RD, OF = 16, 32, 36, 64
    T0, T1, T2 = 8, 9, 10
    wv = G.S_WAVE
    A(f'''
    s_load_dwordx2 s[{SRD_W}:{SRD_W+1}], s[0:1], {KA_WO}
    s_load_dwordx2 s[{SRD_O}:{SRD_O+1}], s[0:1], {KA_OUT}
    s_mov_b32 s{SRD_W+2}, {4096*1152}
    s_mov_b32 s{SRD_W+3}, 0x20000
    s_mov_b32 s{SRD_O+2}, {2048*1152}
    s_mov_b32 s{SRD_O+3}, 0x20000
    s_lshl_b32 s{S_C2}, s{W_I}, 6
    v_lshrrev_b32 v{T0}, 2, v0
    v_mul_u32_u24 v{T0}, 1152, v{T0}
    v_and_b32 v{T1}, 3, v0
    v_lshl_add_u32 v{V_DMA}, v{T1}, 4, v{T0}
    v_lshrrev_b32 v{T0}, 4, v0
    v_bfe_u32 v{T2}, v0, 2, 2
    v_lshl_add_u32 v{T0}, v{T0}, 3, v{T2}
    v_lshlrev_b32 v{T0}, 6, v{T0}
    v_lshl_add_u32 v{T0}, v{T1}, 3, v{T0}
    s_lshl_b32 s{S_T1}, s{wv}, 15
    v_add_u32 v{V_TR}, s{S_T1}, v{T0}
    v_lshrrev_b32 v{T0}, 4, v0
    v_and_b32 v{T1}, 15, v0
    v_lshlrev_b32 v{T2}, 4, v{T1}
    v_lshl_add_u32 v{V_O}, v{T0}, 9, v{T2}
    s_and_b32 s{S_T1}, s{wv}, 1
    s_lshl_b32 s{S_T1}, s{S_T1}, 4
    v_lshlrev_b32 v{T0}, 2, v{T0}
    v_add_u32 v{T0}, s{S_T1}, v{T0}
    v_mul_u32_u24 v{T2}, 2304, v{T1}
    v_lshl_add_u32 v{V_B}, v{T0}, 2, v{T2}
    v_mul_u32_u24 v{T2}, 1152, v{T1}
    v_lshl_add_u32 v{V_OUT}, v{T0}, 1, v{T2}
    v_lshlrev_b32 v{T0}, 4, v0
    s_lshl_b32 s{S_T1}, s{wv}, 11
    v_add_u32 v{V_LW}, s{S_T1}, v{T0}
    s_and_b32 s{S_T1}, s{wv}, 1
    s_lshl_b32 s{S_T1}, s{S_T1}, 10
    v_add_u32 v{V_LR}, s{S_T1}, v{T0}
    s_waitcnt lgkmcnt(0)
    ''')
    for half in range(2):
        A(f'''
        s_lshl_b32 s{S_T1}, s{wv}, 10
        s_add_u32 s{S_T1}, s{S_T1}, {512*half}
        s_mul_i32 s{S_T1}, s{S_T1}, 1152
        s_add_u32 s{S_T1}, s{S_T1}, s{S_C2}
        s_lshl_b32 s{S_T2}, s{wv}, 15
        ''')
        for j in range(32):
            A(f'''
            s_mov_b32 m0, s{S_T2}
            buffer_load_dwordx4 v{V_DMA}, s[{SRD_W}:{SRD_W+3}], s{S_T1} offen lds
            ''')
            if j < 31:
                A(f'''
                s_add_u32 s{S_T1}, s{S_T1}, {16*1152}
                s_add_u32 s{S_T2}, s{S_T2}, 1024
                ''')
        A('s_waitcnt vmcnt(0)')
        for kl in range(16):
            ks = 16 * half + kl
            for ch in range(2):
                for jj in range(2):
                    A(f'ds_read_b64_tr_b16 {a((ks*2+ch)*4 + 2*jj, 2)}, v{V_TR} offset:{kl*2048 + jj*256 + ch*32}')
        A('s_waitcnt lgkmcnt(0)')
    A(f'''
    s_barrier
    s_mov_b32 s{S_TASK}, s{W_G}
    s_mov_b32 s{S_RBC}, -1
    s_mov_b32 s{S_PAR}, 0
    ''')
    A.label(L('task'))
    A(f'''
    s_lshr_b32 s{S_SEG}, s{S_TASK}, 1
    s_lshr_b32 s{S_T1}, s{S_SEG}, 3
    s_cmp_eq_u32 s{S_T1}, s{S_RBC}
    s_cbranch_scc1 {L('rbok')}
    s_mov_b32 s{S_RBC}, s{S_T1}
    s_lshl_b32 s{S_OFF}, s{S_T1}, 2
    s_add_u32 s{S_OFF}, s{S_OFF}, {DBG_QB}
    ''')
    acquire(A, L('aqb'), S_OFF, 12, s_shift=('imm', 16), sleep=fc.sleep_far)
    A.label(L('rbok'))
    A(f'''
    s_lshl_b32 s{S_T1}, s{S_TASK}, 4
    s_mul_i32 s{S_BO}, s{S_T1}, 2304
    s_lshl_b32 s{S_T2}, s{S_C2}, 1
    s_add_u32 s{S_BO}, s{S_BO}, s{S_T2}
    s_add_u32 s{S_BO}, s{S_BO}, {WS_BASE}
    s_mul_i32 s{S_OO}, s{S_T1}, 1152
    s_add_u32 s{S_OO}, s{S_OO}, s{S_C2}
    s_and_b32 s{S_OFF}, s{S_SEG}, 0xfc
    s_add_u32 s{S_OFF}, s{S_OFF}, {DBG_ATT}
    s_and_b32 s{S_SH}, s{S_SEG}, 3
    s_lshl_b32 s{S_SH}, s{S_SH}, 3
    s_lshl_b32 s{S_SO}, s{S_SEG}, 18
    s_lshl_b32 s{S_T1}, s{wv}, 16
    s_add_u32 s{S_SO}, s{S_SO}, s{S_T1}
    s_and_b32 s{S_T1}, s{S_TASK}, 1
    s_lshl_b32 s{S_T1}, s{S_T1}, 8
    s_add_u32 s{S_SO}, s{S_SO}, s{S_T1}
    s_add_u32 s{S_SO}, s{S_SO}, {WS_O}
    buffer_load_dwordx4 {v(BS,4)}, v{V_B}, {WS}, s{S_BO} offen sc1
    ''')
    acquire(A, L('att'), S_OFF, 8, s_shift=S_SH, mask=0xff, sleep=fc.sleep_out)
    for ks in range(32):
        A(f'buffer_load_dwordx4 {v(OF+4*ks,4)}, v{V_O}, {WS}, s{S_SO} offen offset:{2048*(ks&1)} sc1')
        if ks & 1 and ks < 31:
            A(f's_add_u32 s{S_SO}, s{S_SO}, 4096')
    for ks in range(32):
        for ch in range(2):
            acc = v(ACC + 8 * (ks & 1) + 4 * ch, 4)
            cin = '0' if ks < 2 else acc
            A(f'v_mfma_f32_16x16x32_bf16 {acc}, {a((ks*2+ch)*4,4)}, {v(OF+4*ks,4)}, {cin}')
    for i in range(8):
        A(f'v_add_f32 v{ACC+i}, v{ACC+i}, v{ACC+8+i}')
    A(f'''
    v_add_u32 v{T0}, s{S_PAR}, v{V_LW}
    ds_write_b128 v{T0}, {v(ACC,4)}
    ds_write_b128 v{T0}, {v(ACC+4,4)} offset:1024
    v_add_u32 v{T1}, s{S_PAR}, v{V_LR}
    s_xor_b32 s{S_PAR}, s{S_PAR}, 8192
    s_waitcnt lgkmcnt(0)
    s_barrier
    s_cmp_ge_u32 s{wv}, 2
    s_cbranch_scc1 {L('next')}
    ''')
    for w in range(4):
        A(f'ds_read_b128 {v(RD+4*w,4)}, v{T1} offset:{2048*w}')
    for i in range(4):
        A(f'v_add_f32 v{RD+i}, v{RD+i}, v{RD+4+i}')
        A(f'v_add_f32 v{RD+8+i}, v{RD+8+i}, v{RD+12+i}')
    for i in range(4):
        A(f'v_add_f32 v{RD+i}, v{RD+i}, v{RD+8+i}')
    for i in range(4):
        A(f'v_add_f32 v{RD+i}, v{RD+i}, v{BS+i}')
    A(f'''
    v_cvt_pk_bf16_f32 v{RD}, v{RD}, v{RD+1}
    v_cvt_pk_bf16_f32 v{RD+1}, v{RD+2}, v{RD+3}
    buffer_store_dwordx2 {v(RD,2)}, v{V_OUT}, s[{SRD_O}:{SRD_O+3}], s{S_OO} offen
    ''')
    A.label(L('next'))
    A(f'''
    s_add_u32 s{S_TASK}, s{S_TASK}, {NSET}
    s_cmp_lt_u32 s{S_TASK}, 128
    s_cbranch_scc1 {L('task')}
    ''')


def emit_attn_set(A, name, fc):
    L = lambda x: f'{name}_{x}'
    S_SEG, S_HEAD, S_RBC, S_OFF, S_SH = 24, 25, 26, 27, 28
    wv = G.S_WAVE
    A(f'''
    s_sub_u32 s{S_HEAD}, s{W_I}, 18
    s_lshl_b32 s{S_HEAD}, s{S_HEAD}, 2
    s_add_u32 s{S_HEAD}, s{S_HEAD}, s{wv}
    s_mov_b32 s{S_SEG}, s{W_G}
    s_mov_b32 s{S_RBC}, -1
    ''')
    AT.emit_attn_setup2(A)
    A.label(L('task'))
    A(f'''
    s_lshr_b32 s{S_OFF}, s{S_SEG}, 3
    s_cmp_eq_u32 s{S_OFF}, s{S_RBC}
    s_cbranch_scc1 {L('rbok')}
    s_mov_b32 s{S_RBC}, s{S_OFF}
    s_lshl_b32 s{S_OFF}, s{S_OFF}, 2
    s_add_u32 s{S_OFF}, s{S_OFF}, {DBG_QB}
    ''')
    acquire(A, L('aq'), S_OFF, 16, mask=0xffff, sleep=fc.sleep_far)
    A(f's_sub_u32 s{S_OFF}, s{S_OFF}, {DBG_QB - DBG_KV}')
    acquire(A, L('akv'), S_OFF, 32, sleep=fc.sleep_far)
    A.label(L('rbok'))
    A(f'''
    s_and_b32 s{S_OFF}, s{S_SEG}, 0xfc
    s_add_u32 s{S_OFF}, s{S_OFF}, {DBG_PROG}
    s_and_b32 s{S_SH}, s{S_SEG}, 3
    s_lshl_b32 s{S_SH}, s{S_SH}, 3
    ''')

    def poll():
        acquire(A, L('apr'), S_OFF, 32, s_shift=S_SH, mask=0xff, sleep=fc.sleep_att)
    AT.emit_attn_task2(A, S_SEG, S_HEAD, poll)
    A(f'''
    s_add_u32 s{W_SIG}, s{S_OFF}, {DBG_ATT - DBG_PROG}
    s_lshl_b32 s{W_VAL}, 1, s{S_SH}
    ''')
    signal(A, L('sig'))
    A(f'''
    s_add_u32 s{S_SEG}, s{S_SEG}, {NSET}
    s_cmp_lt_u32 s{S_SEG}, 64
    s_cbranch_scc1 {L('task')}
    ''')


def emit_worker(A, name, fc):
    L = lambda x: f'{name}_{x}'
    A.label(L('worker'))
    K.common_entry(A, 256, L('wexit'))
    A(f'''
    s_load_dwordx2 s[{SRD_D}:{SRD_D+1}], s[0:1], {KA_DBG}
    s_mov_b32 s{SRD_D+2}, 256
    s_mov_b32 s{SRD_D+3}, 0x20000
    s_and_b32 s{W_G}, s2, 7
    s_sub_u32 s{W_G}, s{W_G}, 1
    s_lshr_b32 s{W_I}, s2, 3
    s_mov_b32 s{W_R}, 0
    s_mov_b32 s{W_BUD}, 200000
    s_add_u32 s{W_CB}, s{W_I}, 16
    s_mov_b32 s{W_RB}, s{W_G}
    s_waitcnt lgkmcnt(0)
    ''')
    A.label(L('task'))
    A(f'''
    s_mov_b32 s{W_SIG}, {DBG_KV}
    s_cmp_ge_u32 s{W_CB}, 48
    s_cselect_b32 s{W_SIG}, {DBG_H}, s{W_SIG}
    s_cmp_lt_u32 s{W_CB}, 16
    s_cselect_b32 s{W_SIG}, {DBG_QB}, s{W_SIG}
    s_lshl_b32 s{W_T}, s{W_RB}, 2
    s_add_u32 s{W_SIG}, s{W_SIG}, s{W_T}
    s_mov_b32 s{W_VAL}, 1
    ''')
    K.emit_gemm1_task(A, L('g1'), W_CB, W_RB, C1S)
    signal(A, L('sig1'))
    A(f'''
    s_add_u32 s{W_R}, s{W_R}, 1
    s_cmp_eq_u32 s{W_R}, 1
    s_cbranch_scc0 {L('r2')}
    s_lshl_b32 s{W_T}, s{W_G}, 5
    s_add_u32 s{W_T}, s{W_T}, s{W_I}
    s_and_b32 s{W_RB}, s{W_T}, 7
    s_lshr_b32 s{W_CB}, s{W_T}, 3
    s_add_u32 s{W_CB}, s{W_CB}, 48
    s_cmp_lt_u32 s{W_T}, 144
    s_cbranch_scc1 {L('task')}
    s_sub_u32 s{W_CB}, s{W_CB}, {48 + 22}
    s_cmp_ge_u32 s{W_T}, 176
    s_cbranch_scc1 {L('task')}
    s_sub_u32 s{W_CB}, s{W_T}, {144 - 16}
    s_mov_b32 s{W_RB}, 7
    s_branch {L('task')}
    ''')
    A.label(L('r2'))
    A(f'''
    s_cmp_eq_u32 s{W_R}, 2
    s_cbranch_scc0 {L('g1done')}
    s_cmp_ge_u32 s{W_G}, 4
    s_cbranch_scc1 {L('g1done')}
    s_cmp_lt_u32 s{W_I}, 12
    s_cbranch_scc1 {L('g1done')}
    s_mul_i32 s{W_T}, s{W_G}, 20
    s_add_u32 s{W_T}, s{W_T}, s{W_I}
    s_sub_u32 s{W_T}, s{W_T}, 12
    s_and_b32 s{W_RB}, s{W_T}, 7
    s_lshr_b32 s{W_CB}, s{W_T}, 3
    s_add_u32 s{W_CB}, s{W_CB}, 6
    s_branch {L('task')}
    ''')
    A.label(L('g1done'))
    A(f'''
    s_cmp_lt_u32 s{W_G}, 4
    s_cbranch_scc1 {L('phaseb')}
    s_sub_u32 s{W_CB}, s{W_G}, 4
    s_mov_b32 s{W_RB}, s{W_I}
    s_lshr_b32 s{W_SIG}, s{W_I}, 2
    s_lshl_b32 s{W_SIG}, s{W_SIG}, 2
    s_add_u32 s{W_SIG}, s{W_SIG}, {DBG_H}
    ''')
    acquire(A, L('acq2'), W_SIG, 18, inv=True)
    K.emit_ffn2_task(A, L('f2'), W_CB, W_RB, C2S)
    A(f'''
    s_add_u32 s{W_SIG}, s{W_SIG}, {DBG_QB - DBG_H}
    s_mov_b32 s{W_VAL}, 0x10000
    ''')
    signal(A, L('sig2'))
    A.label(L('phaseb'))
    A(f'''
    s_cmp_ge_u32 s{W_I}, 26
    s_cbranch_scc1 {L('wexit')}
    s_cmp_ge_u32 s{W_I}, 18
    s_cbranch_scc1 {L('attn')}
    ''')
    if not fc.no_outp:
        emit_outp_set(A, L('op'), fc)
    A(f's_branch {L("wexit")}')
    A.label(L('attn'))
    if not fc.no_attn:
        emit_attn_set(A, L('at'), fc)
    A.label(L('wexit'))
    A('s_endpgm')


def make_main(cfg=None, fc=None):
    def emit_main(A, name):
        c = cfg or ChainCfg()
        c.fused = True
        c.kv_sc1 = True
        c.prog = True
        c.vm_early = True
        emit_chain(A, c, name)
        emit_worker(A, name, fc or FCfg())
    return emit_main
```

```python
import sys
from gen import *
from kernels import *
import kernels
from fused2 import *
def mk(out, cfgkw={}, fckw={}):
    cfg = ChainCfg()
    for k_, v_ in cfgkw.items(): setattr(cfg, k_, v_)
    fc = FCfg()
    for k_, v_ in fckw.items(): setattr(fc, k_, v_)
    txt, n = build([('prep_kernel', emit_prep, 256, 256), ('main_kernel', make_main(cfg, fc), 512, 256)],
               [('prep_kernel', 64, 256, 0), ('main_kernel', 256, 256, 163840)])
    open(out, 'w').write(txt)
    print(out, 'instrs', n, 'bytes', len(txt))
if __name__ == '__main__':
    if len(sys.argv) > 1:
        exec(sys.argv[1])
    else:
        mk('f2.s')
```

```python
from asmlib import Asm, v, a, s, r
from layout import *

RS = 21792
R_S, R_M, R_W = 0, 1024, 3328
L_SM = 4 * RS
L_W = 16384
HALF = 73728
L_R1 = L_W + HALF
LDS_BYTES = 163840

SCALE_LOG2E = 0x3E0293EE
import struct, math
def f2u(x):
    return struct.unpack('<I', struct.pack('<f', x))[0]
SCALE_LOG2E = f2u(128 ** -0.5 * math.log2(math.e))

QK = [('qk', t, kb) for kb in range(18) for t in range(2)]
VV = [('v', t, blk) for blk in range(9) for t in range(2)]
WO = [('of', 0, blk) for blk in range(2)] + [('o', p, kb) for p in range(4) for kb in range(4)]


class ChainCfg:
    def __init__(self):
        self.lds_ops = [('qk', 1, kb) for kb in (0, 1, 2, 5, 7, 9, 11, 13, 15)] + \
                       [('v', 1, blk) for blk in (1, 5, 8)] + \
                       [('o', 0, 0), ('o', 0, 3), ('o', 1, 2), ('o', 2, 1), ('o', 3, 0), ('o', 3, 3)]
        self.na = 5
        self.nwb = 2
        self.nqb = 3
        self.stamps = False
        self.norearm = False
        self.nsteps = 64
        self.kv_sc1 = False
        self.x_nokv = False
        self.x_bar = True
        self.x_nost = False
        self.x_nowarm = False
        self.warm3 = True
        self.wdist = 0
        self.x_lat = False
        self.warm0 = True
        self.pts = ('m', 'b1', 'b2', 'wo', 'red')
        self.epoch = True
        self.mrepoll = True
        self.rearm_sm = False
        self.pp_r = False
        self.pp_m = False
        self.pp_rw = 3
        self.pp_mw = 2
        self.prog_late = False
        self.km_late = True
        self.vm_early = False
        self.prog = False
        self.pf = False
        self.tl = False
        self.fused = False


S_H, S_W, S_STEP, S_BUD, S_T0 = 3, 4, 5, 6, 7
SRD_WS, SRD_X = 8, 12
S_P0, S_P1 = 16, 18
S_MCUR, S_MNXT, S_MTHD = 20, 21, 22
S_PART, S_KOFF, S_VOFF, S_KMOFF, S_VMOFF = 23, 24, 25, 26, 27
S_T1, S_T2, S_T3, S_T4 = 28, 29, 30, 31
S_MLO, S_MHI, S_MSM = 32, 34, 36
S_SC = 38
S_TILE = 39
S_ISRED = 40
S_FAST = 41
S_DBG = 44
S_TS = 48
S_STAMP = 50
S_T5, S_T6 = 52, 53
S_WOFF, S_MP, S_PDELTA = 42, 43, 54
S_EPO = 55
S_MK = 76
S_RDY, S_NEED = 85, 86
DBG_KV, DBG_H = 16, 48
DBG_QB, DBG_PROG, DBG_ATT, DBG_LN = 80, 112, 176, 240

V_TID = 0
V_IDX, V_MA0, V_MAF, V_WL, V_L16, V_SMW, V_SMR, V_OW = 1, 2, 3, 4, 5, 6, 7, 8
V_KA, V_VA, V_PUBD, V_PUBF, V_RL, V_RP, V_KM, V_VM, V_R1 = 9, 10, 11, 12, 13, 14, 15, 16, 17
V_SEL = 18
KS = 20
VS = 20
V_DUM = 0
T = 40
POOL = list(range(28, 80))
NWORK = 80
OOB = 0x80000000


def kvpoll(A, cfg, name, tmp):
    ok = A.new_label(f'{name}_kvok')
    pl = A.new_label(f'{name}_kvp')
    A(f'''
    s_cmp_lt_u32 s{S_NEED}, s{S_RDY}
    s_cbranch_scc1 {ok}
    ''')
    A.label(pl)
    A(f'''
    v_lshrrev_b32 {tmp}, 2, v{V_L16}
    buffer_load_dword {tmp}, {tmp}, s[{S_DBG}:{S_DBG+3}], 0 offen offset:{DBG_KV} sc1
    s_waitcnt vmcnt(0)
    v_cmp_le_u32 vcc, 32, {tmp}
    s_and_b32 s{S_RDY}, vcc_lo, 0xff
    s_not_b32 s{S_RDY}, s{S_RDY}
    s_ff1_i32_b32 s{S_RDY}, s{S_RDY}
    s_sub_u32 s{S_BUD}, s{S_BUD}, 1
    s_cbranch_scc1 {name}_exit
    s_cmp_lt_u32 s{S_NEED}, s{S_RDY}
    s_cbranch_scc1 {ok}
    s_sleep 8
    s_branch {pl}
    ''')
    A.label(ok)


def slot_reg(i):
    return NWORK + 8 * i


def emit_chain(A: Asm, cfg: ChainCfg, name='chain_kernel'):
    L = lambda x: f'{name}_{x}'
    lds_ops = list(cfg.lds_ops)
    assert len(lds_ops) == 18
    A.label(name)
    A(f'''
    s_and_b32 s{S_T0}, s2, 7
    s_cmp_lg_u32 s{S_T0}, 0
    s_cbranch_scc1 {L('worker') if cfg.fused else L('exit')}
    s_lshr_b32 s{S_H}, s2, 3
    s_cmp_ge_u32 s{S_H}, 32
    s_cbranch_scc1 {L('exit')}
    s_load_dwordx2 s[{SRD_WS}:{SRD_WS+1}], s[0:1], {KA_WS}
    s_load_dwordx2 s[{S_DBG}:{S_DBG+1}], s[0:1], {KA_DBG}
    v_lshrrev_b32 v1, 6, v0
    v_readfirstlane_b32 s{S_W}, v1
    v_and_b32 v{V_TID}, 63, v0
    s_mov_b32 s{SRD_WS+2}, {WS_SIZE}
    s_mov_b32 s{SRD_WS+3}, 0x20000
    s_mov_b32 s{S_DBG+2}, 256
    s_mov_b32 s{S_DBG+3}, 0x20000
    s_mov_b32 s{SRD_X+3}, 0x20000
    s_mov_b32 s{S_BUD}, 400000
    s_mov_b32 s{S_MLO}, 0x00ff00ff
    s_mov_b32 s{S_MLO+1}, 0x00ff00ff
    s_mov_b32 s{S_MHI}, 0xff00ff00
    s_mov_b32 s{S_MHI+1}, 0xff00ff00
    s_mov_b32 s{S_MSM}, 0
    s_mov_b32 s{S_MSM+1}, 0x00ff00ff
    s_mov_b32 s{S_SC}, {SCALE_LOG2E:#x}
    ''')
    if cfg.tl:
        A('s_memrealtime s[58:59]', tag='stamp')
    A(f'''
    s_getreg_b32 s{S_T0}, hwreg(HW_REG_XCC_ID, 0, 4)
    s_lshl_b32 s{S_T0}, 1, s{S_T0}
    s_waitcnt lgkmcnt(0)
    s_cmp_lg_u32 s{S_W}, 0
    s_cbranch_scc1 {L('noatom')}
    s_mov_b64 exec, 1
    v_mov_b32 v2, s{S_T0}
    v_mov_b32 v3, 0
    buffer_atomic_or v2, v3, s[{S_DBG}:{S_DBG+3}], 0 offen sc1
    s_mov_b64 exec, -1
    ''')
    A.label(L('noatom'))
    A(f'''
    s_mul_i32 s{S_T1}, s{S_W}, 2304
    v_lshlrev_b32 v1, 4, v{V_TID}
    v_add_u32 v1, s{S_T1}, v1
    v_lshlrev_b32 v2, 2, v{V_TID}
    v_add_u32 v2, s{S_T1}, v2
    v_mov_b32 v4, -1
    v_mov_b32 v5, -1
    v_mov_b32 v6, -1
    v_mov_b32 v7, -1
    s_mul_i32 s{S_T1}, s{S_H}, 9216
    s_add_u32 s{S_T1}, s{S_T1}, {WS_PART}
    s_add_u32 s{S_T2}, s{S_T1}, {PART_SLOT}
    ''')
    WSB = f's[{SRD_WS}:{SRD_WS+3}]'
    for sr in (S_T1, S_T2):
        A(f'''
        buffer_store_dwordx4 v[4:7], v1, {WSB}, s{sr} offen sc1
        buffer_store_dwordx4 v[4:7], v1, {WSB}, s{sr} offen offset:1024 sc1
        buffer_store_dword v4, v2, {WSB}, s{sr} offen offset:2048 sc1
        ''')
    A(f'''
    s_cmp_ge_u32 s{S_H}, 3
    s_cbranch_scc1 {L('noarm')}
    s_lshl_b32 s{S_T1}, s{S_H}, 14
    s_add_u32 s{S_T1}, s{S_T1}, {WS_MEM}
    buffer_store_dwordx4 v[4:7], v1, {WSB}, s{S_T1} offen sc1
    buffer_store_dwordx4 v[4:7], v1, {WSB}, s{S_T1} offen offset:1024 sc1
    buffer_store_dword v4, v2, {WSB}, s{S_T1} offen offset:2048 sc1
    ''')
    A.label(L('noarm'))
    if cfg.pf:
        A(f'''
        s_cmp_lg_u32 s{S_W}, 0
        s_cbranch_scc1 {L('noarm2')}
        s_lshl_b32 s{S_T1}, s{S_H}, 7
        s_add_u32 s{S_T2}, s{S_T1}, {WS_PF}
        s_lshl_b32 s{S_T1}, s{S_T1}, 1
        s_add_u32 s{S_T1}, s{S_T1}, {WS_AF}
        v_mov_b32 v4, 0
        v_mov_b32 v1, 0
        s_mov_b64 exec, 1
        buffer_store_dword v4, v1, {WSB}, s{S_T2} offen sc1
        buffer_store_dword v4, v1, {WSB}, s{S_T1} offen sc1
        buffer_store_dword v4, v1, {WSB}, s{S_T1} offen offset:128 sc1
        s_mov_b64 exec, -1
        ''')
        A.label(L('noarm2'))

    lane = V_TID
    G, C = T + 0, T + 1
    X0, X1, X2, X3 = T + 2, T + 3, T + 4, T + 5
    A(f'''
    v_lshrrev_b32 v{G}, 4, v{lane}
    v_and_b32 v{C}, 15, v{lane}
    ''')

    free_final = list(range(54))
    work_slots = [8 + 8 * i for i in range(9)]
    loc = {}
    early = [op for op in lds_ops if op[0] in ('qk', 'v')]
    n_early = len(early)
    res_early = [op for op in QK + VV if op not in lds_ops]
    for op in res_early:
        loc[op] = slot_reg(free_final.pop(0))
    wo_final = free_final[:]
    assert len(wo_final) == n_early
    park_free = list(work_slots) + [slot_reg(i) for i in wo_final]
    for op in early:
        loc[op] = park_free.pop(0)
    assert len(park_free) == 9
    PA, PB, PC, PD, PE, PF, PG = 1, 2, 3, 4, 5, 6, 7

    def stage_qkv(ka_off, lds_base, row0, nrows, fmode, mat):
        A(f'''
        s_load_dwordx2 s[{SRD_X}:{SRD_X+1}], s[0:1], {ka_off}
        s_mov_b32 s{SRD_X+2}, {576*8192}
        v_lshrrev_b32 v{PA}, 4, v{lane}
        v_lshlrev_b32 v{PA}, 13, v{PA}
        v_and_b32 v{PB}, 15, v{lane}
        s_lshl_b32 s{S_T1}, s{S_H}, 8
        s_waitcnt lgkmcnt(0)
        ''')
        fs = sorted(set(fmode(k, mat) for k in range(nrows // 4)))
        regs = {}
        for i, f in enumerate(fs):
            reg = [PC, PD, PE, PF][i]
            regs[f] = reg
            A(f'''
            v_xor_b32 v{reg}, {f}, v{PB}
            v_lshlrev_b32 v{reg}, 4, v{reg}
            v_add_u32 v{reg}, v{reg}, v{PA}
            ''')
        ninst = nrows // 4
        assert ninst % 4 == 0 or True
        nm = ninst // 4
        assert ninst % 4 == 0
        for j in range((nm + 3) // 4):
            guard = (4 * j + 3 >= nm)
            if guard:
                lab = A.new_label(L('stg'))
                A(f'''
                s_add_u32 s{S_T2}, s{S_W}, {4*j}
                s_cmp_ge_u32 s{S_T2}, {nm}
                s_cbranch_scc1 {lab}
                ''')
            A(f'''
            s_add_u32 s{S_T2}, s{S_W}, {4*j}
            s_lshl_b32 s{S_T3}, s{S_T2}, 17
            s_add_u32 s{S_T3}, s{S_T3}, s{S_T1}
            s_add_u32 s{S_T3}, s{S_T3}, {row0*8192}
            s_lshl_b32 s{S_T4}, s{S_T2}, 12
            s_add_u32 s{S_T4}, s{S_T4}, {lds_base}
            ''')
            for i in range(4):
                f = fmode(i, mat)
                A(f'''
                s_mov_b32 m0, s{S_T4}
                buffer_load_dwordx4 v{regs[f]}, s[{SRD_X}:{SRD_X+3}], s{S_T3} offen lds
                ''')
                if i < 3:
                    A(f'''
                    s_add_u32 s{S_T3}, s{S_T3}, {4*8192}
                    s_add_u32 s{S_T4}, s{S_T4}, 1024
                    ''')
            if guard:
                A.label(lab)

    def sync_stage():
        A('s_waitcnt vmcnt(0)')
        A('s_barrier')

    def done_reads():
        A('s_waitcnt lgkmcnt(0)')
        A('s_barrier')

    def tr_fields():
        pass

    fq = lambda k, mat: 8 * (k & 1) + 4 * mat
    for h2 in range(2):
        stage_qkv(KA_WQ, L_W, 288 * h2, 288, fq, 0)
        stage_qkv(KA_WK, L_W + HALF, 288 * h2, 288, fq, 1)
        sync_stage()
        if h2 == 0:
            A(f'''
            s_cmp_lg_u32 s{S_W}, 0
            s_cbranch_scc1 {L('nocnt')}
            s_mov_b64 exec, 1
            v_mov_b32 v2, 1
            v_mov_b32 v3, 0
            buffer_atomic_add v2, v3, s[{S_DBG}:{S_DBG+3}], 0 offen offset:4 sc1
            s_mov_b64 exec, -1
            ''')
            A.label(L('nocnt'))
        A(f'''
        v_lshrrev_b32 v{PA}, 4, v{lane}
        v_and_b32 v{PB}, 1, v{PA}
        v_lshrrev_b32 v{PA}, 1, v{PA}
        v_lshlrev_b32 v{PA}, 3, v{PA}
        v_lshl_add_u32 v{PA}, v{PB}, 2, v{PA}
        v_lshrrev_b32 v{PC}, 2, v{lane}
        v_and_b32 v{PD}, 1, v{PC}
        v_add_u32 v{PA}, v{PA}, v{PD}
        v_lshlrev_b32 v{PA}, 8, v{PA}
        v_bfe_u32 v{PC}, v{lane}, 3, 1
        v_mul_u32_u24 v{PD}, {HALF}, v{PC}
        v_add_u32 v{PA}, v{PA}, v{PD}
        v_lshlrev_b32 v{PB}, 3, v{PB}
        v_lshl_add_u32 v{PB}, v{PC}, 2, v{PB}
        v_and_b32 v{PC}, 3, v{lane}
        s_lshl_b32 s{S_T1}, s{S_W}, 2
        v_add_u32 v{PC}, s{S_T1}, v{PC}
        v_xor_b32 v{PC}, v{PC}, v{PB}
        v_lshl_add_u32 v{PA}, v{PC}, 4, v{PA}
        v_add_u32 v{PA}, {L_W}, v{PA}
        ''')
        for kbl in range(9):
            kb = 9 * h2 + kbl
            if kbl == 5:
                A(f'v_add_u32 v{PA}, {5*8192}, v{PA}')
            ob = (kbl - 5 if kbl >= 5 else kbl) * 8192
            for t in range(2):
                dst = loc[('qk', t, kb)]
                for k in range(4):
                    off = ob + (16 * (k >> 1) + 2 * (k & 1)) * 256 + 8 * t
                    A(f'ds_read_b64_tr_b16 {r(dst + 2*k, 2)}, v{PA} offset:{off}')
        done_reads()

    fv = lambda k, mat: 4 * (k & 3)
    stage_qkv(KA_WV, L_W, 0, 576, fv, 0)
    sync_stage()
    A(f'''
    v_lshrrev_b32 v{PA}, 4, v{lane}
    v_and_b32 v{PB}, 1, v{PA}
    v_lshrrev_b32 v{PA}, 1, v{PA}
    v_lshlrev_b32 v{PA}, 4, v{PA}
    v_lshl_add_u32 v{PA}, v{PB}, 2, v{PA}
    v_bfe_u32 v{PD}, v{lane}, 2, 1
    v_add_u32 v{PA}, v{PA}, v{PD}
    v_bfe_u32 v{PC}, v{lane}, 3, 1
    v_lshl_add_u32 v{PA}, v{PC}, 3, v{PA}
    v_lshlrev_b32 v{PA}, 8, v{PA}
    v_lshl_add_u32 v{PB}, v{PC}, 1, v{PB}
    v_lshlrev_b32 v{PB}, 2, v{PB}
    v_and_b32 v{PC}, 3, v{lane}
    s_lshl_b32 s{S_T1}, s{S_W}, 2
    v_add_u32 v{PC}, s{S_T1}, v{PC}
    v_xor_b32 v{PC}, v{PC}, v{PB}
    v_lshl_add_u32 v{PA}, v{PC}, 4, v{PA}
    v_add_u32 v{PA}, {L_W}, v{PA}
    ''')
    for blk in range(9):
        if blk in (3, 6):
            A(f'v_add_u32 v{PA}, {3*16384}, v{PA}')
        ob = (blk % 3) * 16384
        for t in range(2):
            dst = loc[('v', t, blk)]
            for k in range(4):
                off = ob + (32 * (k >> 1) + 2 * (k & 1)) * 256 + 8 * t
                A(f'ds_read_b64_tr_b16 {r(dst + 2*k, 2)}, v{PA} offset:{off}')
    done_reads()

    A(f'''
    s_load_dwordx2 s[{SRD_X}:{SRD_X+1}], s[0:1], {KA_WO}
    s_mov_b32 s{SRD_X+2}, {32*147456}
    s_mul_i32 s{S_T1}, s{S_H}, 147456
    s_waitcnt lgkmcnt(0)
    ''')
    for j in range(36):
        A(f'''
        s_add_u32 s{S_T2}, s{S_W}, {4*j}
        s_lshl_b32 s{S_T3}, s{S_T2}, 6
        v_add_u32 v{PA}, s{S_T3}, v{lane}
        v_mul_u32_u24 v{PB}, 58255, v{PA}
        v_lshrrev_b32 v{PB}, 22, v{PB}
        v_and_b32 v{PC}, 4, v{PB}
        v_and_b32 v{PB}, 8, v{PB}
        v_lshrrev_b32 v{PB}, 2, v{PB}
        v_or_b32 v{PB}, v{PB}, v{PC}
        v_xor_b32 v{PA}, v{PA}, v{PB}
        v_lshlrev_b32 v{PA}, 4, v{PA}
        s_lshl_b32 s{S_T4}, s{S_T2}, 10
        s_add_u32 s{S_T4}, s{S_T4}, {L_W}
        s_mov_b32 m0, s{S_T4}
        buffer_load_dwordx4 v{PA}, s[{SRD_X}:{SRD_X+3}], s{S_T1} offen lds
        ''')
    sync_stage()
    def wo_addr_dup(p):
        A(f'''
        v_lshrrev_b32 v{PA}, 4, v{lane}
        v_and_b32 v{PB}, 1, v{PA}
        v_lshrrev_b32 v{PA}, 1, v{PA}
        v_lshlrev_b32 v{PC}, 1, v{PA}
        v_lshl_add_u32 v{PC}, v{PB}, 2, v{PC}
        v_lshlrev_b32 v{PA}, 3, v{PA}
        v_lshl_add_u32 v{PA}, v{PB}, 2, v{PA}
        v_bfe_u32 v{PD}, v{lane}, 2, 1
        v_add_u32 v{PA}, v{PA}, v{PD}
        v_mul_u32_u24 v{PA}, 1152, v{PA}
        s_mul_i32 s{S_T1}, s{S_W}, 18
        s_add_u32 s{S_T1}, s{S_T1}, {2 + 4*p}
        v_bfe_u32 v{PD}, v{lane}, 3, 1
        v_lshlrev_b32 v{PD}, 1, v{PD}
        v_bfe_u32 v{PB}, v{lane}, 1, 1
        v_add3_u32 v{PD}, v{PD}, v{PB}, s{S_T1}
        v_xor_b32 v{PD}, v{PD}, v{PC}
        v_lshl_add_u32 v{PA}, v{PD}, 4, v{PA}
        v_and_b32 v{PB}, 1, v{lane}
        v_lshl_add_u32 v{PA}, v{PB}, 3, v{PA}
        v_add_u32 v{PA}, {L_W}, v{PA}
        ''')
    def wo_addr_fold():
        A(f'''
        v_lshrrev_b32 v{PA}, 4, v{lane}
        v_and_b32 v{PB}, 1, v{PA}
        v_lshrrev_b32 v{PA}, 1, v{PA}
        v_lshlrev_b32 v{PA}, 4, v{PA}
        v_lshl_add_u32 v{PA}, v{PB}, 2, v{PA}
        v_bfe_u32 v{PD}, v{lane}, 2, 1
        v_add_u32 v{PA}, v{PA}, v{PD}
        v_bfe_u32 v{PD}, v{lane}, 3, 1
        v_lshl_add_u32 v{PA}, v{PD}, 3, v{PA}
        v_mul_u32_u24 v{PA}, 1152, v{PA}
        v_lshlrev_b32 v{PC}, 1, v{PD}
        v_lshl_add_u32 v{PC}, v{PB}, 2, v{PC}
        s_mul_i32 s{S_T1}, s{S_W}, 18
        v_bfe_u32 v{PB}, v{lane}, 1, 1
        v_add_u32 v{PD}, s{S_T1}, v{PB}
        v_xor_b32 v{PD}, v{PD}, v{PC}
        v_lshl_add_u32 v{PA}, v{PD}, 4, v{PA}
        v_and_b32 v{PB}, 1, v{lane}
        v_lshl_add_u32 v{PA}, v{PB}, 3, v{PA}
        v_add_u32 v{PA}, {L_W}, v{PA}
        ''')

    def wo_read(op):
        dst = loc[op]
        if op[0] == 'o':
            _, p, kb = op
            for k in range(4):
                e = 32 * kb + 16 * (k >> 1) + 2 * (k & 1)
                off = e * 1152
                reg = PA
                if off > 65535:
                    A(f'v_add_u32 v{PE}, {64*1152}, v{PA}')
                    off -= 64 * 1152
                    reg = PE
                A(f'ds_read_b64_tr_b16 {r(dst + 2*k, 2)}, v{reg} offset:{off}')
        else:
            _, _, blk = op
            for k in range(4):
                e = 64 * blk + 32 * (k >> 1) + 2 * (k & 1)
                off = e * 1152
                reg = PA
                if off > 65535:
                    A(f'v_add_u32 v{PE}, {64*1152}, v{PA}')
                    off -= 64 * 1152
                    reg = PE
                A(f'ds_read_b64_tr_b16 {r(dst + 2*k, 2)}, v{reg} offset:{off}')

    D1 = [('of', 0, 1)] + [('o', p, kb) for p in range(4) for kb in (2, 3)]
    D0 = [('of', 0, 0)] + [('o', p, kb) for p in range(4) for kb in (0, 1)]
    wo_final_regs = [slot_reg(i) for i in wo_final]
    free = list(park_free)
    def take(op):
        if op in lds_ops:
            cand = [x for x in free if x not in wo_final_regs] or free
        else:
            cand = [x for x in free if x in wo_final_regs]
        x = cand[0]
        free.remove(x)
        loc[op] = x
    for op in sorted(D1, key=lambda o: o in lds_ops):
        take(op)
    def read_group(ops):
        cur = None
        for op in ops:
            key = ('o', op[1]) if op[0] == 'o' else ('of',)
            if key != cur:
                if op[0] == 'o':
                    wo_addr_dup(op[1])
                else:
                    wo_addr_fold()
                cur = key
            wo_read(op)
    read_group(D1)
    done_reads()
    parked = [op for op in lds_ops if op in loc]
    parked.sort(key=lambda o: (loc[o] not in wo_final_regs))
    first = parked[:9]
    ldsloc = {}
    A(f'''
    s_mul_i32 s{S_T1}, s{S_W}, 18432
    s_add_u32 s{S_T1}, s{S_T1}, {L_W}
    v_lshlrev_b32 v{PG}, 4, v{lane}
    v_add_u32 v{PG}, s{S_T1}, v{PG}
    v_add_u32 v{PF}, {HALF}, v{PG}
    ''')
    def flush(ops, half):
        for i, op in enumerate(ops):
            ldsloc[op] = (half, i * 2048)
            reg = PF if half else PG
            src = loc[op]
            for q in range(2):
                A(f'ds_write_b128 v{reg}, {r(src + 4*q, 4)} offset:{i*2048 + q*1024}')
            free.append(src)
    flush(first, 1)
    for op in sorted(D0, key=lambda o: o in lds_ops):
        take(op)
    A('s_waitcnt lgkmcnt(0)')
    read_group(D0)
    done_reads()
    rest = [op for op in lds_ops if op not in ldsloc]
    assert len(rest) == 9
    A(f'''
    s_mul_i32 s{S_T1}, s{S_W}, {RS}
    s_add_u32 s{S_T1}, s{S_T1}, {R_W}
    v_lshlrev_b32 v{PG}, 4, v{lane}
    v_add_u32 v{PG}, s{S_T1}, v{PG}
    ''')
    flush(rest, 0)
    A('s_waitcnt lgkmcnt(0)')
    for op in QK + VV + WO:
        if op not in lds_ops:
            assert loc[op] >= NWORK, op


    g_, c_, x0, x1, x2, mb = T, T + 1, T + 2, T + 3, T + 4, T + 5
    A(f'''
    v_lshrrev_b32 v{g_}, 4, v{lane}
    v_and_b32 v{c_}, 15, v{lane}
    v_lshlrev_b32 v{V_L16}, 4, v{lane}
    s_mul_i32 s{S_T1}, s{S_W}, {RS}
    v_add_u32 v{V_WL}, s{S_T1}, v{V_L16}
    s_mul_i32 s{S_T1}, s{S_W}, 18432
    s_add_u32 s{S_T1}, s{S_T1}, {L_R1}
    v_add_u32 v{V_R1}, s{S_T1}, v{V_L16}
    v_mov_b32 v{x0}, 0x44444444
    v_mov_b32 v{x1}, 0xeeeeeeee
    v_cmp_gt_u32 vcc, 8, v{c_}
    v_cndmask_b32 v{V_IDX}, v{x1}, v{x0}, vcc
    v_bfe_u32 v{x0}, v{c_}, 1, 2
    v_mul_u32_u24 v{mb}, {RS}, v{x0}
    v_and_b32 v{x0}, 1, v{c_}
    v_mul_u32_u24 v{x0}, 1152, v{x0}
    v_add_u32 v{mb}, v{mb}, v{x0}
    v_add_u32 v{mb}, {R_M}, v{mb}
    v_lshl_add_u32 v{V_MA0}, v{g_}, 4, v{mb}
    v_lshrrev_b32 v{x2}, 3, v{c_}
    v_lshl_add_u32 v{x2}, v{g_}, 1, v{x2}
    v_lshl_add_u32 v{V_MAF}, v{x2}, 4, v{mb}
    s_lshl_b32 s{S_T1}, s{S_W}, 6
    v_add_u32 v{V_OW}, s{S_T1}, v{V_MA0}
    v_and_b32 v{x2}, 1, v{g_}
    v_lshlrev_b32 v{x2}, 5, v{x2}
    v_add_u32 v{x2}, v{x2}, v{c_}
    v_lshlrev_b32 v{x2}, 4, v{x2}
    s_lshl_b32 s{S_T1}, s{S_W}, 2
    s_add_u32 s{S_T1}, s{S_T1}, {L_SM}
    v_add_u32 v{V_SMW}, s{S_T1}, v{x2}
    v_and_b32 v{x2}, 1, v{g_}
    v_lshlrev_b32 v{x2}, 2, v{x2}
    v_lshrrev_b32 v{x1}, 1, v{g_}
    v_lshl_add_u32 v{x2}, v{x1}, 1, v{x2}
    v_lshrrev_b32 v{x1}, 3, v{c_}
    v_add_u32 v{x2}, v{x2}, v{x1}
    v_and_b32 v{x1}, 7, v{c_}
    v_lshl_add_u32 v{x2}, v{x2}, 3, v{x1}
    v_lshlrev_b32 v{x2}, 4, v{x2}
    v_add_u32 v{V_SMR}, {L_SM}, v{x2}
    v_lshrrev_b32 v{x0}, 2, v{c_}
    v_lshlrev_b32 v{x0}, 3, v{x0}
    v_and_b32 v{x1}, 3, v{c_}
    v_add_u32 v{x0}, v{x0}, v{x1}
    v_lshlrev_b32 v{x1}, 4, v{g_}
    v_lshl_add_u32 v{V_KA}, v{x0}, 13, v{x1}
    v_lshl_add_u32 v{V_VA}, v{x0}, 6, v{x1}
    v_lshlrev_b32 v{x1}, 3, v{g_}
    v_lshl_add_u32 v{V_VM}, v{x0}, 5, v{x1}
    v_and_b32 v{x0}, 7, v{c_}
    v_lshlrev_b32 v{x1}, 4, v{g_}
    v_lshl_add_u32 v{V_KM}, v{x0}, 8, v{x1}
    v_mov_b32 v{x1}, {OOB:#x}
    v_cmp_gt_u32 vcc, 8, v{c_}
    v_cndmask_b32 v{V_KM}, v{V_KM}, v{x1}, vcc
    v_and_b32 v{x0}, 1, v{g_}
    v_lshlrev_b32 v{x0}, 3, v{x0}
    v_lshl_add_u32 v{x0}, v{c_}, 4, v{x0}
    v_lshrrev_b32 v{x1}, 1, v{g_}
    v_lshl_add_u32 v{V_PUBF}, v{x1}, {31 if cfg.epoch else 2}, v{x0}
    v_lshl_add_u32 v{V_PUBD}, v{x1}, 8, v{x0}
    v_add_u32 v{V_PUBD}, 256, v{V_PUBD}
    v_lshlrev_b32 v{x0}, 2, v{g_}
    v_sub_u32 v{x0}, v{c_}, v{x0}
    v_mov_b32 v{x1}, 0x3f80
    v_mov_b32 v{x2}, 0x3f800000
    v_cmp_eq_u32 vcc, 0, v{x0}
    v_cndmask_b32 v{V_SEL}, 0, v{x1}, vcc
    v_cmp_eq_u32 vcc, 1, v{x0}
    v_cndmask_b32 v{V_SEL}, v{V_SEL}, v{x2}, vcc
    v_cmp_eq_u32 vcc, 2, v{x0}
    v_cndmask_b32 v{V_SEL+1}, 0, v{x1}, vcc
    v_cmp_eq_u32 vcc, 3, v{x0}
    v_cndmask_b32 v{V_SEL+1}, v{V_SEL+1}, v{x2}, vcc
    ''')
    A(f'''
    s_lshl_b32 s{S_TILE}, s{S_H}, 1
    s_add_u32 s{S_TILE}, s{S_TILE}, s{S_W}
    s_mov_b32 s{S_ISRED}, 1
    s_cmp_lt_u32 s{S_W}, 2
    s_cbranch_scc1 {L('role_done')}
    s_add_u32 s{S_TILE}, s{S_H}, 64
    s_cmp_eq_u32 s{S_W}, 2
    s_cselect_b32 s{S_ISRED}, 1, 0
    s_cmp_lt_u32 s{S_H}, 8
    s_cselect_b32 s{S_ISRED}, s{S_ISRED}, 0
    s_cmp_eq_u32 s{S_ISRED}, 0
    s_cselect_b32 s{S_TILE}, 0, s{S_TILE}
    ''')
    A.label(L('role_done'))
    A(f'''
    v_lshrrev_b32 v{x0}, 3, v{c_}
    v_lshl_add_u32 v{x0}, v{x0}, 4, v{g_}
    v_mul_u32_u24 v{x0}, 9216, v{x0}
    v_and_b32 v{x1}, 7, v{c_}
    v_lshl_add_u32 v{x0}, v{x1}, 4, v{x0}
    s_lshl_b32 s{S_T1}, s{S_TILE}, 7
    v_add_u32 v{V_RL}, s{S_T1}, v{x0}
    v_mul_u32_u24 v{x1}, 1152, v{x1}
    s_lshl_b32 s{S_T1}, s{S_TILE}, 4
    v_add_u32 v{x0}, s{S_T1}, v{x1}
    v_and_b32 v{x1}, 1, v{g_}
    v_lshl_add_u32 v{x0}, v{x1}, 3, v{x0}
    v_lshrrev_b32 v{x1}, 1, v{g_}
    v_lshl_add_u32 v{V_RP}, v{x1}, 2, v{x0}
    v_mov_b32 v{x1}, {OOB:#x}
    v_cmp_lt_u32 vcc, 7, v{c_}
    v_cndmask_b32 v{V_RP}, v{V_RP}, v{x1}, vcc
    s_cmp_eq_u32 s{S_ISRED}, 0
    s_cselect_b32 s{S_T1}, {OOB:#x}, 0
    v_or_b32 v{V_RP}, s{S_T1}, v{V_RP}
    v_or_b32 v{V_RL}, s{S_T1}, v{V_RL}
    ''')
    A(f'''
    s_mov_b32 s{S_STEP}, 0
    s_mov_b32 s{S_EPO}, 0
    s_mov_b32 s{S_MCUR}, {WS_MEM}
    s_mov_b32 s{S_MNXT}, {WS_MEM + MEM_SLOT}
    s_mov_b32 s{S_MTHD}, {WS_MEM + 2*MEM_SLOT}
    s_mul_i32 s{S_WOFF}, s{S_W}, {(2304 - RS) & 0xffffffff:#x}
    s_mul_i32 s{S_PART}, s{S_H}, 9216
    s_mul_i32 s{S_T1}, s{S_W}, 2304
    s_add_u32 s{S_PART}, s{S_PART}, s{S_T1}
    s_add_u32 s{S_PART}, s{S_PART}, {WS_PART}
    s_mov_b32 s{S_T5}, {WS_PART}
    s_mov_b32 s{S_PDELTA}, {PART_SLOT}
    s_lshl_b32 s{S_KOFF}, s{S_H}, 8
    s_lshl_b32 s{S_T1}, s{S_W}, 6
    s_add_u32 s{S_KOFF}, s{S_KOFF}, s{S_T1}
    s_add_u32 s{S_KOFF}, s{S_KOFF}, {WS_K}
    s_lshl_b32 s{S_VOFF}, s{S_H}, 13
    s_lshl_b32 s{S_T1}, s{S_W}, 11
    s_add_u32 s{S_VOFF}, s{S_VOFF}, s{S_T1}
    s_add_u32 s{S_VOFF}, s{S_VOFF}, {WS_VT}
    s_lshl_b32 s{S_KMOFF}, s{S_H}, 11
    s_lshl_b32 s{S_T1}, s{S_W}, 6
    s_add_u32 s{S_KMOFF}, s{S_KMOFF}, s{S_T1}
    s_add_u32 s{S_KMOFF}, s{S_KMOFF}, {WS_KM}
    s_lshl_b32 s{S_VMOFF}, s{S_H}, 12
    s_lshl_b32 s{S_T1}, s{S_W}, 10
    s_add_u32 s{S_VMOFF}, s{S_VMOFF}, s{S_T1}
    s_add_u32 s{S_VMOFF}, s{S_VMOFF}, {WS_VM}
    ''')

    SKV = ' sc1' if cfg.fused else ''

    def k_prefetch():
        A(f'''
        s_add_u32 s{S_T1}, s{S_KOFF}, {4*8192}
        buffer_load_dwordx4 {v(KS,4)}, v{V_KA}, s[{SRD_WS}:{SRD_WS+3}], s{S_KOFF} offen{SKV}
        buffer_load_dwordx4 {v(KS+4,4)}, v{V_KA}, s[{SRD_WS}:{SRD_WS+3}], s{S_T1} offen{SKV}
        s_add_u32 s{S_KOFF}, s{S_KOFF}, {32*8192}
        ''')

    def v_load():
        A(f'''
        buffer_load_dwordx4 {v(VS,4)}, v{V_VA}, s[{SRD_WS}:{SRD_WS+3}], s{S_VOFF} offen{SKV}
        buffer_load_dwordx4 {v(VS+4,4)}, v{V_VA}, s[{SRD_WS}:{SRD_WS+3}], s{S_VOFF} offen offset:256{SKV}
        s_add_u32 s{S_VOFF}, s{S_VOFF}, 262144
        ''')

    def v_warm():
        A(f'''
        buffer_load_dword v{V_DUM}, v{V_VA}, s[{SRD_WS}:{SRD_WS+3}], s{S_VOFF} offen
        buffer_load_dword v{V_DUM}, v{V_VA}, s[{SRD_WS}:{SRD_WS+3}], s{S_VOFF} offen offset:256
        ''', tag='dummy')
    if cfg.fused:
        A(f's_mov_b32 s{S_RDY}, 0')
        A(f's_mov_b32 s{S_NEED}, 0')
        kvpoll(A, cfg, name, f'v{T+2}')
    k_prefetch()
    A(f'''
    s_load_dwordx2 s[{SRD_X}:{SRD_X+1}], s[0:1], {KA_MEM0}
    s_mov_b32 s{SRD_X+2}, 9216
    ''')
    lab = L('xcc_poll')
    A.label(lab)
    A(f'''
    v_mov_b32 v{T+2}, 0
    buffer_load_dwordx2 {v(T+14,2)}, v{T+2}, s[{S_DBG}:{S_DBG+3}], 0 offen sc1
    s_waitcnt vmcnt(0) lgkmcnt(0)
    v_readfirstlane_b32 s{S_T1}, v{T+15}
    v_readfirstlane_b32 s{S_T2}, v{T+14}
    s_sub_u32 s{S_BUD}, s{S_BUD}, 1
    s_cmp_eq_u32 s{S_BUD}, 0
    s_cbranch_scc1 {L('exit')}
    s_cmp_lt_u32 s{S_T1}, 32
    s_cbranch_scc1 {lab}
    s_bcnt1_i32_b32 s{S_T2}, s{S_T2}
    s_cmp_eq_u32 s{S_T2}, 1
    s_cbranch_scc0 {name}_slow_pre
    ''')
    env = dict(loc=loc, ldsloc=ldsloc, lds_ops=lds_ops, k_prefetch=k_prefetch, v_load=v_load, v_warm=v_warm)
    for variant in ('fast', 'slow'):
        emit_loop(A, cfg, name, variant, env)
    A.label(L('exit'))
    A('s_endpgm')
    return env


def emit_loop(A, cfg, name, variant, env):
    L = lambda x: f'{name}_{variant}_{x}'
    SC = '' if variant == 'fast' else ' sc1'
    SCKV = ' sc1' if cfg.kv_sc1 else ''
    loc, ldsloc, lds_ops = env['loc'], env['ldsloc'], env['lds_ops']
    WS = f's[{SRD_WS}:{SRD_WS+3}]'
    idx = v(V_IDX)
    stamp_i = [0]
    ED = 1

    def stamp(nm='x'):
        if not cfg.stamps or variant != 'fast':
            return
        if nm not in cfg.pts:
            return
        i = stamp_i[0]
        stamp_i[0] += 1
        assert i < 7
        A(f's_memtime s[{56+2*i}:{57+2*i}]', tag='stamp')

    def lds_read(op, nm):
        reg, off = ldsloc[op]
        base = V_R1 if reg else V_WL
        if not reg:
            off += R_W
        A(f'ds_read_b128 %{nm}:4, v{base} offset:{off}')
        A(f'ds_read_b128 %{nm}+4:4, v{base} offset:{off+1024}')

    def zero(nm, n):
        for i in range(0, n, 2):
            A(f'v_mov_b64 %{nm}+{i}:2, 0')

    class Stream:
        def __init__(self, ops, pre):
            self.ops = ops
            self.lds = [o[0] for o in ops if o[0] in lds_ops]
            self.pre = pre
            self.issued = 0
            self.pos = 0

        def bname(self, op):
            return f'{self.pre}{self.lds.index(op)}'

        def read_next(self):
            if self.issued < len(self.lds):
                op = self.lds[self.issued]
                lds_read(op, self.bname(op))
                self.issued += 1

        def mf(self, after=None):
            op, acc, an = self.ops[self.pos]
            self.pos += 1
            if op in lds_ops:
                b = f'%{self.bname(op)}:8'
            else:
                b = r(loc[op], 8)
            A(f'v_smfmac_f32_16x16x64_bf16 %{acc}:4, %{an}:4, {b}, {idx}')
            if op in lds_ops:
                self.read_next()

        def done(self):
            return self.pos >= len(self.ops)

    qk = Stream([(('qk', t, kb), f'qk{t}', f'qa{kb}') for kb in range(18) for t in range(2)], 'qb')
    vv = Stream([(('v', t, blk), f'vc{t}', f'va{blk}') for blk in range(9) for t in range(2)], 'vb')

    def qk_pre():
        qk.issued = 0
        for i in range(cfg.nqb):
            qk.read_next()

    def warm(kadd, vadd):
        if cfg.fused:
            A(f'''
            s_add_u32 s{S_NEED}, s{S_STEP}, 1
            s_lshr_b32 s{S_NEED}, s{S_NEED}, 3
            s_min_u32 s{S_NEED}, s{S_NEED}, 7
            ''')
            kvpoll(A, cfg, name, '%wk')
        A(f'''
        s_cmp_eq_u32 s{S_W}, 3
        s_cselect_b32 s{S_T4}, 0, {OOB:#x}
        {f's_cmp_eq_u32 s{S_STEP}, {cfg.nsteps-1}' if cfg.fused else ''}
        {f's_cselect_b32 s{S_T4}, {OOB:#x}, s{S_T4}' if cfg.fused else ''}
        v_lshrrev_b32 %wk, 5, v{V_L16}
        v_lshlrev_b32 %wk, 13, %wk
        v_and_b32 %wk2, 16, v{V_L16}
        v_lshl_add_u32 %wk, %wk2, 3, %wk
        v_lshlrev_b32 %wv, 3, v{V_L16}
        v_or_b32 %wk, s{S_T4}, %wk
        v_or_b32 %wv, s{S_T4}, %wv
        s_add_u32 s{S_T1}, s{S_KOFF}, {(kadd - 192) & 0xffffffff:#x}
        s_add_u32 s{S_T2}, s{S_VOFF}, {((vadd - 3*2048) & 0xffffffff):#x}
        ''')
        A(f'''
        buffer_load_dword v{V_DUM}, %wk, {WS}, s{S_T1} offen
        buffer_load_dword v{V_DUM}, %wv, {WS}, s{S_T2} offen
        ''', tag='dummy')
        if cfg.x_lat:
            A('s_waitcnt vmcnt(0)')
            stamp('l2')

    def prog_prep(back, guard0):
        if cfg.pf:
            A(f'''
            s_lshl_b32 s{S_T1}, s{S_H}, 7
            s_cmp_eq_u32 s{S_W}, 3
            s_cselect_b32 s{S_T1}, s{S_T1}, {OOB:#x}
            v_mov_b32 %pg0, s{S_STEP}
            v_mov_b32 %pg1, s{S_T1}
            ''')
            return
        A(f'''
        s_sub_u32 s{S_T1}, s{S_STEP}, {back}
        s_and_b32 s{S_T2}, s{S_T1}, 3
        s_lshl_b32 s{S_T2}, s{S_T2}, 3
        s_lshl_b32 s{S_T2}, 1, s{S_T2}
        s_and_b32 s{S_T1}, s{S_T1}, 0xfc
        s_add_u32 s{S_T1}, s{S_T1}, {DBG_PROG}
        s_cmp_eq_u32 s{S_W}, 3
        s_cselect_b32 s{S_T1}, s{S_T1}, 256
        ''')
        if guard0:
            A(f'''
            s_cmp_eq_u32 s{S_STEP}, 0
            s_cselect_b32 s{S_T1}, 256, s{S_T1}
            ''')
        A(f'''
        v_mov_b32 %pg0, s{S_T2}
        v_mov_b32 %pg1, s{S_T1}
        ''')

    def prog_fire():
        if cfg.pf:
            A(f'''
            s_mov_b32 s{S_T1}, {WS_PF}
            s_mov_b64 exec, 1
            buffer_store_dword %pg0, %pg1, {WS}, s{S_T1} offen sc1
            s_mov_b64 exec, -1
            ''')
            return
        A(f'''
        s_mov_b64 exec, 1
        buffer_atomic_add %pg0, %pg1, s[{S_DBG}:{S_DBG+3}], 0 offen sc1
        s_mov_b64 exec, -1
        ''')

    def prog_signal(back, guard0):
        prog_prep(back, guard0)
        prog_fire()

    A.label(L('pre'))
    A(f'''
    s_mul_i32 s{S_T2}, s{S_W}, {RS}
    s_add_u32 s{S_T2}, s{S_T2}, {R_M}
    s_mov_b32 m0, s{S_T2}
    s_mul_i32 s{S_T2}, s{S_W}, 2304
    v_add_u32 %i0, s{S_T2}, v{V_L16}
    v_lshrrev_b32 %i1, 2, v{V_L16}
    v_add_u32 %i1, s{S_T2}, %i1
    buffer_load_dwordx4 %ip:4, %i0, s[{SRD_X}:{SRD_X+3}], 0 offen
    buffer_load_dwordx4 %ip+4:4, %i0, s[{SRD_X}:{SRD_X+3}], 0 offen offset:1024
    buffer_load_dword %ip+8, %i1, s[{SRD_X}:{SRD_X+3}], 0 offen offset:2048
    v_lshrrev_b32 %i0, 2, v{V_L16}
    v_sub_u32 %i1, v{V_WL}, v{V_L16}
    v_add_u32 %i1, %i1, %i0
    ds_write_b128 v{V_WL}, %ip:4 offset:{R_M}
    ds_write_b128 v{V_WL}, %ip+4:4 offset:{R_M+1024}
    ds_write_b32 %i1, %ip+8 offset:{R_M+2048}
    ''')
    if cfg.prog and not cfg.prog_late:
        A('v_mov_b32 %pg0, 0')
        A(f'v_mov_b32 %pg1, {OOB:#x}' if cfg.pf else 'v_mov_b32 %pg1, 256')
    qk_pre()
    A(f's_branch {L("mem_ready")}')

    A.label(L('top'))
    qk_pre()
    if cfg.prog and not cfg.prog_late:
        prog_prep(1, False)
    A(f'''
    v_lshrrev_b32 %w4t, 2, v{V_L16}
    v_sub_u32 %w4, v{V_WL}, v{V_L16}
    v_add_u32 %w4, %w4, %w4t
    s_add_u32 s{S_MP}, s{S_MCUR}, s{S_WOFF}
    ''')
    def mloads(masked=False):
        if masked:
            A(f's_mov_b64 exec, s[{S_MK}:{S_MK+1}]')
        A(f'buffer_load_dwordx4 %mp:4, v{V_WL}, {WS}, s{S_MP} offen sc1')
        if masked:
            A(f's_mov_b64 exec, s[{S_MK+2}:{S_MK+3}]')
        A(f'buffer_load_dwordx4 %mp+4:4, v{V_WL}, {WS}, s{S_MP} offen offset:1024 sc1')
        if masked:
            A(f's_mov_b64 exec, s[{S_MK+4}:{S_MK+5}]')
        A(f'buffer_load_dword %mp+8, %w4, {WS}, s{S_MP} offen offset:2048 sc1')
        if masked:
            A('s_mov_b64 exec, -1')
    if not cfg.mrepoll:
        A.label(L('mpoll'))
        mloads()
        A(f'''
        s_sub_u32 s{S_BUD}, s{S_BUD}, 1
        s_cbranch_scc1 {name}_exit
        v_max3_u32 %mc, %mp+0, %mp+1, %mp+2
        v_max3_u32 %mc1, %mp+3, %mp+4, %mp+5
        v_max3_u32 %mc, %mc, %mp+6, %mp+7
        v_max3_u32 %mc, %mc, %mc1, %mp+8
        v_cmp_eq_u32 vcc, -1, %mc
        s_cbranch_vccnz {L('mpoll')}
        ''')
    elif cfg.pp_m:
        assert cfg.x_bar
        stamp('m0')

        def dma(masked):
            if masked:
                A(f's_mov_b64 exec, s[{S_MK}:{S_MK+1}]')
            A(f'buffer_load_dwordx4 v{V_WL}, {WS}, s{S_MP} offen sc1 lds')
            if masked:
                A(f's_mov_b64 exec, s[{S_MK+2}:{S_MK+3}]')
            A(f'buffer_load_dwordx4 v{V_WL}, {WS}, s{S_MP} offen offset:1024 sc1 lds')
            if masked:
                A(f's_mov_b64 exec, s[{S_MK+4}:{S_MK+5}]')
            A(f'buffer_load_dword %w4, {WS}, s{S_MP} offen offset:2048 sc1 lds')
            if masked:
                A('s_mov_b64 exec, -1')
        dma(False)
        for i in range(3):
            A(f's_mov_b64 s[{S_MK+2*i}:{S_MK+2*i+1}], -1')
        A.label(L('mchk'))
        A(f'''
        s_sub_u32 s{S_BUD}, s{S_BUD}, 1
        s_cbranch_scc1 {name}_exit
        s_waitcnt vmcnt({cfg.pp_mw})
        ''')
        dma(True)
        A(f'''
        s_waitcnt vmcnt(3)
        ds_read_b128 %mp:4, v{V_WL} offset:{R_M}
        ds_read_b128 %mp+4:4, v{V_WL} offset:{R_M+1024}
        ds_read_b32 %mp+8, %w4 offset:{R_M+2048}
        v_max3_u32 %mc, %mp+0, %mp+1, %mp+2
        v_max_u32 %mc, %mc, %mp+3
        v_max3_u32 %mc1, %mp+4, %mp+5, %mp+6
        v_max_u32 %mc1, %mc1, %mp+7
        v_max3_u32 %mc2, %mc, %mc1, %mp+8
        v_cmp_eq_u32 vcc, -1, %mc2
        s_cbranch_vccz {L('mok')}
        v_cmp_eq_u32 s[{S_MK}:{S_MK+1}], -1, %mc
        v_cmp_eq_u32 s[{S_MK+2}:{S_MK+3}], -1, %mc1
        v_cmp_eq_u32 s[{S_MK+4}:{S_MK+5}], -1, %mp+8
        s_branch {L('mchk')}
        ''')
        A.label(L('mok'))
        stamp('m2')
        if cfg.pp_r:
            A('_keep %rd:16')
    else:
        stamp('m0')
        A('s_mov_b32 s84, 0')
        mloads()
        A.label(L('mchk'))
        A(f'''
        s_sub_u32 s{S_BUD}, s{S_BUD}, 1
        s_cbranch_scc1 {name}_exit
        v_max3_u32 %mc, %mp+0, %mp+1, %mp+2
        v_max3_u32 %mc1, %mp+4, %mp+5, %mp+6
        v_max_u32 %mc, %mc, %mp+3
        v_max_u32 %mc1, %mc1, %mp+7
        v_max3_u32 %mc2, %mc, %mc1, %mp+8
        v_cmp_eq_u32 vcc, -1, %mc2
        ''')
        if 'm1' in cfg.pts and variant == 'fast' and cfg.stamps:
            lab1 = L('m1skip')
            A(f's_cmp_lg_u32 s84, 0')
            A(f's_cbranch_scc1 {lab1}')
            stamp('m1')
            A('s_mov_b32 s84, 1')
            A.label(lab1)
        A(f'''
        s_cbranch_vccz {L('mok')}
        v_cmp_eq_u32 s[{S_MK}:{S_MK+1}], -1, %mc
        v_cmp_eq_u32 s[{S_MK+2}:{S_MK+3}], -1, %mc1
        v_cmp_eq_u32 s[{S_MK+4}:{S_MK+5}], -1, %mp+8
        ''')
        mloads(True)
        A(f's_branch {L("mchk")}')
        A.label(L('mok'))
        stamp('m2')
    if not cfg.pp_m:
        A(f'''
        ds_write_b128 v{V_WL}, %mp:4 offset:{R_M}
        ds_write_b128 v{V_WL}, %mp+4:4 offset:{R_M+1024}
        ds_write_b32 %w4, %mp+8 offset:{R_M+2048}
        ''')
        if cfg.pp_r:
            A('_keep %rd:16')
    A.label(L('mem_ready'))
    zero('qk0', 4)
    zero('qk1', 4)
    A('s_waitcnt lgkmcnt(0)')
    A('s_barrier')
    if cfg.stamps and variant == 'fast':
        A('s_mov_b64 s[70:71], s[56:57]')
        A(f's_sub_u32 s72, s74, s{S_BUD}')
    stamp('m')
    if cfg.tl:
        lab = A.new_label(L('tl'))
        A(f'''
        s_memrealtime s[56:57]
        s_cmp_lg_u32 s{S_W}, 0
        s_cbranch_scc1 {lab}
        s_lshl_b32 s{S_T1}, s{S_H}, 10
        s_lshl_b32 s{S_T2}, s{S_STEP}, 3
        s_add_u32 s{S_T1}, s{S_T1}, s{S_T2}
        s_add_u32 s{S_T1}, s{S_T1}, {WS_STAMP + 0x20000}
        s_waitcnt lgkmcnt(0)
        v_mov_b32 %tl+0, s56
        v_mov_b32 %tl+1, s57
        v_mov_b32 %tz, 0
        buffer_store_dwordx2 %tl:2, %tz, {WS}, s{S_T1} offen
        s_cmp_lg_u32 s{S_STEP}, 0
        s_cbranch_scc1 {lab}
        v_mov_b32 %tl+0, s58
        v_mov_b32 %tl+1, s59
        buffer_store_dwordx2 %tl:2, %tz, {WS}, s{S_T1} offen offset:520
        ''')
        A.label(lab)
    if cfg.warm0:
        warm(cfg.wdist*262144, (cfg.wdist+1)*262144)
    if cfg.prog and not cfg.prog_late:
        prog_fire()
    def rdA(kb):
        A(f'ds_read_b128 %qa{kb}:4, v{V_MA0} offset:{64*kb}')

    def rdV(blk):
        A(f'ds_read_b128 %va{blk}:4, v{V_MAF} offset:{128*blk}')
    NA = cfg.na
    for kb in range(NA):
        rdA(kb)
    NVA = 3
    vq = 0
    for kb in range(18):
        qk.mf()
        qk.mf()
        if kb + NA < 18:
            rdA(kb + NA)
        elif vq < NVA:
            rdV(vq)
            vq += 1
        if kb == 13:
            zero('vc0', 4)
        if kb == 14:
            zero('vc1', 4)
        if kb == 16:
            vv.read_next()

    def vm(n):
        for _ in range(n):
            if vv.done():
                return
            (o_, t, blk) = vv.ops[vv.pos][0]
            vv.mf()
            if t == 1 and blk + NVA < 9:
                rdV(blk + NVA)
    sch = cfg.vsched if hasattr(cfg, 'vsched') else (2, 2, 2, 4, 8)
    stamp('qk')
    vm(sch[0])
    A(f'''
    v_cvt_pk_bf16_f32 %ta+0, %qk0+0, %qk0+1
    v_cvt_pk_bf16_f32 %ta+1, %qk0+2, %qk0+3
    v_cvt_pk_bf16_f32 %ta+2, %qk1+0, %qk1+1
    v_cvt_pk_bf16_f32 %ta+3, %qk1+2, %qk1+3
    v_mfma_f32_16x16x16_bf16 %t0:4, %ta+0:2, {v(V_SEL,2)}, 0
    v_mfma_f32_16x16x16_bf16 %t1:4, %ta+2:2, {v(V_SEL,2)}, 0
    ''')
    stamp('t1')
    vm(sch[1])
    A(f'''
    v_cvt_pk_bf16_f32 %x+0, %t0+0, %t0+1
    v_cvt_pk_bf16_f32 %x+1, %t0+2, %t0+3
    v_cvt_pk_bf16_f32 %x+2, %t1+0, %t1+1
    v_cvt_pk_bf16_f32 %x+3, %t1+2, %t1+3
    v_mfma_f32_16x16x32_bf16 %s0:4, {v(KS,4)}, %x:4, 0
    v_mfma_f32_16x16x32_bf16 %s1:4, {v(KS+4,4)}, %x:4, 0
    v_mfma_f32_16x16x32_bf16 %smm:4, %x:4, %x:4, 0
    ''')
    def km_store():
        A(f'''
        {'; ' if cfg.x_nost else ''}buffer_store_dwordx4 %x:4, v{V_KM}, {WS}, s{S_KMOFF} offen{SCKV}
        s_add_u32 s{S_KMOFF}, s{S_KMOFF}, 65536
        ''')
    if not cfg.km_late:
        km_store()
    stamp('t2')
    vm(sch[2])
    A(f'''
    s_mov_b64 exec, s[{S_MLO}:{S_MLO+1}]
    ds_write_b128 v{V_WL}, %s0:4
    ds_write_b128 v{V_WL}, %s1:4 offset:128
    s_mov_b64 exec, s[{S_MSM}:{S_MSM+1}]
    ds_write2_b32 v{V_SMW}, %smm+0, %smm+1 offset0:0 offset1:32
    ds_write2_b32 v{V_SMW}, %smm+2, %smm+3 offset0:64 offset1:96
    s_mov_b64 exec, -1
    ''')
    if cfg.x_lat:
        A('s_waitcnt vmcnt(0)')
        stamp('l0')
        env['v_load']()
        A('s_waitcnt vmcnt(0)')
        stamp('l1')
    if not cfg.x_nokv:
        if not cfg.x_lat:
            env['v_load']()
        if cfg.warm3 and not cfg.warm0:
            warm(cfg.wdist*262144, cfg.wdist*262144)
    if cfg.km_late:
        km_store()
    stamp('t3')
    vm(sch[3])
    stamp('t4')
    A('s_waitcnt lgkmcnt(0)')
    A('s_barrier')
    stamp('b1')
    for wq in range(4):
        A(f'ds_read_b128 %r{wq}:4, v{V_L16} offset:{R_S + wq*RS}')
    A(f'ds_read_b128 %rm:4, v{V_SMR}')
    if cfg.rearm_sm:
        A(f'''
        v_mov_b64 %ng+0:2, -1
        v_mov_b64 %ng+2:2, -1
        s_add_u32 s{S_T4}, s{S_T5}, s{S_PDELTA}
        s_add_u32 s{S_T1}, s{S_T4}, {1*4*9216}
        s_add_u32 s{S_T2}, s{S_T4}, {2*4*9216}
        s_add_u32 s{S_T3}, s{S_T4}, {3*4*9216}
        buffer_store_dwordx4 %ng:4, v{V_RL}, {WS}, s{S_T4} offen{SC}
        buffer_store_dwordx4 %ng:4, v{V_RL}, {WS}, s{S_T1} offen{SC}
        buffer_store_dwordx4 %ng:4, v{V_RL}, {WS}, s{S_T2} offen{SC}
        buffer_store_dwordx4 %ng:4, v{V_RL}, {WS}, s{S_T3} offen{SC}
        buffer_store_dword %ng+0, v{V_RP}, {WS}, s{S_MTHD} offen{SC}
        ''')
    vm(sch[4])
    vm(18)

    def vm_cvt():
        A(f'''
        v_cvt_pk_bf16_f32 %cv+0, %vc0+0, %vc0+1
        v_cvt_pk_bf16_f32 %cv+1, %vc0+2, %vc0+3
        v_cvt_pk_bf16_f32 %cv+2, %vc1+0, %vc1+1
        v_cvt_pk_bf16_f32 %cv+3, %vc1+2, %vc1+3
        ''')

    def vm_store():
        A(f'''
        {'; ' if cfg.x_nost else ''}buffer_store_dwordx2 %cv+0:2, v{V_VM}, {WS}, s{S_VMOFF} offen{SCKV}
        {'; ' if cfg.x_nost else ''}buffer_store_dwordx2 %cv+2:2, v{V_VM}, {WS}, s{S_VMOFF} offen offset:128{SCKV}
        s_add_u32 s{S_VMOFF}, s{S_VMOFF}, 131072
        ''')
    if cfg.vm_early:
        vm_cvt()
        vm_store()
    stamp('s1')
    for i in range(4):
        A(f'v_add_f32 %r0+{i}, %r0+{i}, %r1+{i}')
        A(f'v_add_f32 %r2+{i}, %r2+{i}, %r3+{i}')
    for i in range(4):
        A(f'v_add_f32 %r0+{i}, %r0+{i}, %r2+{i}')
    A(f'''
    v_add_f32 %sm, %rm+0, %rm+1
    v_add_f32 %rm+2, %rm+2, %rm+3
    v_add_f32 %sm, %sm, %rm+2
    v_max3_f32 %m, %r0+0, %r0+1, %r0+2
    v_max3_f32 %m, %m, %r0+3, %sm
    v_max_f32_dpp %m, %m, %m row_ror:8 row_mask:0xf bank_mask:0xf
    v_mov_b32 %m2, %m
    v_permlane16_swap_b32 %m, %m2
    v_max_f32 %m, %m, %m2
    v_mov_b32 %m2, %m
    v_permlane32_swap_b32 %m, %m2
    v_max_f32 %m, %m, %m2
    v_mul_f32 %m, s{S_SC}, %m
    ''')
    stamp('s2')
    wo_ops = []
    for blk in range(2):
        wo_ops.append((('of', 0, blk), 'wc4', f'af{blk}'))
    for p in range(4):
        for kb in range(4):
            wo_ops.append((('o', p, kb), f'wc{p}', f'ad{kb}'))
    wo = Stream(wo_ops, 'wb')
    for i in range(4):
        A(f'v_fma_f32 %r0+{i}, %r0+{i}, s{S_SC}, -%m')
    A(f'v_fma_f32 %sm, %sm, s{S_SC}, -%m')
    for i in range(4):
        A(f'v_exp_f32 %r0+{i}, %r0+{i}')
    A(f'v_exp_f32 %sm, %sm')
    if not cfg.vm_early:
        vm_cvt()
    A(f'''
    v_cvt_pk_bf16_f32 %ps+0, %r0+0, %r0+1
    v_cvt_pk_bf16_f32 %ps+1, %r0+2, %r0+3
    v_mov_b32_dpp %u, %sm row_ror:8 row_mask:0xf bank_mask:0xf
    v_mov_b32_dpp %ps+2, %ps+0 row_ror:8 row_mask:0xf bank_mask:0xf
    v_mov_b32_dpp %ps+3, %ps+1 row_ror:8 row_mask:0xf bank_mask:0xf
    v_cvt_pk_bf16_f32 %pm+0, %sm, %u
    v_mfma_f32_16x16x32_bf16 %o0:4, {v(VS,4)}, %ps:4, 0
    v_mfma_f32_16x16x32_bf16 %o1:4, {v(VS+4,4)}, %ps:4, 0
    v_mov_b32 %pm+1, %pm+0
    v_permlane32_swap_b32 %pm+0, %pm+1
    v_mfma_f32_16x16x16_bf16 %o0:4, %cv+0:2, %pm:2, %o0:4
    v_mfma_f32_16x16x16_bf16 %o1:4, %cv+2:2, %pm:2, %o1:4
    ''')
    stamp('s3')
    for i in range(cfg.nwb):
        wo.read_next()
    A(f'''
    v_add_f32 %l, %r0+0, %r0+1
    v_add_f32 %l2, %r0+2, %r0+3
    v_add_f32 %l, %l, %sm
    v_add_f32 %l, %l, %l2
    v_add_f32_dpp %l, %l, %l row_ror:8 row_mask:0xf bank_mask:0xf
    v_mov_b32 %l2, %l
    v_permlane16_swap_b32 %l, %l2
    v_add_f32 %l, %l, %l2
    v_mov_b32 %l2, %l
    v_permlane32_swap_b32 %l, %l2
    v_add_f32 %l, %l, %l2
    v_rcp_f32 %l, %l
    ''')
    if not cfg.vm_early:
        vm_store()
    A(f'''
    s_cmp_eq_u32 s{S_STEP}, {cfg.nsteps-1}
    s_cbranch_scc1 {L('fin') if cfg.prog else name + '_exit'}
    ''')
    stamp('s4')
    for o in ('o0', 'o1'):
        for i in range(4):
            A(f'v_mul_f32 %{o}+{i}, %{o}+{i}, %l')
    A(f'''
    v_cvt_pk_bf16_f32 %op+0, %o0+0, %o0+1
    v_cvt_pk_bf16_f32 %op+1, %o0+2, %o0+3
    v_cvt_pk_bf16_f32 %op+2, %o1+0, %o1+1
    v_cvt_pk_bf16_f32 %op+3, %o1+2, %o1+3
    s_mov_b64 exec, s[{S_MLO}:{S_MLO+1}]
    ds_write_b128 v{V_OW}, %op:4
    s_mov_b64 exec, -1
    ''')
    if not cfg.x_nokv:
        env['k_prefetch']()
        if not cfg.x_nowarm and not cfg.warm3:
            env['v_warm']()
    zero('wc4', 4)
    zero('wc0', 4)
    zero('wc1', 4)
    A('s_waitcnt lgkmcnt(0)')
    A('s_barrier')
    stamp('b2')
    for blk in range(2):
        A(f'ds_read_b128 %af{blk}:4, v{V_MAF} offset:{128*blk}')
    for kb in range(4):
        A(f'ds_read_b128 %ad{kb}:4, v{V_MA0} offset:{64*kb}')

    def pub(p):
        A(f'''
        v_cvt_pk_bf16_f32 %pu{p}+0, %wc{p}+0, %wc{p}+1
        v_cvt_pk_bf16_f32 %pu{p}+1, %wc{p}+2, %wc{p}+3
        {f'v_bfi_b32 %pu{p}+{ED}, 1, s{S_EPO}, %pu{p}+{ED}' if cfg.epoch else ''}
        buffer_store_dwordx2 %pu{p}:2, v{V_PUBD}, {WS}, s{S_PART} offen offset:{512*p}{SC}
        ''')
    wo.mf()
    wo.mf()
    stamp('w1')
    for p in range(4):
        for kb in range(4):
            wo.mf()
            if p == 0 and kb == 3:
                A(f'''
                v_permlane32_swap_b32 %wc4+0, %wc4+2
                v_permlane32_swap_b32 %wc4+1, %wc4+3
                ''')
            if p == 1 and kb == 0:
                A(f'''
                v_add_f32 %wc4+0, %wc4+0, %wc4+2
                v_add_f32 %wc4+1, %wc4+1, %wc4+3
                ''')
            if p == 1 and kb == 1:
                if cfg.epoch:
                    A(f'''
                    v_cvt_pk_bf16_f32 %puf+0, %wc4+0, %wc4+1
                    v_mov_b32 %puf+1, %puf+0
                    v_permlane32_swap_b32 %puf+0, %puf+1
                    v_bfi_b32 %puf+{ED}, 1, s{S_EPO}, %puf+{ED}
                    buffer_store_dwordx2 %puf:2, v{V_PUBF}, {WS}, s{S_PART} offen{SC}
                    ''')
                else:
                    A(f'''
                    v_cvt_pk_bf16_f32 %puf, %wc4+0, %wc4+1
                    buffer_store_dword %puf, v{V_PUBF}, {WS}, s{S_PART} offen{SC}
                    ''')
            if p == 1 and kb == 2:
                zero('wc2', 4)
            if kb == 3 and p >= 1:
                pub(p - 1)
            if kb == 1 and p == 2:
                zero('wc3', 4)
    pub(3)
    stamp('wo')
    if cfg.stamps and variant == 'fast':
        A(f's_mov_b32 s75, s{S_BUD}')
    if cfg.prog and cfg.prog_late:
        A(f'''
        s_cmp_eq_u32 s{S_W}, 3
        s_cbranch_scc0 {L('w012')}
        ''')
        prog_signal(1, True)
        A(f's_branch {L("nored")}')
        A.label(L('w012'))
    A(f'''
    s_cmp_eq_u32 s{S_ISRED}, 0
    s_cbranch_scc1 {L('nored')}
    s_add_u32 s{S_T1}, s{S_T5}, {1*4*9216}
    s_add_u32 s{S_T2}, s{S_T5}, {2*4*9216}
    s_add_u32 s{S_T3}, s{S_T5}, {3*4*9216}
    ''')
    so = [S_T5, S_T1, S_T2, S_T3]

    def rloads():
        for i in range(4):
            A(f'buffer_load_dwordx4 %rd+{4*i}:4, v{V_RL}, {WS}, s{so[i]} offen sc1')
    stamp('r0')
    A('s_mov_b32 s84, 0')
    rloads()
    A(f'''
    v_bfe_u32 %q0, v{V_L16}, 4, 1
    v_bfe_u32 %q1, v{V_L16}, 5, 2
    v_lshlrev_b32 %q0, 4, %q0
    v_mov_b32 %q2, 0x3f80
    v_lshlrev_b32 %q2, %q0, %q2
    ''')
    for i in range(4):
        A(f'v_cmp_eq_u32 vcc, {i}, %q1')
        A(f'v_cndmask_b32 %sr+{i}, 0, %q2, vcc')
    if not cfg.mrepoll:
        assert not cfg.epoch
        A(f's_branch {L("rchk")}')
        A.label(L('rpoll'))
        rloads()
        A.label(L('rchk'))
        A(f'''
        s_sub_u32 s{S_BUD}, s{S_BUD}, 1
        s_cbranch_scc1 {name}_exit
        v_max3_u32 %c0, %rd+0, %rd+1, %rd+2
        v_max3_u32 %c1, %rd+3, %rd+4, %rd+5
        v_max3_u32 %c0, %c0, %rd+6, %rd+7
        v_max3_u32 %c1, %c1, %rd+8, %rd+9
        v_max3_u32 %c0, %c0, %rd+10, %rd+11
        v_max3_u32 %c1, %c1, %rd+12, %rd+13
        v_max3_u32 %c0, %c0, %rd+14, %rd+15
        v_max_u32 %c0, %c0, %c1
        v_cmp_eq_u32 vcc, -1, %c0
        s_cbranch_vccnz {L('rpoll')}
        ''')
    elif cfg.pp_r:
        assert cfg.epoch
        for i in range(4):
            A(f's_mov_b64 s[{S_MK+2*i}:{S_MK+2*i+1}], -1')
        A.label(L('rchk'))
        A(f'''
        s_sub_u32 s{S_BUD}, s{S_BUD}, 1
        s_cbranch_scc1 {name}_exit
        s_waitcnt vmcnt({cfg.pp_rw})
        ''')
        for i in range(4):
            A(f's_mov_b64 exec, s[{S_MK+2*i}:{S_MK+2*i+1}]')
            A(f'buffer_load_dwordx4 %rd+{4*i}:4, v{V_RL}, {WS}, s{so[i]} offen sc1', tag='nowait')
        A('s_mov_b64 exec, -1')
        A('s_waitcnt vmcnt(4)')
        for i in range(4):
            A(f'v_bitop3_b32 %ck+{i}, %rd+{4*i+1}, %rd+{4*i+3}, s{S_EPO} bitop3:0x7e', tag='nowait')
        A(f'''
        v_or3_b32 %c0, %ck+0, %ck+1, %ck+2
        v_or_b32 %c0, %c0, %ck+3
        v_and_b32 %c0, 1, %c0
        v_cmp_ne_u32 vcc, 0, %c0
        s_cbranch_vccz {L("rok")}
        ''')
        for i in range(4):
            A(f'v_and_b32 %ck+{i}, 1, %ck+{i}')
            A(f'v_cmp_ne_u32 s[{S_MK+2*i}:{S_MK+2*i+1}], 0, %ck+{i}')
        A(f's_branch {L("rchk")}')
        A.label(L('rok'))
        stamp('r2')
    else:
        A.label(L('rchk'))
        A(f'''
        s_sub_u32 s{S_BUD}, s{S_BUD}, 1
        s_cbranch_scc1 {name}_exit
        ''')
        for i in range(4):
            if cfg.epoch:
                A(f'v_bitop3_b32 %ck+{i}, %rd+{4*i+1}, %rd+{4*i+3}, s{S_EPO} bitop3:0x7e')
            else:
                A(f'v_max3_u32 %ck+{i}, %rd+{4*i}, %rd+{4*i+1}, %rd+{4*i+2}')
                A(f'v_max_u32 %ck+{i}, %ck+{i}, %rd+{4*i+3}')
        if cfg.epoch:
            A(f'''
            v_or3_b32 %c0, %ck+0, %ck+1, %ck+2
            v_or_b32 %c0, %c0, %ck+3
            v_and_b32 %c0, 1, %c0
            v_cmp_ne_u32 vcc, 0, %c0
            ''')
        else:
            A(f'''
            v_max3_u32 %c0, %ck+0, %ck+1, %ck+2
            v_max_u32 %c0, %c0, %ck+3
            v_cmp_eq_u32 vcc, -1, %c0
            ''')
        if 'r1' in cfg.pts and variant == 'fast' and cfg.stamps:
            lab1 = L('r1skip')
            A(f's_cmp_lg_u32 s84, 0')
            A(f's_cbranch_scc1 {lab1}')
            stamp('r1')
            A('s_mov_b32 s84, 1')
            A.label(lab1)
        A(f's_cbranch_vccz {L("rok")}')
        for i in range(4):
            if cfg.epoch:
                A(f'v_and_b32 %ck+{i}, 1, %ck+{i}')
                A(f'v_cmp_ne_u32 s[{S_MK+2*i}:{S_MK+2*i+1}], 0, %ck+{i}')
            else:
                A(f'v_cmp_eq_u32 s[{S_MK+2*i}:{S_MK+2*i+1}], -1, %ck+{i}')
        for i in range(4):
            A(f's_mov_b64 exec, s[{S_MK+2*i}:{S_MK+2*i+1}]')
            A(f'buffer_load_dwordx4 %rd+{4*i}:4, v{V_RL}, {WS}, s{so[i]} offen sc1')
        A('s_mov_b64 exec, -1')
        A(f's_branch {L("rchk")}')
        A.label(L('rok'))
        stamp('r2')
    A(f'''
    v_mfma_f32_16x16x32_bf16 %ra:4, %rd+0:4, %sr:4, 0
    v_mfma_f32_16x16x32_bf16 %ra:4, %rd+4:4, %sr:4, %ra:4
    v_mfma_f32_16x16x32_bf16 %ra:4, %rd+8:4, %sr:4, %ra:4
    v_mfma_f32_16x16x32_bf16 %ra:4, %rd+12:4, %sr:4, %ra:4
    ''', tag='nowait' if cfg.pp_r else None)
    A(f'''
    v_mov_b64 %neg+0:2, -1
    v_mov_b64 %neg+2:2, -1
    v_permlane32_swap_b32 %ra+0, %ra+2
    v_permlane32_swap_b32 %ra+1, %ra+3
    v_add_f32 %ra+0, %ra+0, %ra+2
    v_add_f32 %ra+1, %ra+1, %ra+3
    v_cvt_pk_bf16_f32 %c0, %ra+0, %ra+1
    buffer_store_dword %c0, v{V_RP}, {WS}, s{S_MNXT} offen{SC}
    ''')
    stamp('r3')
    if not cfg.rearm_sm:
        A(f'buffer_store_dword %neg+0, v{V_RP}, {WS}, s{S_MCUR} offen{SC}')
    if not cfg.norearm and not cfg.rearm_sm and not cfg.epoch:
        for i in range(4):
            A(f'buffer_store_dwordx4 %neg:4, v{V_RL}, {WS}, s{so[i]} offen{SC}')
    A.label(L('nored'))
    if cfg.x_bar:
        A('s_barrier')
    stamp('red')
    if cfg.stamps and variant == 'fast':
        A(f's_sub_u32 s73, s75, s{S_BUD}')
        A(f's_mov_b32 s74, s{S_BUD}')
    A(f'''
    s_mov_b32 s{S_T1}, s{S_MCUR}
    s_mov_b32 s{S_MCUR}, s{S_MNXT}
    s_mov_b32 s{S_MNXT}, s{S_MTHD}
    s_mov_b32 s{S_MTHD}, s{S_T1}
    s_add_u32 s{S_PART}, s{S_PART}, s{S_PDELTA}
    s_add_u32 s{S_T5}, s{S_T5}, s{S_PDELTA}
    s_sub_u32 s{S_PDELTA}, 0, s{S_PDELTA}
    s_add_u32 s{S_STEP}, s{S_STEP}, 1
    s_bfe_u32 s{S_EPO}, s{S_STEP}, 0x10001
    ''')
    if cfg.stamps and variant == 'fast':
        lab = L('nost')
        A(f'''
        s_cmp_lg_u32 s{S_STEP}, 20
        s_cbranch_scc1 {lab}
        s_waitcnt lgkmcnt(0)
        s_lshl_b32 s{S_T1}, s{S_H}, 2
        s_add_u32 s{S_T1}, s{S_T1}, s{S_W}
        s_lshl_b32 s{S_T1}, s{S_T1}, 7
        s_add_u32 s{S_T1}, s{S_T1}, {WS_STAMP}
        v_mov_b32 %z0, 0
        ''')
        for i in range(9):
            A(f'v_mov_b32 %z1+0, s{56+2*i}')
            A(f'v_mov_b32 %z1+1, s{57+2*i}')
            A(f'buffer_store_dwordx2 %z1:2, %z0, {WS}, s{S_T1} offen offset:{8*i}')
            A('s_waitcnt vmcnt(0)')
        A.label(lab)
    A(f's_branch {L("top")}')
    if cfg.prog:
        A.label(L('fin'))
        A('s_waitcnt vmcnt(0)')
        A('s_barrier')
        if cfg.tl:
            A(f'''
            s_memrealtime s[56:57]
            s_lshl_b32 s{S_T1}, s{S_H}, 10
            s_add_u32 s{S_T1}, s{S_T1}, {WS_STAMP + 0x20000}
            s_waitcnt lgkmcnt(0)
            v_mov_b32 %tm+0, s56
            v_mov_b32 %tm+1, s57
            v_mov_b32 %ty, 0
            buffer_store_dwordx2 %tm:2, %ty, {WS}, s{S_T1} offen offset:512
            ''')
        if cfg.pf:
            A(f'''
            s_cmp_lg_u32 s{S_W}, 3
            s_cbranch_scc1 {name}_exit
            s_lshl_b32 s{S_T1}, s{S_H}, 7
            s_add_u32 s{S_T1}, s{S_T1}, {WS_PF}
            v_mov_b32 %pf0, {cfg.nsteps}
            v_mov_b32 %pf1, 0
            s_mov_b64 exec, 1
            buffer_store_dword %pf0, %pf1, {WS}, s{S_T1} offen sc1
            s_mov_b64 exec, -1
            s_branch {name}_exit
            ''')
        else:
          A(f'''
        s_cmp_lg_u32 s{S_W}, 3
        s_cbranch_scc1 {name}_exit
        s_mov_b32 s{S_T2}, {(1 << (8 * ((cfg.nsteps-1) & 3))) + ((1 << (8 * ((cfg.nsteps-2) & 3))) if cfg.prog_late else 0):#x}
        s_mov_b32 s{S_T1}, {DBG_PROG + ((cfg.nsteps-1) & 0xfc)}
        v_mov_b32 %pf0, s{S_T2}
        v_mov_b32 %pf1, s{S_T1}
        s_mov_b64 exec, 1
        buffer_atomic_add %pf0, %pf1, s[{S_DBG}:{S_DBG+3}], 0 offen sc1
        s_mov_b64 exec, -1
        s_branch {name}_exit
        ''')
    A.label(L('end'))
    A.regalloc(L('pre'), L('end'), POOL, verbose=True, outer=(L('top'),), wrap=(('rd',) if cfg.pp_r else ()))
```

```python
from asmlib import Asm, v, a, s, r
from layout import *
import gemm as G
from gemm import GemmCfg, f2u
import kernels as K
import attn as AT
import chain2
from chain2 import emit_chain, ChainCfg, DBG_KV, DBG_H, DBG_QB, DBG_PROG, DBG_ATT

W_G, W_I, W_R, W_CB, W_RB, W_SIG, W_BUD, W_T = 88, 89, 90, 91, 92, 93, 94, 95
SRD_D = 96
W_VAL, W_T2 = 100, 101

C1S = GemmCfg(4, 4, 9, 2, 1152, 'rm', sc1=True)
C2S = GemmCfg(3, 1, 72, 4, 9216, 'base', sc1=True)
NSET = 7


class FCfg:
    def __init__(self):
        self.sleep_att = 8
        self.sleep_out = 8
        self.sleep_far = 32
        self.tl = False
        self.pf = True
        self.no_attn = False
        self.no_outp = False


def tl(A, fc, slot, s_idx=None):
    if not fc.tl:
        return
    A(f'''
    s_memrealtime s[48:49]
    s_lshl_b32 s50, s2, 9
    s_add_u32 s50, s50, {WS_STAMP + 8*slot}
    ''')
    if s_idx is not None:
        A(f'''
        s_lshl_b32 s51, s{s_idx}, 3
        s_add_u32 s50, s50, s51
        ''')
    A(f'''
    s_waitcnt lgkmcnt(0)
    v_mov_b32 v14, s48
    v_mov_b32 v15, s49
    v_mov_b32 v13, 0
    buffer_store_dwordx2 v[14:15], v13, s[{G.SRD_WS}:{G.SRD_WS+3}], s50 offen
    ''')


def signal(A, lab):
    A(f'''
    s_waitcnt vmcnt(0)
    s_barrier
    s_cmp_lg_u32 s{G.S_WAVE}, 0
    s_cbranch_scc1 {lab}
    s_mov_b64 exec, 1
    v_mov_b32 v13, s{W_VAL}
    v_mov_b32 v14, s{W_SIG}
    buffer_atomic_add v13, v14, s[{SRD_D}:{SRD_D+3}], 0 offen sc1
    s_mov_b64 exec, -1
    ''')
    A.label(lab)


def acquire(A, lab, s_off, count, s_shift=None, mask=None, inv=False, sleep=32):
    A(f'''
    s_cmp_lg_u32 s{G.S_WAVE}, 0
    s_cbranch_scc1 {lab}_go
    v_mov_b32 v14, s{s_off}
    ''')
    A.label(lab + '_poll')
    A(f'''
    buffer_load_dword v13, v14, s[{SRD_D}:{SRD_D+3}], 0 offen sc1
    s_waitcnt vmcnt(0)
    v_readfirstlane_b32 s{W_T}, v13
    ''')
    if s_shift is not None:
        sh = str(s_shift[1]) if isinstance(s_shift, tuple) else f's{s_shift}'
        A(f's_lshr_b32 s{W_T}, s{W_T}, {sh}')
    if mask is not None:
        A(f's_and_b32 s{W_T}, s{W_T}, {mask:#x}')
    A(f'''
    s_sub_u32 s{W_BUD}, s{W_BUD}, 1
    s_cbranch_scc1 {lab}_got
    s_cmp_ge_u32 s{W_T}, {count}
    s_cbranch_scc1 {lab}_got
    s_sleep {sleep}
    s_branch {lab}_poll
    ''')
    A.label(lab + '_got')
    if inv:
        A(f'''
        buffer_inv sc1
        s_waitcnt vmcnt(0)
        ''')
    A.label(lab + '_go')
    A('s_barrier')


def poll(A, lab, srd, s_soff, count, s_shift=None, mask=None, sleep=8, wave0=False):
    if wave0:
        A(f'''
        s_cmp_lg_u32 s{G.S_WAVE}, 0
        s_cbranch_scc1 {lab}_go
        ''')
    if isinstance(s_soff, tuple):
        A(f'v_mov_b32 v14, {s_soff[1]}')
        so = '0'
    else:
        A('v_mov_b32 v14, 0')
        so = f's{s_soff}'
    A.label(lab + '_poll')
    A(f'''
    buffer_load_dword v13, v14, s[{srd}:{srd+3}], {so} offen sc1
    s_waitcnt vmcnt(0)
    v_readfirstlane_b32 s{W_T}, v13
    ''')
    if s_shift is not None:
        sh = str(s_shift[1]) if isinstance(s_shift, tuple) else f's{s_shift}'
        A(f's_lshr_b32 s{W_T}, s{W_T}, {sh}')
    if mask is not None:
        A(f's_and_b32 s{W_T}, s{W_T}, {mask:#x}')
    A(f'''
    s_sub_u32 s{W_BUD}, s{W_BUD}, 1
    s_cbranch_scc1 {lab}_go
    s_cmp_ge_u32 s{W_T}, {count}
    s_cbranch_scc1 {lab}_go
    s_sleep {sleep}
    s_branch {lab}_poll
    ''')
    A.label(lab + '_go')
    if wave0:
        A('s_barrier')


def emit_outp_set(A, name, fc):
    L = lambda x: f'{name}_{x}'
    SRD_W, SRD_O = G.SRD_W, G.SRD_O
    WS = f's[{G.SRD_WS}:{G.SRD_WS+3}]'
    S_C2, S_TASK, S_SEG, S_RBC, S_SO, S_T1, S_T2, S_PAR, S_SH, S_OFF, S_BO, S_OO = range(16, 28)
    V_O, V_B, V_OUT, V_LW, V_LR, V_DMA, V_TR = 1, 2, 3, 4, 5, 6, 7
    ACC, BS, RD, OF = 16, 32, 36, 64
    T0, T1, T2 = 8, 9, 10
    wv = G.S_WAVE
    A(f'''
    s_load_dwordx2 s[{SRD_W}:{SRD_W+1}], s[0:1], {KA_WO}
    s_load_dwordx2 s[{SRD_O}:{SRD_O+1}], s[0:1], {KA_OUT}
    s_mov_b32 s{SRD_W+2}, {4096*1152}
    s_mov_b32 s{SRD_W+3}, 0x20000
    s_mov_b32 s{SRD_O+2}, {2048*1152}
    s_mov_b32 s{SRD_O+3}, 0x20000
    s_lshl_b32 s{S_C2}, s{W_I}, 6
    v_lshrrev_b32 v{T0}, 2, v0
    v_mul_u32_u24 v{T0}, 1152, v{T0}
    v_and_b32 v{T1}, 3, v0
    v_lshl_add_u32 v{V_DMA}, v{T1}, 4, v{T0}
    v_lshrrev_b32 v{T0}, 4, v0
    v_bfe_u32 v{T2}, v0, 2, 2
    v_lshl_add_u32 v{T0}, v{T0}, 3, v{T2}
    v_lshlrev_b32 v{T0}, 6, v{T0}
    v_lshl_add_u32 v{T0}, v{T1}, 3, v{T0}
    s_lshl_b32 s{S_T1}, s{wv}, 15
    v_add_u32 v{V_TR}, s{S_T1}, v{T0}
    v_lshrrev_b32 v{T0}, 4, v0
    v_and_b32 v{T1}, 15, v0
    v_lshlrev_b32 v{T2}, 4, v{T1}
    v_lshl_add_u32 v{V_O}, v{T0}, 9, v{T2}
    s_and_b32 s{S_T1}, s{wv}, 1
    s_lshl_b32 s{S_T1}, s{S_T1}, 4
    v_lshlrev_b32 v{T0}, 2, v{T0}
    v_add_u32 v{T0}, s{S_T1}, v{T0}
    v_mul_u32_u24 v{T2}, 2304, v{T1}
    v_lshl_add_u32 v{V_B}, v{T0}, 2, v{T2}
    v_mul_u32_u24 v{T2}, 1152, v{T1}
    v_lshl_add_u32 v{V_OUT}, v{T0}, 1, v{T2}
    v_lshlrev_b32 v{T0}, 4, v0
    s_lshl_b32 s{S_T1}, s{wv}, 11
    v_add_u32 v{V_LW}, s{S_T1}, v{T0}
    s_and_b32 s{S_T1}, s{wv}, 1
    s_lshl_b32 s{S_T1}, s{S_T1}, 10
    v_add_u32 v{V_LR}, s{S_T1}, v{T0}
    s_waitcnt lgkmcnt(0)
    ''')
    for half in range(2):
        A(f'''
        s_lshl_b32 s{S_T1}, s{wv}, 10
        s_add_u32 s{S_T1}, s{S_T1}, {512*half}
        s_mul_i32 s{S_T1}, s{S_T1}, 1152
        s_add_u32 s{S_T1}, s{S_T1}, s{S_C2}
        s_lshl_b32 s{S_T2}, s{wv}, 15
        ''')
        for j in range(32):
            A(f'''
            s_mov_b32 m0, s{S_T2}
            buffer_load_dwordx4 v{V_DMA}, s[{SRD_W}:{SRD_W+3}], s{S_T1} offen lds
            ''')
            if j < 31:
                A(f'''
                s_add_u32 s{S_T1}, s{S_T1}, {16*1152}
                s_add_u32 s{S_T2}, s{S_T2}, 1024
                ''')
        A('s_waitcnt vmcnt(0)')
        for kl in range(16):
            ks = 16 * half + kl
            for ch in range(2):
                for jj in range(2):
                    A(f'ds_read_b64_tr_b16 {a((ks*2+ch)*4 + 2*jj, 2)}, v{V_TR} offset:{kl*2048 + jj*256 + ch*32}')
        A('s_waitcnt lgkmcnt(0)')
    A(f'''
    s_barrier
    s_mov_b32 s{S_TASK}, s{W_G}
    s_mov_b32 s{S_RBC}, -1
    s_mov_b32 s{S_PAR}, 0
    s_mov_b32 s29, 0
    ''')
    if fc.pf:
        poll(A, L('arm'), SRD_D, ('imm', 4), 32, sleep=fc.sleep_far, wave0=True)
    tl(A, fc, 5)
    A.label(L('task'))
    A(f'''
    s_lshr_b32 s{S_SEG}, s{S_TASK}, 1
    s_lshr_b32 s{S_T1}, s{S_SEG}, 3
    s_cmp_eq_u32 s{S_T1}, s{S_RBC}
    s_cbranch_scc1 {L('rbok')}
    s_mov_b32 s{S_RBC}, s{S_T1}
    s_lshl_b32 s{S_OFF}, s{S_T1}, 2
    s_add_u32 s{S_OFF}, s{S_OFF}, {DBG_QB}
    ''')
    acquire(A, L('aqb'), S_OFF, 12, s_shift=('imm', 16), sleep=fc.sleep_far)
    A.label(L('rbok'))
    A(f'''
    s_lshl_b32 s{S_T1}, s{S_TASK}, 4
    s_mul_i32 s{S_BO}, s{S_T1}, 2304
    s_lshl_b32 s{S_T2}, s{S_C2}, 1
    s_add_u32 s{S_BO}, s{S_BO}, s{S_T2}
    s_add_u32 s{S_BO}, s{S_BO}, {WS_BASE}
    s_mul_i32 s{S_OO}, s{S_T1}, 1152
    s_add_u32 s{S_OO}, s{S_OO}, s{S_C2}
    s_and_b32 s{S_OFF}, s{S_SEG}, 0xfc
    s_add_u32 s{S_OFF}, s{S_OFF}, {DBG_ATT}
    s_and_b32 s{S_SH}, s{S_SEG}, 3
    s_lshl_b32 s{S_SH}, s{S_SH}, 3
    s_lshl_b32 s{S_SO}, s{S_SEG}, 18
    s_lshl_b32 s{S_T1}, s{wv}, 16
    s_add_u32 s{S_SO}, s{S_SO}, s{S_T1}
    s_and_b32 s{S_T1}, s{S_TASK}, 1
    s_lshl_b32 s{S_T1}, s{S_T1}, 8
    s_add_u32 s{S_SO}, s{S_SO}, s{S_T1}
    s_add_u32 s{S_SO}, s{S_SO}, {WS_O}
    buffer_load_dwordx4 {v(BS,4)}, v{V_B}, {WS}, s{S_BO} offen sc1
    ''')
    if fc.pf:
        A(f'''
        s_lshl_b32 s{S_OFF}, s{S_SEG}, 7
        s_add_u32 s{S_OFF}, s{S_OFF}, {WS_AF}
        ''')
        poll(A, L('att'), G.SRD_WS, S_OFF, 32, sleep=fc.sleep_out, wave0=True)
    else:
        acquire(A, L('att'), S_OFF, 8, s_shift=S_SH, mask=0xff, sleep=fc.sleep_out)
    for ks in range(32):
        A(f'buffer_load_dwordx4 {v(OF+4*ks,4)}, v{V_O}, {WS}, s{S_SO} offen offset:{2048*(ks&1)} sc1')
        if ks & 1 and ks < 31:
            A(f's_add_u32 s{S_SO}, s{S_SO}, 4096')
    for ks in range(32):
        for ch in range(2):
            acc = v(ACC + 8 * (ks & 1) + 4 * ch, 4)
            cin = '0' if ks < 2 else acc
            A(f'v_mfma_f32_16x16x32_bf16 {acc}, {a((ks*2+ch)*4,4)}, {v(OF+4*ks,4)}, {cin}')
    for i in range(8):
        A(f'v_add_f32 v{ACC+i}, v{ACC+i}, v{ACC+8+i}')
    A(f'''
    v_add_u32 v{T0}, s{S_PAR}, v{V_LW}
    ds_write_b128 v{T0}, {v(ACC,4)}
    ds_write_b128 v{T0}, {v(ACC+4,4)} offset:1024
    v_add_u32 v{T1}, s{S_PAR}, v{V_LR}
    s_xor_b32 s{S_PAR}, s{S_PAR}, 8192
    s_waitcnt lgkmcnt(0)
    s_barrier
    s_cmp_ge_u32 s{wv}, 2
    s_cbranch_scc1 {L('next')}
    ''')
    for w in range(4):
        A(f'ds_read_b128 {v(RD+4*w,4)}, v{T1} offset:{2048*w}')
    for i in range(4):
        A(f'v_add_f32 v{RD+i}, v{RD+i}, v{RD+4+i}')
        A(f'v_add_f32 v{RD+8+i}, v{RD+8+i}, v{RD+12+i}')
    for i in range(4):
        A(f'v_add_f32 v{RD+i}, v{RD+i}, v{RD+8+i}')
    for i in range(4):
        A(f'v_add_f32 v{RD+i}, v{RD+i}, v{BS+i}')
    A(f'''
    v_cvt_pk_bf16_f32 v{RD}, v{RD}, v{RD+1}
    v_cvt_pk_bf16_f32 v{RD+1}, v{RD+2}, v{RD+3}
    buffer_store_dwordx2 {v(RD,2)}, v{V_OUT}, s[{SRD_O}:{SRD_O+3}], s{S_OO} offen
    ''')
    A.label(L('next'))
    tl(A, fc, 6, 29)
    A('s_add_u32 s29, s29, 1')
    A(f'''
    s_add_u32 s{S_TASK}, s{S_TASK}, {NSET}
    s_cmp_lt_u32 s{S_TASK}, 128
    s_cbranch_scc1 {L('task')}
    ''')


def emit_attn_set(A, name, fc):
    L = lambda x: f'{name}_{x}'
    S_SEG, S_HEAD, S_RBC, S_OFF, S_SH = 24, 25, 26, 27, 28
    wv = G.S_WAVE
    A(f'''
    s_sub_u32 s{S_HEAD}, s{W_I}, 18
    s_lshl_b32 s{S_HEAD}, s{S_HEAD}, 2
    s_add_u32 s{S_HEAD}, s{S_HEAD}, s{wv}
    s_mov_b32 s{S_SEG}, s{W_G}
    s_mov_b32 s{S_RBC}, -1
    ''')
    AT.emit_attn_setup2(A)
    A('s_mov_b32 s29, 0')
    if fc.pf:
        poll(A, L('arm'), SRD_D, ('imm', 4), 32, sleep=fc.sleep_far)
    tl(A, fc, 5)
    A.label(L('task'))
    A(f'''
    s_lshr_b32 s{S_OFF}, s{S_SEG}, 3
    s_cmp_eq_u32 s{S_OFF}, s{S_RBC}
    s_cbranch_scc1 {L('rbok')}
    s_mov_b32 s{S_RBC}, s{S_OFF}
    s_lshl_b32 s{S_OFF}, s{S_OFF}, 2
    s_add_u32 s{S_OFF}, s{S_OFF}, {DBG_QB}
    ''')
    if fc.pf:
        poll(A, L('aq'), SRD_D + 0, S_OFF, 16, mask=0xffff, sleep=fc.sleep_far)
        A(f's_sub_u32 s{S_OFF}, s{S_OFF}, {DBG_QB - DBG_KV}')
        poll(A, L('akv'), SRD_D, S_OFF, 32, sleep=fc.sleep_far)
    else:
        acquire(A, L('aq'), S_OFF, 16, mask=0xffff, sleep=fc.sleep_far)
        A(f's_sub_u32 s{S_OFF}, s{S_OFF}, {DBG_QB - DBG_KV}')
        acquire(A, L('akv'), S_OFF, 32, sleep=fc.sleep_far)
    A.label(L('rbok'))
    if fc.pf:
        A(f'''
        s_lshl_b32 s{S_OFF}, s{S_HEAD}, 7
        s_add_u32 s{S_OFF}, s{S_OFF}, {WS_PF}
        s_add_u32 s{S_SH}, s{S_SEG}, 1
        ''')
    else:
        A(f'''
        s_and_b32 s{S_OFF}, s{S_SEG}, 0xfc
        s_add_u32 s{S_OFF}, s{S_OFF}, {DBG_PROG}
        s_and_b32 s{S_SH}, s{S_SEG}, 3
        s_lshl_b32 s{S_SH}, s{S_SH}, 3
        ''')

    def pl():
        if fc.pf:
            poll(A, L('apr'), G.SRD_WS, S_OFF, f's{S_SH}', sleep=fc.sleep_att)
        else:
            acquire(A, L('apr'), S_OFF, 32, s_shift=S_SH, mask=0xff, sleep=fc.sleep_att)
    AT.emit_attn_task2(A, S_SEG, S_HEAD, pl)
    if fc.pf:
        A(f'''
        s_lshl_b32 s{S_OFF}, s{S_SEG}, 7
        s_add_u32 s{S_OFF}, s{S_OFF}, {WS_AF}
        v_mov_b32 v13, 1
        v_mov_b32 v14, 0
        s_waitcnt vmcnt(0)
        s_mov_b64 exec, 1
        buffer_atomic_add v13, v14, s[{G.SRD_WS}:{G.SRD_WS+3}], s{S_OFF} offen sc1
        s_mov_b64 exec, -1
        ''')
    else:
        A(f'''
        s_add_u32 s{W_SIG}, s{S_OFF}, {DBG_ATT - DBG_PROG}
        s_lshl_b32 s{W_VAL}, 1, s{S_SH}
        ''')
        signal(A, L('sig'))
    tl(A, fc, 6, 29)
    A('s_add_u32 s29, s29, 1')
    A(f'''
    s_add_u32 s{S_SEG}, s{S_SEG}, {NSET}
    s_cmp_lt_u32 s{S_SEG}, 64
    s_cbranch_scc1 {L('task')}
    ''')


def emit_worker(A, name, fc):
    L = lambda x: f'{name}_{x}'
    A.label(L('worker'))
    K.common_entry(A, 256, L('wexit'))
    A(f'''
    s_load_dwordx2 s[{SRD_D}:{SRD_D+1}], s[0:1], {KA_DBG}
    s_mov_b32 s{SRD_D+2}, 256
    s_mov_b32 s{SRD_D+3}, 0x20000
    s_and_b32 s{W_G}, s2, 7
    s_sub_u32 s{W_G}, s{W_G}, 1
    s_lshr_b32 s{W_I}, s2, 3
    s_mov_b32 s{W_R}, 0
    s_mov_b32 s{W_BUD}, 200000
    s_add_u32 s{W_CB}, s{W_I}, 16
    s_mov_b32 s{W_RB}, s{W_G}
    s_waitcnt lgkmcnt(0)
    ''')
    tl(A, fc, 0)
    A.label(L('task'))
    A(f'''
    s_mov_b32 s{W_SIG}, {DBG_KV}
    s_cmp_ge_u32 s{W_CB}, 48
    s_cselect_b32 s{W_SIG}, {DBG_H}, s{W_SIG}
    s_cmp_lt_u32 s{W_CB}, 16
    s_cselect_b32 s{W_SIG}, {DBG_QB}, s{W_SIG}
    s_lshl_b32 s{W_T}, s{W_RB}, 2
    s_add_u32 s{W_SIG}, s{W_SIG}, s{W_T}
    s_mov_b32 s{W_VAL}, 1
    ''')
    K.emit_gemm1_task(A, L('g1'), W_CB, W_RB, C1S)
    signal(A, L('sig1'))
    A(f's_add_u32 s{W_R}, s{W_R}, 1')
    tl(A, fc, 0, W_R)
    A(f'''
    s_cmp_eq_u32 s{W_R}, 1
    s_cbranch_scc0 {L('r2')}
    s_lshl_b32 s{W_T}, s{W_G}, 5
    s_add_u32 s{W_T}, s{W_T}, s{W_I}
    s_and_b32 s{W_RB}, s{W_T}, 7
    s_lshr_b32 s{W_CB}, s{W_T}, 3
    s_add_u32 s{W_CB}, s{W_CB}, 48
    s_cmp_lt_u32 s{W_T}, 144
    s_cbranch_scc1 {L('task')}
    s_sub_u32 s{W_CB}, s{W_CB}, {48 + 22}
    s_cmp_ge_u32 s{W_T}, 176
    s_cbranch_scc1 {L('task')}
    s_sub_u32 s{W_CB}, s{W_T}, {144 - 16}
    s_mov_b32 s{W_RB}, 7
    s_branch {L('task')}
    ''')
    A.label(L('r2'))
    A(f'''
    s_cmp_eq_u32 s{W_R}, 2
    s_cbranch_scc0 {L('g1done')}
    s_cmp_ge_u32 s{W_G}, 4
    s_cbranch_scc1 {L('g1done')}
    s_cmp_lt_u32 s{W_I}, 12
    s_cbranch_scc1 {L('g1done')}
    s_mul_i32 s{W_T}, s{W_G}, 20
    s_add_u32 s{W_T}, s{W_T}, s{W_I}
    s_sub_u32 s{W_T}, s{W_T}, 12
    s_and_b32 s{W_RB}, s{W_T}, 7
    s_lshr_b32 s{W_CB}, s{W_T}, 3
    s_add_u32 s{W_CB}, s{W_CB}, 6
    s_branch {L('task')}
    ''')
    A.label(L('g1done'))
    A(f'''
    s_cmp_lt_u32 s{W_G}, 4
    s_cbranch_scc1 {L('phaseb')}
    s_sub_u32 s{W_CB}, s{W_G}, 4
    s_mov_b32 s{W_RB}, s{W_I}
    s_lshr_b32 s{W_SIG}, s{W_I}, 2
    s_lshl_b32 s{W_SIG}, s{W_SIG}, 2
    s_add_u32 s{W_SIG}, s{W_SIG}, {DBG_H}
    ''')
    acquire(A, L('acq2'), W_SIG, 18, inv=True)
    K.emit_ffn2_task(A, L('f2'), W_CB, W_RB, C2S)
    A(f'''
    s_add_u32 s{W_SIG}, s{W_SIG}, {DBG_QB - DBG_H}
    s_mov_b32 s{W_VAL}, 0x10000
    ''')
    signal(A, L('sig2'))
    tl(A, fc, 4)
    A.label(L('phaseb'))
    A(f'''
    s_cmp_ge_u32 s{W_I}, 26
    s_cbranch_scc1 {L('wexit')}
    s_cmp_ge_u32 s{W_I}, 18
    s_cbranch_scc1 {L('attn')}
    ''')
    if not fc.no_outp:
        emit_outp_set(A, L('op'), fc)
    A(f's_branch {L("wexit")}')
    A.label(L('attn'))
    if not fc.no_attn:
        emit_attn_set(A, L('at'), fc)
    A.label(L('wexit'))
    A('s_endpgm')


def make_main(cfg=None, fc=None):
    def emit_main(A, name):
        c = cfg or ChainCfg()
        c.fused = True
        c.kv_sc1 = True
        c.prog = True
        c.vm_early = True
        f = fc or FCfg()
        c.pf = f.pf
        emit_chain(A, c, name)
        emit_worker(A, name, f)
    return emit_main
```
